```python
import torch

def _softmax(x, axis=-1):
    return torch.softmax(x, dim=axis)
def _gelu(x):
    return torch.nn.functional.gelu(x, approximate="tanh")
def _silu(x):
    return torch.nn.functional.silu(x)
def _sigmoid(x):
    return torch.sigmoid(x)
def _layernorm(x, axis=-1, eps=1e-5):
    m = x.mean(dim=axis, keepdim=True)
    v = x.var(dim=axis, keepdim=True, unbiased=False)
    return (x - m) / torch.sqrt(v + eps)
def _scatter_add(tgt, idx, src, axis=0):
    return tgt.clone().index_add_(axis, idx, src)
def _segment_sum(src, seg, n):
    out = torch.zeros((n,) + src.shape[1:], dtype=src.dtype)
    return out.index_add_(0, seg, src)
def _pad(x, pw):
    flat = tuple(v for pair in reversed(pw) for v in pair)
    return torch.nn.functional.pad(x, flat)

kernel_name = 'standalone__low_rank_proj_linformer__prompt'

def setup_inputs():

    _w = (lambda a: (lambda t: t.to(torch.bfloat16) if t.is_floating_point() else t)(torch.as_tensor(a)))
    B, H, Sq, Skv, Dh, R = 1, 32, 2048, 2048, 192, 8
    return {
        "q": _w((lambda *s: torch.randn(*s, dtype=torch.bfloat16) * 0.8)(B, H, Sq, Dh)),
        "k": _w((lambda *s: torch.randn(*s, dtype=torch.bfloat16) * 0.8)(B, H, Skv, Dh)),
        "v": _w((lambda *s: torch.randn(*s, dtype=torch.bfloat16) * 0.05)(B, H, Skv, Dh)),
        "e_proj": _w((lambda *s: torch.randn(*s, dtype=torch.bfloat16) * 0.8)(R, Skv) * (Skv ** -0.5)),
        "f_proj": _w((lambda *s: torch.randn(*s, dtype=torch.bfloat16) * 0.05)(R, Skv) * (Skv ** -0.5)),
    }

def reference(q, k, v, e_proj, f_proj):
    B, H, Sq, Dh = q.shape
    kp = torch.einsum("rn,bhnd->bhrd", e_proj, k)
    vp = torch.einsum("rn,bhnd->bhrd", f_proj, v)
    scores = torch.einsum("bhqd,bhrd->bhqr", q, kp) * (Dh ** -0.5)
    p = _softmax(scores, axis=-1)
    o = torch.einsum("bhqr,bhrd->bhqd", p, vp)
    return o
```

```python
KN = "standalone__low_rank_proj_linformer__prompt_kernel"

class Asm:
    def __init__(self):
        self.lines = []
        self.nlab = 0
    def __call__(self, s):
        for l in s.strip("\n").split("\n"):
            self.lines.append("    " + l.strip())
    def label(self, name):
        self.lines.append(name + ":")
    def newlabel(self, base="L"):
        self.nlab += 1
        return "%s_%d" % (base, self.nlab)
    def raw(self, s):
        self.lines.append(s)
    def text(self):
        return "\n".join(self.lines) + "\n"

HEADER = """; Kernarg: q k v e_proj f_proj out debug ws (8 B each)
"""

def kernel_begin(name):
    return """.globl %s
.p2align 8
.type %s,@function
%s:
""" % (name, name, name)

def kernel_desc(name, vgpr, sgpr=102, accum=None, wgy=False):
    if accum is None:
        accum = min(256, (vgpr + 3) // 4 * 4)
    return """.amdhsa_kernel %s
  .amdhsa_next_free_vgpr %d
  .amdhsa_next_free_sgpr %d
  .amdhsa_accum_offset %d
  .amdhsa_group_segment_fixed_size 0
  .amdhsa_kernarg_size 64
  .amdhsa_user_sgpr_count 2
  .amdhsa_user_sgpr_kernarg_segment_ptr 1
  .amdhsa_system_sgpr_workgroup_id_x 1
.end_amdhsa_kernel
""" % (name, vgpr, sgpr, accum)

def wrap(launch_lines, kernels):
    s = HEADER
    for l in launch_lines:
        s += l + "\n"
    s += '.amdgcn_target "amdgcn-amd-amdhsa--gfx950"\n.text\n'
    for name, body, vgpr, sgpr in kernels:
        s += kernel_begin(name) + body
    s += '.section .rodata,"a"\n.p2align 6\n'
    for name, body, vgpr, sgpr in kernels:
        s += ".p2align 6\n" + kernel_desc(name, vgpr, sgpr)
    return s
```

```python
import sys, argparse
from asmlib import *

def gen(nw=8, pat="lin", depth=8, st="", ld="", nostore=False, noload=False, stamps=True, dma=False):
    a = Asm()
    a("s_memrealtime s[52:53]")
    a("s_cmp_ge_u32 s2, 256")
    a("s_cbranch_scc1 L_end")
    a("s_load_dwordx4 s[4:7], s[0:1], 0")
    a("s_load_dwordx2 s[8:9], s[0:1], 16")
    a("s_load_dwordx2 s[10:11], s[0:1], 40")
    a("s_load_dwordx2 s[12:13], s[0:1], 56")
    a("s_memrealtime s[40:41]")
    a("s_lshr_b32 s14, s2, 6")
    a("s_lshl_b32 s14, s14, 3")
    a("s_and_b32 s15, s2, 7")
    a("s_add_u32 s14, s14, s15")
    a("s_lshr_b32 s15, s2, 3")
    a("s_and_b32 s15, s15, 7")
    a("s_mul_i32 s16, s14, 786432")
    a("s_mul_i32 s17, s15, 98304")
    a("s_add_u32 s16, s16, s17")
    a("v_lshrrev_b32 v1, 6, v0")
    a("v_and_b32 v2, 63, v0")
    per_wave = 98304 // nw
    nld = per_wave // 1024
    if pat == "lin":
        a("v_lshlrev_b32 v3, 4, v2")
        offs = [i * 1024 for i in range(nld)]
    elif pat == "oct":
        a("v_and_b32 v3, 7, v2")
        a("v_lshlrev_b32 v3, 4, v3")
        a("v_lshrrev_b32 v4, 3, v2")
        a("v_mul_u32_u24 v4, 3072, v4")
        a("v_add_u32 v3, v3, v4")
        offs = None
    elif pat == "oct2":
        a("v_and_b32 v3, 7, v2")
        a("v_lshlrev_b32 v3, 4, v3")
        a("v_lshrrev_b32 v4, 3, v2")
        a("v_mul_u32_u24 v4, 384, v4")
        a("v_add_u32 v3, v3, v4")
        offs = None
    elif pat == "r16":
        a("v_and_b32 v3, 15, v2")
        a("v_mul_u32_u24 v3, 384, v3")
        a("v_lshrrev_b32 v4, 4, v2")
        a("v_lshlrev_b32 v4, 4, v4")
        a("v_add_u32 v3, v3, v4")
        offs = []
        for t in range(nld // 6):
            for m in range(6):
                offs.append(t * 6144 + m * 64)
    if pat in ("oct", "oct2"):
        assert nw % 3 == 0
        rows = 256 // (nw // 3)
        a("s_mov_b32 s20, 0x55555556")
        a("v_mul_hi_u32 v5, s20, v1")
        a("v_mul_u32_u24 v6, 3, v5")
        a("v_sub_u32 v6, v1, v6")
        a("v_mul_u32_u24 v5, %d, v5" % (rows * 384))
        a("v_lshlrev_b32 v6, 7, v6")
        a("v_add_u32 v3, v3, v5")
        a("v_add_u32 v3, v3, v6")
        offs = []
        for ks in range(rows // 64):
            for j in range(8):
                offs.append(ks * 64 * 384 + (j * 384 if pat == "oct" else j * 3072))
    else:
        a("v_mul_u32_u24 v5, %d, v1" % per_wave)
        a("v_add_u32 v3, v3, v5")
    a("v_lshlrev_b32 v7, 4, v2")
    a("v_mul_u32_u24 v5, %d, v1" % per_wave)
    a("v_add_u32 v7, v7, v5")
    a("s_waitcnt lgkmcnt(0)")
    a("s_memrealtime s[54:55]")
    a("s_getreg_b32 s56, hwreg(HW_REG_XCC_ID)")
    def srd(dst, lo, size):
        a("s_add_u32 s%d, s%d, s16" % (dst, lo))
        a("s_addc_u32 s%d, s%d, 0" % (dst + 1, lo + 1))
        a("s_mov_b32 s%d, %d" % (dst + 2, size))
        a("s_mov_b32 s%d, 0x20000" % (dst + 3))
    srd(20, 6, 98304)
    srd(24, 8, 98304)
    srd(28, 4, 98304)
    srd(32, 10, 98304)
    base = 8
    n = 0
    total = 3 * len(offs)
    if not noload:
        if dma:
            a("v_lshrrev_b32 v5, 6, v0")
            a("s_nop 0")
            a("v_readfirstlane_b32 s36, v5")
            a("s_nop 3")
            a("s_mul_i32 s36, s36, %d" % (depth * 1024))
        for mi, s in enumerate((20, 24, 28)):
            for o in offs:
                if n >= depth:
                    a("s_waitcnt vmcnt(%d)" % (depth - 1))
                r = base + 4 * (n % depth)
                so = "0"
                imm = o
                if o >= 4096:
                    a("s_mov_b32 s37, %d" % (o & ~4095 if not dma else o))
                    so = "s37"
                    imm = o & 4095 if not dma else 0
                elif dma and o:
                    a("s_mov_b32 s37, %d" % o)
                    so = "s37"; imm = 0
                if dma:
                    a("s_add_u32 m0, s36, %d" % ((n % depth) * 1024))
                    a("s_nop 0")
                    a("buffer_load_dwordx4 v3, s[%d:%d], %s offen %s lds" % (s, s + 3, so, ld))
                else:
                    a("buffer_load_dwordx4 v[%d:%d], v3, s[%d:%d], %s offen offset:%d %s" % (r, r + 3, s, s + 3, so, imm, ld))
                n += 1
            if stamps and mi == 1:
                a("s_memrealtime s[42:43]")
        a("s_waitcnt vmcnt(0)")
    a("s_memrealtime s[44:45]")
    if not nostore:
        for i in range(nld):
            o = i * 1024
            so = "0"; imm = o
            if o >= 4096:
                a("s_mov_b32 s37, %d" % (o & ~4095)); so = "s37"; imm = o & 4095
            r = base + 4 * (i % depth)
            a("buffer_store_dwordx4 v[%d:%d], v7, s[%d:%d], %s offen offset:%d %s" % (r, r + 3, 32, 35, so, imm, st))
        a("s_memrealtime s[46:47]")
        a("s_waitcnt vmcnt(0)")
    a("s_memrealtime s[48:49]")
    if stamps:
        a("s_waitcnt lgkmcnt(0)")
        a("v_lshrrev_b32 v1, 6, v0")
        a("v_lshlrev_b32 v1, 5, v1")
        a("s_lshl_b32 s14, s2, 9")
        a("v_add_u32 v1, s14, v1")
        a("v_mov_b32 v8, s40"); a("v_mov_b32 v9, s42"); a("v_mov_b32 v10, s44"); a("v_mov_b32 v11, s46")
        a("v_mov_b32 v12, s48"); a("v_mov_b32 v13, s52"); a("v_mov_b32 v14, s54"); a("v_mov_b32 v15, s56")
        a("s_mov_b32 s20, s12"); a("s_mov_b32 s21, s13"); a("s_mov_b32 s22, 0x100000"); a("s_mov_b32 s23, 0x20000")
        a("v_and_b32 v2, 63, v0")
        a("v_cmp_eq_u32 vcc, 0, v2")
        a("s_and_saveexec_b64 s[50:51], vcc")
        a("buffer_store_dwordx4 v[8:11], v1, s[20:23], 0 offen")
        a("buffer_store_dwordx4 v[12:15], v1, s[20:23], 0 offen offset:16")
    a.label("L_end")
    a("s_endpgm")
    vg = max(16, base + 4 * depth)
    lds = depth * 1024 * nw if dma else 0
    return wrap(["; @launch grid=(256,1,1) block=(%d,1,1) lds=%d" % (nw * 64, lds)], [(KN, a.text(), vg, 64)])

if __name__ == "__main__":
    import itertools
    cfgs = {
      "sol_lin8_d8": dict(nw=8, pat="lin", depth=8),
      "sol_lin8_d36": dict(nw=8, pat="lin", depth=36),
      "sol_lin8_d4": dict(nw=8, pat="lin", depth=4),
      "sol_r16_8_d8": dict(nw=8, pat="r16", depth=8),
      "sol_oct12_d8": dict(nw=12, pat="oct", depth=8),
      "sol_oct2_12_d8": dict(nw=12, pat="oct2", depth=8),
      "sol_lin8_d8_nt": dict(nw=8, pat="lin", depth=8, st="nt", ld="nt"),
      "sol_lin8_d8_nost": dict(nw=8, pat="lin", depth=8, nostore=True),
      "sol_lin8_d8_nold": dict(nw=8, pat="lin", depth=8, noload=True),
      "sol_dma8_d8": dict(nw=8, pat="lin", depth=8, dma=True),
    }
    for k, c in cfgs.items():
        open(k + ".s", "w").write(gen(**c))
    print(" ".join(k + ".s" for k in cfgs))
```

```python
from gen_sol import gen
cfgs = {
  "a_lin8_d8_nt_nt": dict(nw=8, pat="lin", depth=8, st="nt", ld="nt"),
  "a_lin8_d8_nt_pl": dict(nw=8, pat="lin", depth=8, st="", ld="nt"),
  "a_lin8_d8_nt_sc1": dict(nw=8, pat="lin", depth=8, st="sc1", ld="nt"),
  "a_lin8_d8_nt_sc01": dict(nw=8, pat="lin", depth=8, st="sc0 sc1", ld="nt"),
  "a_lin8_d8_nt_sc1nt": dict(nw=8, pat="lin", depth=8, st="sc1 nt", ld="nt"),
  "a_lin8_d8_nt_nost": dict(nw=8, pat="lin", depth=8, nostore=True, ld="nt"),
  "a_lin8_d4_nt_nost": dict(nw=8, pat="lin", depth=4, nostore=True, ld="nt"),
  "a_lin8_d2_nt_nost": dict(nw=8, pat="lin", depth=2, nostore=True, ld="nt"),
  "a_lin8_d16_nt_nost": dict(nw=8, pat="lin", depth=16, nostore=True, ld="nt"),
  "a_lin8_d36_nt_nost": dict(nw=8, pat="lin", depth=36, nostore=True, ld="nt"),
  "a_r16_8_d8_nt_nost": dict(nw=8, pat="r16", depth=8, nostore=True, ld="nt"),
  "a_oct12_d8_nt_nost": dict(nw=12, pat="oct", depth=8, nostore=True, ld="nt"),
  "a_oct2_12_d8_nt_nost": dict(nw=12, pat="oct2", depth=8, nostore=True, ld="nt"),
  "a_dma8_d8_nt_nost": dict(nw=8, pat="lin", depth=8, nostore=True, ld="nt", dma=True),
  "a_lin16_d4_nt_nost": dict(nw=16, pat="lin", depth=4, nostore=True, ld="nt"),
  "a_lin8_d8_sc1_nost": dict(nw=8, pat="lin", depth=8, nostore=True, ld="sc1"),
  "a_lin8_d8_sc01_nost": dict(nw=8, pat="lin", depth=8, nostore=True, ld="sc0 sc1"),
  "a_lin8_d8_sc1nt_nost": dict(nw=8, pat="lin", depth=8, nostore=True, ld="sc1 nt"),
  "a_nold_nt": dict(nw=8, pat="lin", depth=8, noload=True, st="nt"),
  "a_nold_sc1": dict(nw=8, pat="lin", depth=8, noload=True, st="sc1"),
  "a_nold_pl": dict(nw=8, pat="lin", depth=8, noload=True, st=""),
}
for k, c in cfgs.items():
    open(k + ".s", "w").write(gen(**c))
print(" ".join(k + ".s" for k in cfgs))
import json
print(json.dumps(["work/" + k + ".s" for k in cfgs]))
print(json.dumps(["work/" + k + ".s.npy" for k in cfgs]))
```

```python
import sys
from asmlib import *

L_Q = 0
L_E = 98304
L_KP = L_E + 8192
KP_STRIDE = 400
L_VP = L_KP + 8 * KP_STRIDE
L_FLAG = L_VP + 3072
LDS_BYTES = L_FLAG + 64
F_TRIG, F_READY, F_MODE, F_FIN, F_STAMP, F_E, F_JOIN = 0, 4, 8, 12, 16, 48, 52
STAMP_OFF = 8 << 20
SPIN_LDS = 1 << 22
SPIN_GLB = 1 << 16
NKV = 3
NQ = 8
NW = NKV + NQ
RING = 12
BR = 76
ACC = 108
AOP = 140
H0, H1 = 148, 149
NVGPR = 152

DEF = dict(ld="nt", st="nt", stamps=None, qdepth=4, depth=12, trigp=None, fast=True, dry=True, xmap="xcd",
           round_emul=True, prio=True, rot=True, tsleep=1, auxsleep=32, auxpolls=3, psleep=0, pipe=0, kvonly=False, cld="nt", cst="", touch=True, cld1=None)

def gen(**kw):
    o = dict(DEF); o.update(kw)
    globals().update({"_o": o})
    ld, st, stamps, qdepth, D = o["ld"], o["st"], o["stamps"], o["qdepth"], o["depth"]
    dry, fast = o["dry"], o["fast"]
    assert D % 2 == 0 and 8 <= D <= 14
    trigp = o["trigp"] if o["trigp"] is not None else (62 - D) // 2 + 1
    a = Asm()
    def stamp(i):
        if stamps:
            a("s_memrealtime s[%d:%d]" % (64 + 2 * i, 65 + 2 * i))
    def lds_poll(off, val, name, sleep=1, dryskip=False):
        lab = a.newlabel("Lp" + name); done = a.newlabel("Ld" + name)
        if dryskip:
            a("s_cbranch_execz %s" % done)
        a("s_mov_b32 s62, %d" % SPIN_LDS)
        a("v_mov_b32 v%d, %d" % (H0, L_FLAG + off))
        a.label(lab)
        a("ds_read_b32 v%d, v%d" % (H1, H0))
        a("s_waitcnt lgkmcnt(0)")
        a("v_readfirstlane_b32 s63, v%d" % H1)
        a("s_sub_u32 s62, s62, 1")
        a("s_cbranch_scc1 %s" % done)
        a("s_cmp_ge_u32 s63, %d" % val)
        a("s_cbranch_scc1 %s" % done)
        a("s_sleep %d" % sleep)
        a("s_branch %s" % lab)
        a.label(done)
    def lds_signal(off, val=1):
        a("v_mov_b32 v%d, %d" % (H0, L_FLAG + off))
        a("v_mov_b32 v%d, %d" % (H1, val))
        a("s_and_b32 exec_lo, s90, 1")
        a("s_mov_b32 exec_hi, 0")
        a("ds_add_u32 v%d, v%d" % (H0, H1))
        a("s_mov_b64 exec, s[90:91]")
    def pubflag():
        lab = a.newlabel("Lpf")
        a("s_waitcnt vmcnt(0)")
        a("v_mov_b32 v%d, %d" % (H0, L_FLAG + F_JOIN))
        a("v_mov_b32 v%d, 1" % H1)
        a("s_mov_b64 exec, 1")
        a("ds_add_rtn_u32 v%d, v%d, v%d" % (H1, H0, H1))
        a("s_waitcnt lgkmcnt(0)")
        a("v_readfirstlane_b32 s58, v%d" % H1)
        a("s_cmp_eq_u32 s58, 2")
        a("s_cbranch_scc0 %s" % lab)
        a("s_getreg_b32 s58, hwreg(HW_REG_XCC_ID)")
        a("s_and_b32 s58, s58, 7")
        a("s_or_b32 s58, s58, 0xc0")
        a("v_mov_b32 v%d, s58" % H1)
        a("s_add_u32 s58, s59, s21")
        a("buffer_store_byte v%d, off, s[44:47], s58 sc1" % H1)
        a.label(lab)
        a("s_mov_b64 exec, -1")
    def kbase(vdst, sks):
        a("s_add_u32 s93, %s, s92" % sks)
        a("s_and_b32 s93, s93, 7")
        a("s_mul_i32 s93, s93, 24576")
        a("s_cmp_ge_u32 %s, 8" % sks)
        a("s_cselect_b32 s93, 0x1000000, s93")
        a("v_add_u32 v%d, s93, v5" % vdst)

    stamp(0)
    a("s_cmp_ge_u32 s2, 256")
    a("s_cbranch_scc1 L_end")
    a("s_load_dwordx16 s[4:19], s[0:1], 0")
    a("v_lshrrev_b32 v1, 6, v0")
    a("v_and_b32 v0, 63, v0")
    a("v_readfirstlane_b32 s3, v1")
    if o["xmap"] == "xcd":
        a("s_lshr_b32 s20, s2, 6")
        a("s_lshl_b32 s20, s20, 3")
        a("s_and_b32 s21, s2, 7")
        a("s_add_u32 s20, s20, s21")
        a("s_lshr_b32 s21, s2, 3")
        a("s_and_b32 s21, s21, 7")
    else:
        a("s_lshr_b32 s20, s2, 3")
        a("s_and_b32 s21, s2, 7")
    a("s_and_b32 s22, s21, 1")
    a("s_lshr_b32 s23, s21, 1")
    a("v_and_b32 v3, 7, v0")
    a("v_lshrrev_b32 v4, 3, v0")
    a("v_mul_u32_u24 v1, 3072, v4")
    a("v_lshl_add_u32 v1, v3, 4, v1")
    a("s_lshl_b32 s52, s3, 7")
    a("v_add_u32 v5, s52, v1")
    if o["rot"]:
        a("s_lshr_b32 s92, s2, 3")
        a("s_add_u32 s92, s92, s2")
        a("s_and_b32 s92, s92, 7")
    else:
        a("s_mov_b32 s92, 0")
    a("s_mul_i32 s93, s92, 24576")
    a("v_add_u32 v6, s93, v5")
    a("s_add_u32 s93, s92, 1")
    a("s_and_b32 s93, s93, 7")
    a("s_mul_i32 s93, s93, 24576")
    a("v_add_u32 v7, s93, v5")
    a("s_mul_i32 s58, s20, 786432")
    a("s_mul_i32 s59, s23, 196608")
    a("s_add_u32 s59, s59, s58")
    a("s_mov_b32 s26, 196608")
    a("s_mov_b32 s27, 0x20000")
    a("s_mov_b64 s[90:91], -1")
    a("s_cmp_eq_u32 s22, 0")
    a("s_waitcnt lgkmcnt(0)")
    a("s_cselect_b32 s24, s6, s8")
    a("s_cselect_b32 s25, s7, s9")
    a("s_cselect_b32 s28, s10, s12")
    a("s_cselect_b32 s29, s11, s13")
    a("s_add_u32 s24, s24, s59")
    a("s_addc_u32 s25, s25, 0")
    a("s_cmp_ge_u32 s3, %d" % NKV)
    a("s_cbranch_scc1 L_notkv0")
    def xload(slot, vb, j):
        r = RING + 4 * slot
        a("buffer_load_dwordx4 v[%d:%d], v%d, s[24:27], 0 offen offset:%d %s" % (r, r + 3, vb, j * 384, ld))
    for n in range(D):
        xload(n, 6 + n // 8, n % 8)
    a.label("L_notkv0")
    a("s_mov_b32 s30, 32768")
    a("s_mov_b32 s31, 0x20000")
    a("s_mul_i32 s59, s21, 98304")
    a("s_add_u32 s58, s58, s59")
    a("s_add_u32 s32, s4, s58")
    a("s_addc_u32 s33, s5, 0")
    a("s_mov_b32 s34, 98304")
    a("s_mov_b32 s35, 0x20000")
    a("s_add_u32 s36, s14, s58")
    a("s_addc_u32 s37, s15, 0")
    a("s_mov_b32 s38, 98304")
    a("s_mov_b32 s39, 0x20000")
    a("s_mul_i32 s58, s20, 49152")
    a("s_add_u32 s40, s18, s58")
    a("s_addc_u32 s41, s19, 0")
    a("s_mov_b32 s42, 49152")
    a("s_mov_b32 s43, 0x20000")
    a("s_mov_b32 s44, s16")
    a("s_mov_b32 s45, s17")
    a("s_mov_b32 s46, 256")
    a("s_mov_b32 s47, 0x20000")
    a("s_mov_b32 s48, 0x05040100")
    a("s_mov_b32 s49, 0x07060302")
    a("s_mov_b32 s50, 0x3d93cd3a")
    a("s_mov_b32 s51, 0x3fb8aa3b")
    a("s_lshl_b32 s53, s22, 2")
    a("s_add_u32 s53, s53, s23")
    a("s_mul_i32 s53, s53, 6144")
    a("s_cmp_lg_u32 s3, %d" % (NW - 1))
    a("s_cbranch_scc1 L_noinit")
    a("v_lshlrev_b32 v110, 2, v0")
    a("v_add_u32 v110, %d, v110" % L_FLAG)
    a("v_mov_b32 v111, 0")
    a("s_mov_b64 exec, 0xffff")
    a("ds_write_b32 v110, v111")
    a("s_mov_b64 exec, -1")
    a("s_waitcnt lgkmcnt(0)")
    a.label("L_noinit")
    a("s_cmp_ge_u32 s3, %d" % NKV)
    a("s_cbranch_scc1 L_qwave")

    for r in range(ACC, ACC + 32):
        a("v_mov_b32 v%d, 0" % r)
    a("v_lshlrev_b32 v11, 4, v0")
    a("v_add_u32 v11, %d, v11" % L_E)
    a("s_mov_b32 s54, 0")
    if o["prio"]:
        a("s_setprio 2")
    a("s_barrier")
    a.label("L_kvloop")
    q0 = D // 8
    qs = sorted(set((2 * i + D) // 8 for i in range(8)) | set((2 * i + 1 + D) // 8 for i in range(8)))
    a("s_lshl_b32 s55, s54, 1")
    for k, q in enumerate(qs):
        a("s_add_u32 s56, s55, %d" % q)
        kbase(6 + k, "s56")
    for i in range(8):
        a("s_waitcnt vmcnt(%d)" % (D - 2))
        for u in range(2):
            n = 2 * i + u + D
            xload(n % 16, 6 + qs.index(n // 8), n % 8)
        if i == trigp % 8:
            lab = a.newlabel("Lnt")
            a("s_cmp_lg_u32 s54, %d" % (trigp // 8))
            a("s_cbranch_scc1 %s" % lab)
            lds_signal(F_TRIG)
            a.label(lab)
        jj = i % 4
        if jj == 2:
            h = i // 4
            if h == 0:
                lab = a.newlabel("Lne")
                a("s_cmp_lg_u32 s54, 0")
                a("s_cbranch_scc1 %s" % lab)
                lds_poll(F_E, 1, "E")
                a.label(lab)
            a("s_add_u32 s93, s55, s92")
            if h:
                a("s_add_u32 s93, s93, 1")
            a("s_and_b32 s93, s93, 7")
            a("s_lshl_b32 s93, s93, 10")
            a("v_add_u32 v10, s93, v11")
            a("ds_read_b128 v[%d:%d], v10" % (AOP + 4 * h, AOP + 4 * h + 3))
        r0 = RING + 8 * i; r1 = r0 + 4
        for m in range(4):
            a("v_perm_b32 v%d, v%d, v%d, s48" % (BR + 4 * (2 * m) + jj, r1 + m, r0 + m))
            a("v_perm_b32 v%d, v%d, v%d, s49" % (BR + 4 * (2 * m + 1) + jj, r1 + m, r0 + m))
        if jj == 3:
            h = i // 4
            a("s_waitcnt lgkmcnt(0)")
            a("s_nop 0")
            for e in range(8):
                a("v_mfma_f32_16x16x32_bf16 v[%d:%d], v[%d:%d], v[%d:%d], v[%d:%d]" % (ACC + 4 * e, ACC + 3 + 4 * e, AOP + 4 * h, AOP + 4 * h + 3, BR + 4 * e, BR + 3 + 4 * e, ACC + 4 * e, ACC + 3 + 4 * e))
    a("s_add_u32 s54, s54, 1")
    a("s_cmp_lt_u32 s54, 4")
    a("s_cbranch_scc1 L_kvloop")
    stamp(1)
    a.label("L_kvpost")
    a("s_and_b32 s52, s3, 3")
    a("v_lshrrev_b32 v9, 5, v0")
    a("v_lshlrev_b32 v9, 10, v9")
    a("v_bfe_u32 v8, v0, 4, 1")
    a("v_lshl_add_u32 v9, v8, 7, v9")
    a("v_and_b32 v8, 7, v0")
    a("v_lshl_add_u32 v9, v8, 4, v9")
    a("s_lshl_b32 s58, s52, 11")
    a("v_add_u32 v9, s58, v9")
    a("v_lshlrev_b32 v3, 4, v0")
    a("v_add_u32 v3, s58, v3")
    a("v_mov_b32 v%d, %d" % (H0, L_FLAG))
    a("ds_read_b32 v%d, v%d offset:%d" % (H1, H0, F_MODE))
    for e in range(4):
        for t in range(4):
            a("v_permlane32_swap_b32 v%d, v%d" % (ACC + 4 * e + t, ACC + 16 + 4 * e + t))
    for e in range(4):
        for t in range(4):
            x = ACC + 4 * e + t; y = ACC + 16 + 4 * e + t
            a("v_add_f32_dpp v%d, v%d, v%d row_ror:8 row_mask:0xf bank_mask:0xf" % (x, y, x))
    for e in range(4):
        for t in range(4):
            x = ACC + 4 * e + t
            a("v_min_u32 v%d, -2, v%d" % (x, x))
    a("s_waitcnt lgkmcnt(0)")
    a("v_readfirstlane_b32 s63, v%d" % H1)
    a("s_lshl_b32 s59, s20, 3")
    a("s_cbranch_execz L_pubdone")
    a("s_and_b32 exec_lo, s90, 0x00ff00ff")
    a("s_and_b32 exec_hi, s91, 0x00ff00ff")
    a("s_cmp_eq_u32 s63, 2")
    a("s_cbranch_scc1 L_pubfast")
    for e in range(4):
        a("buffer_store_dwordx4 v[%d:%d], v9, s[40:43], s53 offen offset:%d sc1" % (ACC + 4 * e, ACC + 3 + 4 * e, e * 256))
    a("s_mov_b64 exec, s[90:91]")
    a("s_branch L_slow")
    a.label("L_pubfast")
    for e in range(4):
        a("buffer_store_dwordx4 v[%d:%d], v9, s[40:43], s53 offen offset:%d %s" % (ACC + 4 * e, ACC + 3 + 4 * e, e * 256, o["cst"]))
    a("s_mov_b64 exec, s[90:91]")
    a.label("L_pubdone")
    stamp(2)
    C = RING
    a("s_and_b32 s57, s90, 0xff")
    a("s_mov_b32 s62, %d" % SPIN_GLB)
    def issue_pending(fl=None):
        fl = o["cld"] if fl is None else fl
        for p in range(8):
            lab = a.newlabel("Lc")
            a("s_bitcmp1_b32 s57, %d" % p)
            a("s_cbranch_scc0 %s" % lab)
            a("s_mov_b32 s58, %d" % (p * 6144))
            for i in range(2):
                r = C + 4 * (p * 2 + i)
                a("buffer_load_dwordx4 v[%d:%d], v3, s[40:43], s58 offen offset:%d %s" % (r, r + 3, i * 1024, fl))
            a.label(lab)
    def check_pending():
        for p in range(8):
            lab = a.newlabel("Lk")
            r = C + 8 * p
            a("s_bitcmp1_b32 s57, %d" % p)
            a("s_cbranch_scc0 %s" % lab)
            a("v_max3_u32 v8, v%d, v%d, v%d" % (r, r + 1, r + 2))
            a("v_max3_u32 v8, v8, v%d, v%d" % (r + 3, r + 4))
            a("v_max3_u32 v8, v8, v%d, v%d" % (r + 5, r + 6))
            a("v_max_u32 v8, v8, v%d" % (r + 7))
            a("v_cmp_eq_u32 vcc, -1, v8")
            a("s_cbranch_vccnz %s" % lab)
            a("s_bitset0_b32 s57, %d" % p)
            a.label(lab)
    if not o["pipe"]:
        if o["cld1"] is not None:
            issue_pending(o["cld1"])
            a("s_branch L_collect1")
        a.label("L_collect")
        issue_pending()
        a.label("L_collect1")
        a("s_waitcnt vmcnt(0)")
        if stamps:
            lab = a.newlabel("Lfa")
            a("s_cmp_eq_u32 s62, %d" % SPIN_GLB)
            a("s_cbranch_scc0 %s" % lab)
            stamp(7)
            a.label(lab)
        check_pending()
        a("s_cmp_eq_u32 s57, 0")
        a("s_cbranch_scc1 L_collected")
        a("s_sub_u32 s62, s62, 1")
        a("s_cbranch_scc1 L_collected")
        if o["psleep"]:
            a("s_sleep %d" % o["psleep"])
        a("s_branch L_collect")
    else:
        a.label("L_collect")
        issue_pending()
        a("s_cmp_eq_u32 s62, %d" % SPIN_GLB)
        a("s_cbranch_scc0 L_nowait")
        a("s_waitcnt vmcnt(0)")
        a("s_branch L_chk")
        a.label("L_nowait")
        a("s_sleep %d" % o["pipe"])
        a.label("L_chk")
        check_pending()
        a("s_cmp_eq_u32 s57, 0")
        a("s_cbranch_scc1 L_collected")
        a("s_sub_u32 s62, s62, 1")
        a("s_cbranch_scc0 L_collect")
    a.label("L_collected")
    stamp(3)
    S = BR
    for m in range(2):
        for i in range(2):
            for t in range(4):
                q = [C + 4 * (2 * (4 * m + k) + i) + t for k in range(4)]
                d = S + 8 * m + 4 * i + t
                a("v_add_f32 v%d, v%d, v%d" % (d, q[0], q[1]))
                a("v_add_f32 v%d, v%d, v%d" % (d + 16, q[2], q[3]))
                a("v_add_f32 v%d, v%d, v%d" % (d, d, d + 16))
    a("v_bfe_u32 v6, v0, 3, 1")
    a("v_and_b32 v7, 7, v0")
    a("v_lshrrev_b32 v8, 4, v0")
    a("v_mul_u32_u24 v9, %d, v6" % (4 * KP_STRIDE))
    a("v_lshl_add_u32 v9, v7, 4, v9")
    a("v_lshl_add_u32 v9, v8, 1, v9")
    a("s_lshl_b32 s58, s52, 7")
    a("s_add_u32 s58, s58, %d" % L_KP)
    a("v_add_u32 v9, s58, v9")
    a("v_lshl_add_u32 v10, v7, 3, v8")
    a("v_lshlrev_b32 v10, 4, v10")
    a("v_lshl_add_u32 v10, v6, 3, v10")
    a("s_lshl_b32 s58, s52, 10")
    a("s_add_u32 s58, s58, %d" % L_VP)
    a("v_add_u32 v10, s58, v10")
    P = ACC + 16
    for i in range(2):
        b = S + 4 * i
        a("v_cvt_pk_bf16_f32 v%d, v%d, v%d" % (P + 2 * i, b, b + 1))
        a("v_cvt_pk_bf16_f32 v%d, v%d, v%d" % (P + 1 + 2 * i, b + 2, b + 3))
        b = S + 8 + 4 * i
        a("v_cvt_pk_bf16_f32 v%d, v%d, v%d" % (P + 4 + 2 * i, b, b + 1))
        a("v_cvt_pk_bf16_f32 v%d, v%d, v%d" % (P + 5 + 2 * i, b + 2, b + 3))
    for i in range(2):
        a("ds_write_b16 v9, v%d offset:%d" % (P + 2 * i, 0 * KP_STRIDE + 8 * i))
        a("ds_write_b16_d16_hi v9, v%d offset:%d" % (P + 2 * i, 1 * KP_STRIDE + 8 * i))
        a("ds_write_b16 v9, v%d offset:%d" % (P + 1 + 2 * i, 2 * KP_STRIDE + 8 * i))
        a("ds_write_b16_d16_hi v9, v%d offset:%d" % (P + 1 + 2 * i, 3 * KP_STRIDE + 8 * i))
        a("ds_write_b64 v10, v[%d:%d] offset:%d" % (P + 4 + 2 * i, P + 5 + 2 * i, 64 * i))
    a("s_waitcnt lgkmcnt(0)")
    lds_signal(F_READY)
    stamp(4)
    if dry:
        a("s_cbranch_execz L_dryret1")
    a("s_cmp_eq_u32 s63, 2")
    a("s_cbranch_scc0 L_kvend")
    pubflag()
    a.label("L_kvend")
    if stamps:
        a("s_waitcnt lgkmcnt(0)")
        a("s_mov_b32 s74, s78")
        a("s_sub_u32 s79, %d, s62" % SPIN_GLB)
    a("s_branch L_fin")
    a.label("L_slow")
    pubflag()
    a("s_mov_b32 s62, %d" % SPIN_GLB)
    a("s_mov_b64 exec, 1")
    a.label("L_slowpoll")
    a("v_mov_b32 v6, 0")
    a("v_mov_b32 v7, 0")
    a("buffer_atomic_or_x2 v[6:7], off, s[44:47], s59 sc0 sc1")
    a("s_waitcnt vmcnt(0)")
    a("v_and_b32 v6, v6, v7")
    a("v_and_b32 v6, 0x40404040, v6")
    a("s_nop 0")
    a("v_readfirstlane_b32 s58, v6")
    a("s_cmp_eq_u32 s58, 0x40404040")
    a("s_cbranch_scc1 L_slowgo")
    a("s_sub_u32 s62, s62, 1")
    a("s_cbranch_scc1 L_slowgo")
    a("s_sleep 32")
    a("s_branch L_slowpoll")
    a.label("L_slowgo")
    a("s_mov_b64 exec, -1")
    for p in range(8):
        a("s_mov_b32 s58, %d" % (p * 6144))
        for i in range(2):
            r = C + 4 * (p * 2 + i)
            a("buffer_load_dwordx4 v[%d:%d], v3, s[40:43], s58 offen offset:%d sc1" % (r, r + 3, i * 1024))
    a("s_waitcnt vmcnt(0)")
    a("s_branch L_collected")

    a.label("L_qwave")
    a("s_barrier")
    for n in range(6):
        a("v_add_u32 v110, %d, v0" % (64 * n))
        a("v_mul_u32_u24 v111, 2731, v110")
        a("v_lshrrev_b32 v111, 17, v111")
        a("v_and_b32 v111, 7, v111")
        a("v_lshlrev_b32 v111, 4, v111")
        a("v_lshlrev_b32 v110, 4, v110")
        a("v_xor_b32 v%d, v110, v111" % (140 + n))
    a("s_sub_u32 s55, s3, %d" % NKV)
    a("s_mul_i32 s56, s55, 12288")
    a("s_cmp_eq_u32 s3, %d" % (NKV + 0))
    a("s_cbranch_scc1 L_aux")
    a("s_cmp_eq_u32 s3, %d" % (NKV + 1))
    a("s_cbranch_scc1 L_estage")
    if o["touch"]:
        lab = a.newlabel("Lnt")
        a("s_cmp_eq_u32 s3, %d" % (NKV + 4))
        a("s_cbranch_scc0 %s" % lab)
        a("v_mul_u32_u24 v12, 98300, v0")
        a("s_mov_b64 exec, 3")
        a("buffer_load_dword v13, v12, s[32:35], 0 offen")
        a("buffer_load_dword v14, v12, s[36:39], 0 offen")
        a("s_mov_b64 exec, -1")
        a("s_waitcnt vmcnt(0)")
        a.label(lab)
    if dry:
        a("s_cmp_eq_u32 s3, %d" % (NKV + 2))
        a("s_cbranch_scc1 L_dry1")
        a("s_cmp_eq_u32 s3, %d" % (NKV + 3))
        a("s_cbranch_scc1 L_dry2")
    a("s_branch L_qmain")
    if dry:
        a.label("L_dry1")
        a("s_mov_b64 s[90:91], 0")
        a("s_mov_b64 exec, 0")
        a("s_branch L_kvpost")
        a.label("L_dryret1")
        a("s_mov_b64 s[90:91], -1")
        a("s_mov_b64 exec, -1")
        a("s_branch L_qmain")
        a.label("L_dry2")
        a("s_mov_b64 s[90:91], 0")
        a("s_mov_b64 exec, 0")
        a("s_branch L_phase2")
        a.label("L_dryret2")
        a("s_mov_b64 s[90:91], -1")
        a("s_mov_b64 exec, -1")
        a("s_branch L_qmain")

    a.label("L_estage")
    a("v_and_b32 v3, 7, v0")
    a("v_lshrrev_b32 v4, 3, v0")
    a("v_lshlrev_b32 v2, 12, v3")
    a("v_lshl_add_u32 v2, v4, 4, v2")
    a("s_lshl_b32 s58, s23, 10")
    for k in range(8):
        a("s_mov_b32 m0, %d" % (L_E + k * 1024))
        a("s_nop 0")
        a("buffer_load_dwordx4 v2, s[28:31], s58 offen lds")
        if k < 7:
            a("s_add_u32 s58, s58, 128")
    a("s_waitcnt vmcnt(0)")
    lds_signal(F_E)
    a("s_branch L_qmain")

    a.label("L_aux")
    a("v_lshlrev_b32 v1, 4, v0")
    for r in range(12, 16):
        a("v_mov_b32 v%d, -1" % r)
    a("s_mov_b32 s58, s53")
    for n in range(6):
        if n == 4:
            a("s_add_u32 s58, s58, 4096")
        a("buffer_store_dwordx4 v[12:15], v1, s[40:43], s58 offen offset:%d" % ((n % 4) * 1024))
    a("s_getreg_b32 s57, hwreg(HW_REG_XCC_ID)")
    a("s_and_b32 s57, s57, 7")
    a("s_or_b32 s57, s57, 0x80")
    a("v_mov_b32 v2, s57")
    a("s_lshl_b32 s59, s20, 3")
    a("s_add_u32 s58, s59, s21")
    a("s_mul_i32 s57, s57, 0x01010101")
    a("s_waitcnt vmcnt(0)")
    a("s_mov_b64 exec, 1")
    a("buffer_store_byte v2, off, s[44:47], s58")
    a("s_mov_b32 s62, %d" % o["auxpolls"])
    a.label("L_auxpoll")
    a("s_sleep %d" % o["auxsleep"])
    a("buffer_load_dwordx2 v[4:5], off, s[44:47], s59 sc1")
    a("s_waitcnt vmcnt(0)")
    a("v_readfirstlane_b32 s60, v4")
    a("v_readfirstlane_b32 s61, v5")
    a("s_and_b32 s60, s60, 0xbfbfbfbf")
    a("s_and_b32 s61, s61, 0xbfbfbfbf")
    a("s_cmp_eq_u32 s60, s57")
    a("s_cselect_b32 s60, s61, 0")
    a("s_cmp_eq_u32 s60, s57")
    a("s_cbranch_scc1 L_auxfast")
    a("s_sub_u32 s62, s62, 1")
    a("s_cbranch_scc0 L_auxpoll")
    a("s_branch L_auxdone")
    a.label("L_auxfast")
    if fast:
        a("s_mov_b64 exec, -1")
        lds_signal(F_MODE, 2)
    a.label("L_auxdone")
    a("s_mov_b64 exec, -1")
    stamp(3)

    a.label("L_qmain")
    lds_poll(F_TRIG, 1, "T", sleep=o["tsleep"])
    stamp(1)
    def q_dma(k):
        t, n = divmod(k, 6)
        a("s_add_u32 m0, s56, %d" % (L_Q + t * 6144 + n * 1024))
        if t == 1 and n == 0:
            a("s_add_u32 s57, s56, 6144")
        else:
            a("s_nop 0")
        a("buffer_load_dwordx4 v%d, s[32:35], %s offen %s lds" % (140 + n, "s56" if t == 0 else "s57", ld))
    for k in range(12):
        if k >= qdepth:
            a("s_waitcnt vmcnt(%d)" % (qdepth - 1))
        q_dma(k)
    stamp(2)

    a.label("L_phase2")
    a("v_and_b32 v138, 15, v0")
    a("v_lshrrev_b32 v139, 4, v0")
    a("v_lshrrev_b32 v132, 1, v138")
    a("v_xor_b32 v132, v132, v139")
    a("v_lshlrev_b32 v132, 4, v132")
    a("v_mul_u32_u24 v133, 384, v138")
    a("v_add_u32 v132, v132, v133")
    a("v_add_u32 v132, s56, v132")
    a("v_xor_b32 v133, 64, v132")
    a("v_and_b32 v134, 7, v0")
    a("v_mul_u32_u24 v134, %d, v134" % KP_STRIDE)
    a("v_lshl_add_u32 v134, v139, 4, v134")
    a("v_add_u32 v134, %d, v134" % L_KP)
    a("v_lshrrev_b32 v146, 2, v138")
    a("v_and_b32 v147, 3, v138")
    a("v_lshl_add_u32 v135, v146, 3, v147")
    a("v_lshlrev_b32 v135, 4, v135")
    a("v_and_b32 v147, 1, v139")
    a("v_lshl_add_u32 v135, v147, 3, v135")
    a("v_add_u32 v135, %d, v135" % L_VP)
    a("v_lshlrev_b32 v136, 4, v0")
    a("v_cmp_gt_u32 vcc, 32, v0")
    a("v_mov_b32 v137, 0")
    a("s_nop 0")
    a("v_cndmask_b32_e64 v137, v137, 1.0, vcc")
    a("s_waitcnt vmcnt(6)")
    for m in range(6):
        a("ds_read_b128 v[%d:%d], v%d offset:%d" % (52 + 4 * m, 55 + 4 * m, 132 + (m & 1), (m >> 1) * 128))
    lds_poll(F_READY, 3, "R", dryskip=True)
    stamp(4)
    for m in range(6):
        a("ds_read_b128 v[%d:%d], v134 offset:%d" % (4 + 4 * m, 7 + 4 * m, m * 64))
    for T in range(12):
        U, b = divmod(T, 2)
        a("ds_read_b64 v[%d:%d], v135 offset:%d" % (28 + 2 * T, 29 + 2 * T, (32 * U + 4 * b) * 16))
    a("s_mov_b32 s55, 0")
    a("s_waitcnt lgkmcnt(12)")
    a("s_branch L_tile1")
    a.label("L_tile")
    a("s_waitcnt vmcnt(6)")
    for m in range(6):
        a("ds_read_b128 v[%d:%d], v%d offset:%d" % (52 + 4 * m, 55 + 4 * m, 132 + (m & 1), (m >> 1) * 128))
    a("s_waitcnt lgkmcnt(0)")
    a.label("L_tile1")
    for m in range(6):
        a("v_mfma_f32_16x16x32_bf16 v[76:79], v[%d:%d], v[%d:%d], %s" % (4 + 4 * m, 7 + 4 * m, 52 + 4 * m, 55 + 4 * m, "0" if m == 0 else "v[76:79]"))
    a("s_add_u32 s58, s56, 4096")
    a("s_nop 6")
    Z = 76
    def rnd():
        a("v_cvt_pk_bf16_f32 v80, v76, v77")
        a("v_cvt_pk_bf16_f32 v81, v78, v79")
        a("v_lshlrev_b32 v76, 16, v80")
        a("v_and_b32 v77, 0xffff0000, v80")
        a("v_lshlrev_b32 v78, 16, v81")
        a("v_and_b32 v79, 0xffff0000, v81")
    if o["round_emul"]:
        rnd()
    for t in range(4):
        a("v_mul_f32 v%d, s50, v%d" % (Z + t, Z + t))
    if o["round_emul"]:
        rnd()
    a("v_max3_f32 v82, v76, v77, v78")
    a("v_max_f32 v82, v82, v79")
    a("v_mov_b32 v83, v82")
    a("s_nop 1")
    a("v_permlane16_swap_b32 v82, v83")
    a("s_nop 1")
    a("v_max_f32 v82, v82, v83")
    a("v_mul_f32 v82, s51, v82")
    for t in range(4):
        a("v_fma_f32 v%d, v%d, s51, -v82" % (Z + t, Z + t))
    for t in range(4):
        a("v_exp_f32 v%d, v%d" % (Z + t, Z + t))
    a("s_nop 0")
    a("v_add_f32 v82, v76, v77")
    a("v_add_f32 v83, v78, v79")
    a("v_add_f32 v82, v82, v83")
    a("v_mov_b32 v83, v82")
    a("s_nop 1")
    a("v_permlane16_swap_b32 v82, v83")
    a("s_nop 1")
    a("v_add_f32 v82, v82, v83")
    a("v_rcp_f32 v82, v82")
    a("s_nop 0")
    a("v_mul_f32 v82, v82, v137")
    for t in range(4):
        a("v_mul_f32 v%d, v%d, v82" % (Z + t, Z + t))
    a("v_cvt_pk_bf16_f32 v80, v76, v77")
    a("v_cvt_pk_bf16_f32 v81, v78, v79")
    a("s_waitcnt lgkmcnt(0)")
    a("s_nop 0")
    DD = 52
    for T in range(12):
        a("v_mfma_f32_16x16x16_bf16 v[%d:%d], v[%d:%d], v[80:81], 0" % (84 + 4 * T, 87 + 4 * T, 28 + 2 * T, 29 + 2 * T))
    def dreg(T):
        return 84 + 4 * T
    for U in range(6):
        pk = dreg(2 * U)
        if U == 0:
            a("s_nop 1")
        da, db = dreg(2 * U), dreg(2 * U + 1)
        a("v_cvt_pk_bf16_f32 v%d, v%d, v%d" % (pk, da, da + 1))
        a("v_cvt_pk_bf16_f32 v%d, v%d, v%d" % (pk + 1, da + 2, da + 3))
        a("v_cvt_pk_bf16_f32 v%d, v%d, v%d" % (pk + 2, db, db + 1))
        a("v_cvt_pk_bf16_f32 v%d, v%d, v%d" % (pk + 3, db + 2, db + 3))
        a("ds_write_b128 v%d, v[%d:%d] offset:%d" % (132 + (U & 1), pk, pk + 3, (U >> 1) * 128))
    a("s_waitcnt lgkmcnt(0)")
    for n in range(6):
        a("v_add_u32 v%d, s56, v%d" % (84 + n, 140 + n))
    for n in range(6):
        a("ds_read_b128 v[%d:%d], v%d" % (52 + 4 * n, 55 + 4 * n, 84 + n))
    for n in range(6):
        a("s_waitcnt lgkmcnt(%d)" % (5 - n))
        so, imm = ("s56", n * 1024) if n < 4 else ("s58", (n - 4) * 1024)
        lab = a.newlabel("Lst")
        if dry:
            a("s_cbranch_execz %s" % lab)
        a("buffer_store_dwordx4 v[%d:%d], v136, s[36:39], %s offen offset:%d %s" % (52 + 4 * n, 55 + 4 * n, so, imm, st))
        if dry:
            a.label(lab)
    if dry:
        a("s_cbranch_execz L_dryret2")
    a("s_add_u32 s56, s56, 6144")
    a("v_add_u32 v132, 6144, v132")
    a("v_add_u32 v133, 6144, v133")
    a("s_add_u32 s55, s55, 1")
    a("s_cmp_lt_u32 s55, 2")
    a("s_cbranch_scc1 L_tile")
    stamp(5)
    a.label("L_fin")
    if stamps:
        a("s_waitcnt vmcnt(0)")
        stamp(6)
        a("s_getreg_b32 s78, hwreg(HW_REG_XCC_ID)")
        a("s_cmp_lt_u32 s3, %d" % NKV)
        a("s_cselect_b32 s79, s79, 0")
        a("s_lshl_b32 s79, s79, 8")
        a("s_or_b32 s78, s78, s79")
        a("s_waitcnt lgkmcnt(0)")
        a("s_lshl_b32 s58, s2, 9")
        a("s_lshl_b32 s59, s3, 5")
        a("s_add_u32 s58, s58, s59")
        a("s_add_u32 s58, s58, %d" % STAMP_OFF)
        a("s_mov_b32 s40, s18"); a("s_mov_b32 s41, s19"); a("s_mov_b32 s42, 0x1000000"); a("s_mov_b32 s43, 0x20000")
        for i in range(7):
            a("v_mov_b32 v%d, s%d" % (4 + i, 64 + 2 * i))
        a("v_mov_b32 v11, s78")
        a("s_mov_b64 exec, 1")
        a("buffer_store_dwordx4 v[4:7], off, s[40:43], s58")
        a("buffer_store_dwordx4 v[8:11], off, s[40:43], s58 offset:16")
    a.label("L_end")
    a("s_endpgm")
    return wrap(["; @launch grid=(256,1,1) block=(%d,1,1) lds=%d" % (NW * 64, LDS_BYTES)], [(KN, a.text(), NVGPR, 96)])

def parse_kv(args):
    kw = {}
    for x in args:
        k, v = x.split("=", 1)
        if v in ("True", "False", "None"):
            v = eval(v)
        else:
            try: v = int(v)
            except ValueError: pass
        kw[k] = v
    return kw

if __name__ == "__main__":
    out = sys.argv[1]
    open(out, "w").write(gen(**parse_kv(sys.argv[2:])))
```

```python
import sys
from asmlib import *

L_Q = 0
L_E = 98304
L_KP = L_E + 8192
KP_STRIDE = 400
L_VP = L_KP + 8 * KP_STRIDE
L_FLAG = L_VP + 3072
LDS_BYTES = L_FLAG + 64
F_TRIG, F_READY, F_MODE, F_FIN, F_STAMP, F_E, F_JOIN, F_QISS = 0, 4, 8, 12, 16, 48, 52, 56
STAMP_OFF = 8 << 20
SPIN_LDS = 1 << 22
SPIN_GLB = 1 << 16
NKV = 3
NQ = 8
NW = NKV + NQ
RING = 12
BR = 76
ACC = 108
AOP = 140
H0, H1 = 148, 149
NVGPR = 152

DEF = dict(ld="nt", st="nt", stamps=None, qdepth=3, depth=8, trigp=None, fast=True, dry=False, xmap="xcd",
           round_emul=True, prio=True, rot=True, tsleep=1, auxsleep=32, auxpolls=3, psleep=0, pipe=0, kvonly=False, cld="nt", cst="", touch=False, cld1=None, dbgmode=0, ramp=True, rampoff=0, cdelay=0, early=True, qiss=True, noclear=False, idle=0, stampE=False, eself=False)

def gen(**kw):
    o = dict(DEF); o.update(kw)
    globals().update({"_o": o})
    ld, st, stamps, qdepth, D = o["ld"], o["st"], o["stamps"], o["qdepth"], o["depth"]
    dry, fast = o["dry"], o["fast"]
    assert D % 2 == 0 and 8 <= D <= 14
    trigp = o["trigp"] if o["trigp"] is not None else (62 - D) // 2 + 1
    a = Asm()
    def stamp(i):
        if stamps:
            a("s_memrealtime s[%d:%d]" % (64 + 2 * i, 65 + 2 * i))
    def lds_poll(off, val, name, sleep=1, dryskip=False):
        lab = a.newlabel("Lp" + name); done = a.newlabel("Ld" + name)
        if dryskip:
            a("s_cbranch_execz %s" % done)
        a("s_mov_b32 s62, %d" % SPIN_LDS)
        a("v_mov_b32 v%d, %d" % (H0, L_FLAG + off))
        a.label(lab)
        a("ds_read_b32 v%d, v%d" % (H1, H0))
        a("s_waitcnt lgkmcnt(0)")
        a("v_readfirstlane_b32 s63, v%d" % H1)
        a("s_sub_u32 s62, s62, 1")
        a("s_cbranch_scc1 %s" % done)
        a("s_cmp_ge_u32 s63, %s" % val)
        a("s_cbranch_scc1 %s" % done)
        a("s_sleep %d" % sleep)
        a("s_branch %s" % lab)
        a.label(done)
    def lds_signal(off, val=1):
        a("v_mov_b32 v%d, %d" % (H0, L_FLAG + off))
        a("v_mov_b32 v%d, %d" % (H1, val))
        a("s_and_b32 exec_lo, s90, 1")
        a("s_mov_b32 exec_hi, 0")
        a("ds_add_u32 v%d, v%d" % (H0, H1))
        a("s_mov_b64 exec, s[90:91]")
    def pubflag():
        lab = a.newlabel("Lpf")
        a("s_waitcnt vmcnt(0)")
        a("v_mov_b32 v%d, %d" % (H0, L_FLAG + F_JOIN))
        a("v_mov_b32 v%d, 1" % H1)
        a("s_mov_b64 exec, 1")
        a("ds_add_rtn_u32 v%d, v%d, v%d" % (H1, H0, H1))
        a("s_waitcnt lgkmcnt(0)")
        a("v_readfirstlane_b32 s58, v%d" % H1)
        a("s_cmp_eq_u32 s58, 2")
        a("s_cbranch_scc0 %s" % lab)
        a("s_getreg_b32 s58, hwreg(HW_REG_XCC_ID)")
        a("s_and_b32 s58, s58, 7")
        a("s_or_b32 s58, s58, 0xc0")
        a("v_mov_b32 v%d, s58" % H1)
        a("s_add_u32 s58, s59, s21")
        a("buffer_store_byte v%d, off, s[44:47], s58 sc1" % H1)
        a.label(lab)
        a("s_mov_b64 exec, -1")
    def kbase(vdst, sks):
        a("s_add_u32 s93, %s, s92" % sks)
        a("s_and_b32 s93, s93, 7")
        a("s_mul_i32 s93, s93, 24576")
        a("s_cmp_ge_u32 %s, 8" % sks)
        a("s_cselect_b32 s93, 0x1000000, s93")
        a("v_add_u32 v%d, s93, v5" % vdst)

    stamp(0)
    a("s_cmp_ge_u32 s2, 256")
    a("s_cbranch_scc1 L_end")
    a("s_load_dwordx16 s[4:19], s[0:1], 0")
    a("v_lshrrev_b32 v1, 6, v0")
    a("v_and_b32 v0, 63, v0")
    a("v_readfirstlane_b32 s3, v1")
    if o["xmap"] == "xcd":
        a("s_lshr_b32 s20, s2, 6")
        a("s_lshl_b32 s20, s20, 3")
        a("s_and_b32 s21, s2, 7")
        a("s_add_u32 s20, s20, s21")
        a("s_lshr_b32 s21, s2, 3")
        a("s_and_b32 s21, s21, 7")
    else:
        a("s_lshr_b32 s20, s2, 3")
        a("s_and_b32 s21, s2, 7")
    a("s_and_b32 s22, s21, 1")
    a("s_lshr_b32 s23, s21, 1")
    a("v_and_b32 v3, 7, v0")
    a("v_lshrrev_b32 v4, 3, v0")
    a("v_mul_u32_u24 v1, 3072, v4")
    a("v_lshl_add_u32 v1, v3, 4, v1")
    a("s_lshl_b32 s52, s3, 7")
    a("v_add_u32 v5, s52, v1")
    if o["rot"]:
        a("s_lshr_b32 s92, s2, 3")
        a("s_add_u32 s92, s92, s2")
        a("s_and_b32 s92, s92, 7")
    else:
        a("s_mov_b32 s92, 0")
    a("s_mul_i32 s93, s92, 24576")
    a("v_add_u32 v6, s93, v5")
    a("s_add_u32 s93, s92, 1")
    a("s_and_b32 s93, s93, 7")
    a("s_mul_i32 s93, s93, 24576")
    a("v_add_u32 v7, s93, v5")
    a("s_mul_i32 s58, s20, 786432")
    a("s_mul_i32 s59, s23, 196608")
    a("s_add_u32 s59, s59, s58")
    a("s_mov_b32 s26, 196608")
    a("s_mov_b32 s27, 0x20000")
    a("s_mov_b64 s[90:91], -1")
    a("s_cmp_eq_u32 s22, 0")
    a("s_waitcnt lgkmcnt(0)")
    a("s_cselect_b32 s24, s6, s8")
    a("s_cselect_b32 s25, s7, s9")
    a("s_cselect_b32 s28, s10, s12")
    a("s_cselect_b32 s29, s11, s13")
    a("s_add_u32 s24, s24, s59")
    a("s_addc_u32 s25, s25, 0")
    a("s_cmp_ge_u32 s3, %d" % NKV)
    a("s_cbranch_scc1 L_notkv0")
    if o["eself"]:
        a("s_mov_b32 s30, 32768")
        a("s_mov_b32 s31, 0x20000")
        a("v_lshlrev_b32 v2, 12, v3")
        a("v_lshl_add_u32 v2, v4, 4, v2")
        a("s_lshl_b32 s58, s23, 10")
        for k in range(8):
            a("s_mov_b32 m0, %d" % (L_E + k * 1024))
            a("s_nop 0")
            a("buffer_load_dwordx4 v2, s[28:31], s58 offen lds")
            if k < 7:
                a("s_add_u32 s58, s58, 128")
        a("s_mul_i32 s58, s20, 786432")
    def xload(slot, vb, j):
        r = RING + 4 * slot
        a("buffer_load_dwordx4 v[%d:%d], v%d, s[24:27], 0 offen offset:%d %s" % (r, r + 3, vb, j * 384, ld))
    for n in range(D):
        xload(n, 6 + n // 8, n % 8)
    a.label("L_notkv0")
    a("s_mov_b32 s30, 32768")
    a("s_mov_b32 s31, 0x20000")
    a("s_mul_i32 s59, s21, 98304")
    a("s_add_u32 s58, s58, s59")
    a("s_add_u32 s32, s4, s58")
    a("s_addc_u32 s33, s5, 0")
    a("s_mov_b32 s34, 98304")
    a("s_mov_b32 s35, 0x20000")
    a("s_add_u32 s36, s14, s58")
    a("s_addc_u32 s37, s15, 0")
    a("s_mov_b32 s38, 98304")
    a("s_mov_b32 s39, 0x20000")
    a("s_mul_i32 s58, s20, 49152")
    a("s_add_u32 s40, s18, s58")
    a("s_addc_u32 s41, s19, 0")
    a("s_mov_b32 s42, 49152")
    a("s_mov_b32 s43, 0x20000")
    a("s_mov_b32 s44, s16")
    a("s_mov_b32 s45, s17")
    a("s_mov_b32 s46, 256")
    a("s_mov_b32 s47, 0x20000")
    a("s_mov_b32 s48, 0x05040100")
    a("s_mov_b32 s49, 0x07060302")
    a("s_mov_b32 s50, 0x3d93cd3a")
    a("s_mov_b32 s51, 0x3fb8aa3b")
    a("s_lshl_b32 s53, s22, 2")
    a("s_add_u32 s53, s53, s23")
    a("s_mul_i32 s53, s53, 6144")
    a("s_cmp_lg_u32 s3, %d" % (NW - 1))
    a("s_cbranch_scc1 L_noinit")
    a("v_lshlrev_b32 v110, 2, v0")
    a("v_add_u32 v110, %d, v110" % L_FLAG)
    a("v_mov_b32 v111, 0")
    a("s_mov_b64 exec, 0xffff")
    a("ds_write_b32 v110, v111")
    a("s_mov_b64 exec, -1")
    a("s_waitcnt lgkmcnt(0)")
    a.label("L_noinit")
    a("s_cmp_ge_u32 s3, %d" % NKV)
    a("s_cbranch_scc1 L_qwave")

    for r in range(ACC, ACC + 32):
        a("v_mov_b32 v%d, 0" % r)
    a("v_lshlrev_b32 v11, 4, v0")
    a("v_add_u32 v11, %d, v11" % L_E)
    a("s_mov_b32 s54, 0")
    if o["prio"]:
        a("s_setprio 2")
    a("s_barrier")
    a.label("L_kvloop")
    q0 = D // 8
    qs = sorted(set((2 * i + D) // 8 for i in range(8)) | set((2 * i + 1 + D) // 8 for i in range(8)))
    a("s_lshl_b32 s55, s54, 1")
    for k, q in enumerate(qs):
        a("s_add_u32 s56, s55, %d" % q)
        kbase(6 + k, "s56")
    for i in range(8):
        a("s_waitcnt vmcnt(%d)" % (D - 2))
        for u in range(2):
            n = 2 * i + u + D
            xload(n % 16, 6 + qs.index(n // 8), n % 8)
        P_last_iter = 24 + i
        if o["ramp"]:
            first = 32 - D // 2 - o["rampoff"]
            for itx in (2, 3):
                Pn = 8 * itx + i
                if first <= Pn < first + D // 2:
                    lab = a.newlabel("Lnt")
                    a("s_cmp_lg_u32 s54, %d" % itx)
                    a("s_cbranch_scc1 %s" % lab)
                    lds_signal(F_TRIG)
                    a.label(lab)
        elif i == trigp % 8:
            lab = a.newlabel("Lnt")
            a("s_cmp_lg_u32 s54, %d" % (trigp // 8))
            a("s_cbranch_scc1 %s" % lab)
            lds_signal(F_TRIG)
            a.label(lab)
        jj = i % 4
        if jj == 2:
            h = i // 4
            if h == 0:
                lab = a.newlabel("Lne")
                a("s_cmp_lg_u32 s54, 0")
                a("s_cbranch_scc1 %s" % lab)
                if not o["eself"]:
                    lds_poll(F_E, 1, "E")
                if o["stampE"]:
                    a("s_memrealtime s[80:81]")
                a.label(lab)
            a("s_add_u32 s93, s55, s92")
            if h:
                a("s_add_u32 s93, s93, 1")
            a("s_and_b32 s93, s93, 7")
            a("s_lshl_b32 s93, s93, 10")
            a("v_add_u32 v10, s93, v11")
            a("ds_read_b128 v[%d:%d], v10" % (AOP + 4 * h, AOP + 4 * h + 3))
        r0 = RING + 8 * i; r1 = r0 + 4
        for m in range(4):
            a("v_perm_b32 v%d, v%d, v%d, s48" % (BR + 4 * (2 * m) + jj, r1 + m, r0 + m))
            a("v_perm_b32 v%d, v%d, v%d, s49" % (BR + 4 * (2 * m + 1) + jj, r1 + m, r0 + m))
        if jj == 3:
            h = i // 4
            a("s_waitcnt lgkmcnt(0)")
            a("s_nop 0")
            for e in range(8):
                a("v_mfma_f32_16x16x32_bf16 v[%d:%d], v[%d:%d], v[%d:%d], v[%d:%d]" % (ACC + 4 * e, ACC + 3 + 4 * e, AOP + 4 * h, AOP + 4 * h + 3, BR + 4 * e, BR + 3 + 4 * e, ACC + 4 * e, ACC + 3 + 4 * e))
    a("s_add_u32 s54, s54, 1")
    a("s_cmp_lt_u32 s54, 4")
    a("s_cbranch_scc1 L_kvloop")
    stamp(1)
    if o["dbgmode"] in (1, 2, 3):
        a("s_branch L_fin")
    a.label("L_kvpost")
    a("s_and_b32 s52, s3, 3")
    a("v_lshrrev_b32 v9, 5, v0")
    a("v_lshlrev_b32 v9, 10, v9")
    a("v_bfe_u32 v8, v0, 4, 1")
    a("v_lshl_add_u32 v9, v8, 7, v9")
    a("v_and_b32 v8, 7, v0")
    a("v_lshl_add_u32 v9, v8, 4, v9")
    a("s_lshl_b32 s58, s52, 11")
    a("v_add_u32 v9, s58, v9")
    a("v_lshlrev_b32 v3, 4, v0")
    a("v_add_u32 v3, s58, v3")
    a("v_mov_b32 v%d, %d" % (H0, L_FLAG))
    a("ds_read_b32 v%d, v%d offset:%d" % (H1, H0, F_MODE))
    for e in range(4):
        for t in range(4):
            a("v_permlane32_swap_b32 v%d, v%d" % (ACC + 4 * e + t, ACC + 16 + 4 * e + t))
    for e in range(4):
        for t in range(4):
            x = ACC + 4 * e + t; y = ACC + 16 + 4 * e + t
            a("v_add_f32_dpp v%d, v%d, v%d row_ror:8 row_mask:0xf bank_mask:0xf" % (x, y, x))
    for e in range(4):
        for t in range(4):
            x = ACC + 4 * e + t
            a("v_min_u32 v%d, -2, v%d" % (x, x))
    a("s_waitcnt lgkmcnt(0)")
    a("v_readfirstlane_b32 s63, v%d" % H1)
    a("s_lshl_b32 s59, s20, 3")
    a("s_cbranch_execz L_pubdone")
    a("s_and_b32 exec_lo, s90, 0x00ff00ff")
    a("s_and_b32 exec_hi, s91, 0x00ff00ff")
    a("s_cmp_eq_u32 s63, 2")
    a("s_cbranch_scc1 L_pubfast")
    for e in range(4):
        a("buffer_store_dwordx4 v[%d:%d], v9, s[40:43], s53 offen offset:%d sc1" % (ACC + 4 * e, ACC + 3 + 4 * e, e * 256))
    a("s_mov_b64 exec, s[90:91]")
    a("s_branch L_slow")
    a.label("L_pubfast")
    for e in range(4):
        a("buffer_store_dwordx4 v[%d:%d], v9, s[40:43], s53 offen offset:%d %s" % (ACC + 4 * e, ACC + 3 + 4 * e, e * 256, o["cst"]))
    a("s_mov_b64 exec, s[90:91]")
    a.label("L_pubdone")
    stamp(2)
    C = RING
    a("s_and_b32 s57, s90, 0xff")
    a("s_mov_b32 s62, %d" % SPIN_GLB)
    if o["cdelay"]:
        lab = a.newlabel("Lcd")
        a("s_cbranch_execz %s" % lab)
        a("s_sleep %d" % o["cdelay"])
        a.label(lab)
    def issue_pending(fl=None):
        fl = o["cld"] if fl is None else fl
        for p in range(8):
            lab = a.newlabel("Lc")
            a("s_bitcmp1_b32 s57, %d" % p)
            a("s_cbranch_scc0 %s" % lab)
            a("s_mov_b32 s58, %d" % (p * 6144))
            for i in range(2):
                r = C + 4 * (p * 2 + i)
                a("buffer_load_dwordx4 v[%d:%d], v3, s[40:43], s58 offen offset:%d %s" % (r, r + 3, i * 1024, fl))
            a.label(lab)
    def check_pending():
        for p in range(8):
            lab = a.newlabel("Lk")
            r = C + 8 * p
            a("s_bitcmp1_b32 s57, %d" % p)
            a("s_cbranch_scc0 %s" % lab)
            a("v_max3_u32 v8, v%d, v%d, v%d" % (r, r + 1, r + 2))
            a("v_max3_u32 v8, v8, v%d, v%d" % (r + 3, r + 4))
            a("v_max3_u32 v8, v8, v%d, v%d" % (r + 5, r + 6))
            a("v_max_u32 v8, v8, v%d" % (r + 7))
            a("v_cmp_eq_u32 vcc, -1, v8")
            a("s_cbranch_vccnz %s" % lab)
            a("s_bitset0_b32 s57, %d" % p)
            a.label(lab)
    if not o["pipe"]:
        if o["cld1"] is not None:
            issue_pending(o["cld1"])
            a("s_branch L_collect1")
        a.label("L_collect")
        issue_pending()
        a.label("L_collect1")
        a("s_waitcnt vmcnt(0)")
        if stamps:
            lab = a.newlabel("Lfa")
            a("s_cmp_eq_u32 s62, %d" % SPIN_GLB)
            a("s_cbranch_scc0 %s" % lab)
            stamp(7)
            a.label(lab)
        check_pending()
        a("s_cmp_eq_u32 s57, 0")
        a("s_cbranch_scc1 L_collected")
        a("s_sub_u32 s62, s62, 1")
        a("s_cbranch_scc1 L_collected")
        if o["psleep"]:
            a("s_sleep %d" % o["psleep"])
        a("s_branch L_collect")
    else:
        a.label("L_collect")
        issue_pending()
        a("s_cmp_eq_u32 s62, %d" % SPIN_GLB)
        a("s_cbranch_scc0 L_nowait")
        a("s_waitcnt vmcnt(0)")
        a("s_branch L_chk")
        a.label("L_nowait")
        a("s_sleep %d" % o["pipe"])
        a.label("L_chk")
        check_pending()
        a("s_cmp_eq_u32 s57, 0")
        a("s_cbranch_scc1 L_collected")
        a("s_sub_u32 s62, s62, 1")
        a("s_cbranch_scc0 L_collect")
    a.label("L_collected")
    stamp(3)
    S = BR
    for m in range(2):
        for i in range(2):
            for t in range(4):
                q = [C + 4 * (2 * (4 * m + k) + i) + t for k in range(4)]
                d = S + 8 * m + 4 * i + t
                a("v_add_f32 v%d, v%d, v%d" % (d, q[0], q[1]))
                a("v_add_f32 v%d, v%d, v%d" % (d + 16, q[2], q[3]))
                a("v_add_f32 v%d, v%d, v%d" % (d, d, d + 16))
    a("v_bfe_u32 v6, v0, 3, 1")
    a("v_and_b32 v7, 7, v0")
    a("v_lshrrev_b32 v8, 4, v0")
    a("v_mul_u32_u24 v9, %d, v6" % (4 * KP_STRIDE))
    a("v_lshl_add_u32 v9, v7, 4, v9")
    a("v_lshl_add_u32 v9, v8, 1, v9")
    a("s_lshl_b32 s58, s52, 7")
    a("s_add_u32 s58, s58, %d" % L_KP)
    a("v_add_u32 v9, s58, v9")
    a("v_lshl_add_u32 v10, v7, 3, v8")
    a("v_lshlrev_b32 v10, 4, v10")
    a("v_lshl_add_u32 v10, v6, 3, v10")
    a("s_lshl_b32 s58, s52, 10")
    a("s_add_u32 s58, s58, %d" % L_VP)
    a("v_add_u32 v10, s58, v10")
    P = ACC + 16
    for i in range(2):
        b = S + 4 * i
        a("v_cvt_pk_bf16_f32 v%d, v%d, v%d" % (P + 2 * i, b, b + 1))
        a("v_cvt_pk_bf16_f32 v%d, v%d, v%d" % (P + 1 + 2 * i, b + 2, b + 3))
        b = S + 8 + 4 * i
        a("v_cvt_pk_bf16_f32 v%d, v%d, v%d" % (P + 4 + 2 * i, b, b + 1))
        a("v_cvt_pk_bf16_f32 v%d, v%d, v%d" % (P + 5 + 2 * i, b + 2, b + 3))
    for i in range(2):
        a("ds_write_b16 v9, v%d offset:%d" % (P + 2 * i, 0 * KP_STRIDE + 8 * i))
        a("ds_write_b16_d16_hi v9, v%d offset:%d" % (P + 2 * i, 1 * KP_STRIDE + 8 * i))
        a("ds_write_b16 v9, v%d offset:%d" % (P + 1 + 2 * i, 2 * KP_STRIDE + 8 * i))
        a("ds_write_b16_d16_hi v9, v%d offset:%d" % (P + 1 + 2 * i, 3 * KP_STRIDE + 8 * i))
        a("ds_write_b64 v10, v[%d:%d] offset:%d" % (P + 4 + 2 * i, P + 5 + 2 * i, 64 * i))
    a("s_waitcnt lgkmcnt(0)")
    lds_signal(F_READY)
    stamp(4)
    if dry:
        a("s_cbranch_execz L_dryret1")
    a("s_cmp_eq_u32 s63, 2")
    a("s_cbranch_scc0 L_kvend")
    pubflag()
    a.label("L_kvend")
    if stamps:
        a("s_waitcnt lgkmcnt(0)")
        a("s_mov_b32 s74, %s" % ("s80" if o["stampE"] else "s78"))
        a("s_sub_u32 s79, %d, s62" % SPIN_GLB)
    a("s_branch L_fin")
    a.label("L_slow")
    pubflag()
    a("s_mov_b32 s62, %d" % SPIN_GLB)
    a("s_mov_b64 exec, 1")
    a.label("L_slowpoll")
    a("v_mov_b32 v6, 0")
    a("v_mov_b32 v7, 0")
    a("buffer_atomic_or_x2 v[6:7], off, s[44:47], s59 sc0 sc1")
    a("s_waitcnt vmcnt(0)")
    a("v_and_b32 v6, v6, v7")
    a("v_and_b32 v6, 0x40404040, v6")
    a("s_nop 0")
    a("v_readfirstlane_b32 s58, v6")
    a("s_cmp_eq_u32 s58, 0x40404040")
    a("s_cbranch_scc1 L_slowgo")
    a("s_sub_u32 s62, s62, 1")
    a("s_cbranch_scc1 L_slowgo")
    a("s_sleep 32")
    a("s_branch L_slowpoll")
    a.label("L_slowgo")
    a("s_mov_b64 exec, -1")
    for p in range(8):
        a("s_mov_b32 s58, %d" % (p * 6144))
        for i in range(2):
            r = C + 4 * (p * 2 + i)
            a("buffer_load_dwordx4 v[%d:%d], v3, s[40:43], s58 offen offset:%d sc1" % (r, r + 3, i * 1024))
    a("s_waitcnt vmcnt(0)")
    a("s_branch L_collected")

    a.label("L_qwave")
    a("s_barrier")
    for n in range(6):
        a("v_add_u32 v110, %d, v0" % (64 * n))
        a("v_mul_u32_u24 v111, 2731, v110")
        a("v_lshrrev_b32 v111, 17, v111")
        a("v_and_b32 v111, 7, v111")
        a("v_lshlrev_b32 v111, 4, v111")
        a("v_lshlrev_b32 v110, 4, v110")
        a("v_xor_b32 v%d, v110, v111" % (140 + n))
    a("s_sub_u32 s55, s3, %d" % NKV)
    a("s_mul_i32 s56, s55, 12288")
    if o["dbgmode"] == 1:
        a("s_cmp_eq_u32 s3, %d" % (NKV + 1))
        a("s_cbranch_scc0 L_fin")
    a("s_cmp_eq_u32 s3, %d" % (NKV + 0))
    a("s_cbranch_scc1 L_aux")
    if not o["eself"]:
        a("s_cmp_eq_u32 s3, %d" % (NKV + 1))
        a("s_cbranch_scc1 L_estage")
    if o["touch"]:
        lab = a.newlabel("Lnt")
        a("s_cmp_eq_u32 s3, %d" % (NKV + 4))
        a("s_cbranch_scc0 %s" % lab)
        a("v_mul_u32_u24 v12, 98300, v0")
        a("s_mov_b64 exec, 3")
        a("buffer_load_dword v13, v12, s[32:35], 0 offen")
        a("buffer_load_dword v14, v12, s[36:39], 0 offen")
        a("s_mov_b64 exec, -1")
        a("s_waitcnt vmcnt(0)")
        a.label(lab)
    if dry:
        a("s_cmp_eq_u32 s3, %d" % (NKV + 2))
        a("s_cbranch_scc1 L_dry1")
        a("s_cmp_eq_u32 s3, %d" % (NKV + 3))
        a("s_cbranch_scc1 L_dry2")
    a("s_branch L_qmain")
    if dry:
        a.label("L_dry1")
        a("s_mov_b64 s[90:91], 0")
        a("s_mov_b64 exec, 0")
        a("s_branch L_kvpost")
        a.label("L_dryret1")
        a("s_mov_b64 s[90:91], -1")
        a("s_mov_b64 exec, -1")
        a("s_branch L_qmain")
        a.label("L_dry2")
        a("s_mov_b64 s[90:91], 0")
        a("s_mov_b64 exec, 0")
        a("s_branch L_phase2")
        a.label("L_dryret2")
        a("s_mov_b64 s[90:91], -1")
        a("s_mov_b64 exec, -1")
        a("s_branch L_qmain")

    a.label("L_estage")
    a("v_and_b32 v3, 7, v0")
    a("v_lshrrev_b32 v4, 3, v0")
    a("v_lshlrev_b32 v2, 12, v3")
    a("v_lshl_add_u32 v2, v4, 4, v2")
    a("s_lshl_b32 s58, s23, 10")
    for k in range(8):
        a("s_mov_b32 m0, %d" % (L_E + k * 1024))
        a("s_nop 0")
        a("buffer_load_dwordx4 v2, s[28:31], s58 offen lds")
        if k < 7:
            a("s_add_u32 s58, s58, 128")
    a("s_waitcnt vmcnt(0)")
    lds_signal(F_E)
    a("s_branch L_qmain")

    a.label("L_aux")
    a("v_lshlrev_b32 v1, 4, v0")
    for r in range(12, 16):
        a("v_mov_b32 v%d, -1" % r)
    a("s_mov_b32 s58, s53")
    for n in range(6):
        if n == 4:
            a("s_add_u32 s58, s58, 4096")
        if not o["noclear"]:
            a("buffer_store_dwordx4 v[12:15], v1, s[40:43], s58 offen offset:%d" % ((n % 4) * 1024))
    a("s_getreg_b32 s57, hwreg(HW_REG_XCC_ID)")
    a("s_and_b32 s57, s57, 7")
    a("s_or_b32 s57, s57, 0x80")
    a("v_mov_b32 v2, s57")
    a("s_lshl_b32 s59, s20, 3")
    a("s_add_u32 s58, s59, s21")
    a("s_mul_i32 s57, s57, 0x01010101")
    a("s_waitcnt vmcnt(0)")
    a("s_mov_b64 exec, 1")
    a("buffer_store_byte v2, off, s[44:47], s58")
    a("s_mov_b32 s62, %d" % o["auxpolls"])
    a.label("L_auxpoll")
    a("s_sleep %d" % o["auxsleep"])
    a("buffer_load_dwordx2 v[4:5], off, s[44:47], s59 sc1")
    a("s_waitcnt vmcnt(0)")
    a("v_readfirstlane_b32 s60, v4")
    a("v_readfirstlane_b32 s61, v5")
    a("s_and_b32 s60, s60, 0xbfbfbfbf")
    a("s_and_b32 s61, s61, 0xbfbfbfbf")
    a("s_cmp_eq_u32 s60, s57")
    a("s_cselect_b32 s60, s61, 0")
    a("s_cmp_eq_u32 s60, s57")
    a("s_cbranch_scc1 L_auxfast")
    a("s_sub_u32 s62, s62, 1")
    a("s_cbranch_scc0 L_auxpoll")
    a("s_branch L_auxdone")
    a.label("L_auxfast")
    if fast:
        a("s_mov_b64 exec, -1")
        lds_signal(F_MODE, 2)
    a.label("L_auxdone")
    a("s_mov_b64 exec, -1")
    stamp(3)

    a.label("L_qmain")
    if o["dbgmode"] in (1, 2):
        a("s_branch L_fin")
    if o["ramp"]:
        a("s_sub_u32 s57, s3, %d" % NKV)
        a("s_mul_i32 s57, s57, %d" % (3 * D // 2))
        a("s_lshr_b32 s57, s57, 3")
        a("s_add_u32 s57, s57, 1")
        lds_poll(F_TRIG, "s57", "T", sleep=o["tsleep"])
    else:
        lds_poll(F_TRIG, 1, "T", sleep=o["tsleep"])
    stamp(1)
    def q_dma(k):
        t, n = divmod(k, 6)
        a("s_add_u32 m0, s56, %d" % (L_Q + t * 6144 + n * 1024))
        if t == 1 and n == 0:
            a("s_add_u32 s57, s56, 6144")
        else:
            a("s_nop 0")
        a("buffer_load_dwordx4 v%d, s[32:35], %s offen %s lds" % (140 + n, "s56" if t == 0 else "s57", ld))
    for k in range(12):
        if k >= qdepth:
            a("s_waitcnt vmcnt(%d)" % (qdepth - 1))
        if o["early"] and k >= 6 + qdepth - 1 and k < 12:
            pass
        q_dma(k)
        if o["early"] and k >= 5 + qdepth and k < 11:
            a("ds_read_b32 v%d, v%d offset:%d" % (H1, H0, F_READY - F_TRIG))
            a("s_waitcnt lgkmcnt(0)")
            a("v_readfirstlane_b32 s63, v%d" % H1)
            a("s_cmp_ge_u32 s63, 3")
            a("s_cbranch_scc1 L_rest%d" % (k + 1))
    if o["early"]:
        a("s_branch L_allissued")
        for k in range(6 + qdepth, 12):
            a.label("L_rest%d" % k)
            q_dma(k)
        a.label("L_allissued")
    if o["qiss"]:
        lds_signal(F_QISS)
    stamp(2)
    if o["dbgmode"] == 3:
        a("s_branch L_fin")

    a.label("L_phase2")
    a("v_and_b32 v138, 15, v0")
    a("v_lshrrev_b32 v139, 4, v0")
    a("v_lshrrev_b32 v132, 1, v138")
    a("v_xor_b32 v132, v132, v139")
    a("v_lshlrev_b32 v132, 4, v132")
    a("v_mul_u32_u24 v133, 384, v138")
    a("v_add_u32 v132, v132, v133")
    a("v_add_u32 v132, s56, v132")
    a("v_xor_b32 v133, 64, v132")
    a("v_and_b32 v134, 7, v0")
    a("v_mul_u32_u24 v134, %d, v134" % KP_STRIDE)
    a("v_lshl_add_u32 v134, v139, 4, v134")
    a("v_add_u32 v134, %d, v134" % L_KP)
    a("v_lshrrev_b32 v146, 2, v138")
    a("v_and_b32 v147, 3, v138")
    a("v_lshl_add_u32 v135, v146, 3, v147")
    a("v_lshlrev_b32 v135, 4, v135")
    a("v_and_b32 v147, 1, v139")
    a("v_lshl_add_u32 v135, v147, 3, v135")
    a("v_add_u32 v135, %d, v135" % L_VP)
    a("v_lshlrev_b32 v136, 4, v0")
    a("v_cmp_gt_u32 vcc, 32, v0")
    a("v_mov_b32 v137, 0")
    a("s_nop 0")
    a("v_cndmask_b32_e64 v137, v137, 1.0, vcc")
    a("s_waitcnt vmcnt(6)")
    for m in range(6):
        a("ds_read_b128 v[%d:%d], v%d offset:%d" % (52 + 4 * m, 55 + 4 * m, 132 + (m & 1), (m >> 1) * 128))
    lds_poll(F_READY, 3, "R", dryskip=True)
    stamp(4)
    for m in range(6):
        a("ds_read_b128 v[%d:%d], v134 offset:%d" % (4 + 4 * m, 7 + 4 * m, m * 64))
    for T in range(12):
        U, b = divmod(T, 2)
        a("ds_read_b64 v[%d:%d], v135 offset:%d" % (28 + 2 * T, 29 + 2 * T, (32 * U + 4 * b) * 16))
    a("s_mov_b32 s55, 0")
    a("s_waitcnt lgkmcnt(12)")
    a("s_branch L_tile1")
    a.label("L_tile")
    a("s_waitcnt vmcnt(6)")
    for m in range(6):
        a("ds_read_b128 v[%d:%d], v%d offset:%d" % (52 + 4 * m, 55 + 4 * m, 132 + (m & 1), (m >> 1) * 128))
    a("s_waitcnt lgkmcnt(0)")
    a.label("L_tile1")
    for m in range(6):
        a("v_mfma_f32_16x16x32_bf16 v[76:79], v[%d:%d], v[%d:%d], %s" % (4 + 4 * m, 7 + 4 * m, 52 + 4 * m, 55 + 4 * m, "0" if m == 0 else "v[76:79]"))
    a("s_add_u32 s58, s56, 4096")
    a("s_nop 6")
    Z = 76
    def rnd():
        a("v_cvt_pk_bf16_f32 v80, v76, v77")
        a("v_cvt_pk_bf16_f32 v81, v78, v79")
        a("v_lshlrev_b32 v76, 16, v80")
        a("v_and_b32 v77, 0xffff0000, v80")
        a("v_lshlrev_b32 v78, 16, v81")
        a("v_and_b32 v79, 0xffff0000, v81")
    if o["round_emul"]:
        rnd()
    for t in range(4):
        a("v_mul_f32 v%d, s50, v%d" % (Z + t, Z + t))
    if o["round_emul"]:
        rnd()
    a("v_max3_f32 v82, v76, v77, v78")
    a("v_max_f32 v82, v82, v79")
    a("v_mov_b32 v83, v82")
    a("s_nop 1")
    a("v_permlane16_swap_b32 v82, v83")
    a("s_nop 1")
    a("v_max_f32 v82, v82, v83")
    a("v_mul_f32 v82, s51, v82")
    for t in range(4):
        a("v_fma_f32 v%d, v%d, s51, -v82" % (Z + t, Z + t))
    for t in range(4):
        a("v_exp_f32 v%d, v%d" % (Z + t, Z + t))
    a("s_nop 0")
    a("v_add_f32 v82, v76, v77")
    a("v_add_f32 v83, v78, v79")
    a("v_add_f32 v82, v82, v83")
    a("v_mov_b32 v83, v82")
    a("s_nop 1")
    a("v_permlane16_swap_b32 v82, v83")
    a("s_nop 1")
    a("v_add_f32 v82, v82, v83")
    a("v_rcp_f32 v82, v82")
    a("s_nop 0")
    a("v_mul_f32 v82, v82, v137")
    for t in range(4):
        a("v_mul_f32 v%d, v%d, v82" % (Z + t, Z + t))
    a("v_cvt_pk_bf16_f32 v80, v76, v77")
    a("v_cvt_pk_bf16_f32 v81, v78, v79")
    a("s_waitcnt lgkmcnt(0)")
    a("s_nop 0")
    DD = 52
    for T in range(12):
        a("v_mfma_f32_16x16x16_bf16 v[%d:%d], v[%d:%d], v[80:81], 0" % (84 + 4 * T, 87 + 4 * T, 28 + 2 * T, 29 + 2 * T))
    def dreg(T):
        return 84 + 4 * T
    for U in range(6):
        pk = dreg(2 * U)
        if U == 0:
            a("s_nop 1")
        da, db = dreg(2 * U), dreg(2 * U + 1)
        a("v_cvt_pk_bf16_f32 v%d, v%d, v%d" % (pk, da, da + 1))
        a("v_cvt_pk_bf16_f32 v%d, v%d, v%d" % (pk + 1, da + 2, da + 3))
        a("v_cvt_pk_bf16_f32 v%d, v%d, v%d" % (pk + 2, db, db + 1))
        a("v_cvt_pk_bf16_f32 v%d, v%d, v%d" % (pk + 3, db + 2, db + 3))
        a("ds_write_b128 v%d, v[%d:%d] offset:%d" % (132 + (U & 1), pk, pk + 3, (U >> 1) * 128))
    a("s_waitcnt lgkmcnt(0)")
    if o["qiss"]:
        lab = a.newlabel("Lqi")
        a("s_cmp_lg_u32 s55, 0")
        a("s_cbranch_scc1 %s" % lab)
        lds_poll(F_QISS, 8, "I", dryskip=True)
        a.label(lab)
    for n in range(6):
        a("v_add_u32 v%d, s56, v%d" % (84 + n, 140 + n))
    for n in range(6):
        a("ds_read_b128 v[%d:%d], v%d" % (52 + 4 * n, 55 + 4 * n, 84 + n))
    for n in range(6):
        a("s_waitcnt lgkmcnt(%d)" % (5 - n))
        so, imm = ("s56", n * 1024) if n < 4 else ("s58", (n - 4) * 1024)
        lab = a.newlabel("Lst")
        if dry:
            a("s_cbranch_execz %s" % lab)
        a("buffer_store_dwordx4 v[%d:%d], v136, s[36:39], %s offen offset:%d %s" % (52 + 4 * n, 55 + 4 * n, so, imm, st))
        if dry:
            a.label(lab)
    if dry:
        a("s_cbranch_execz L_dryret2")
    a("s_add_u32 s56, s56, 6144")
    a("v_add_u32 v132, 6144, v132")
    a("v_add_u32 v133, 6144, v133")
    a("s_add_u32 s55, s55, 1")
    a("s_cmp_lt_u32 s55, 2")
    a("s_cbranch_scc1 L_tile")
    stamp(5)
    a.label("L_fin")
    if stamps:
        a("s_waitcnt vmcnt(0)")
        stamp(6)
        a("s_getreg_b32 s78, hwreg(HW_REG_XCC_ID)")
        a("s_cmp_lt_u32 s3, %d" % NKV)
        a("s_cselect_b32 s79, s79, 0")
        a("s_lshl_b32 s79, s79, 8")
        a("s_or_b32 s78, s78, s79")
        a("s_waitcnt lgkmcnt(0)")
        a("s_lshl_b32 s58, s2, 9")
        a("s_lshl_b32 s59, s3, 5")
        a("s_add_u32 s58, s58, s59")
        a("s_add_u32 s58, s58, %d" % STAMP_OFF)
        a("s_mov_b32 s40, s18"); a("s_mov_b32 s41, s19"); a("s_mov_b32 s42, 0x1000000"); a("s_mov_b32 s43, 0x20000")
        for i in range(7):
            a("v_mov_b32 v%d, s%d" % (4 + i, 64 + 2 * i))
        a("v_mov_b32 v11, s78")
        a("s_mov_b64 exec, 1")
        a("buffer_store_dwordx4 v[4:7], off, s[40:43], s58")
        a("buffer_store_dwordx4 v[8:11], off, s[40:43], s58 offset:16")
    a.label("L_end")
    a("s_endpgm")
    return wrap(["; @launch grid=(256,1,1) block=(%d,1,1) lds=%d" % (NW * 64, LDS_BYTES)], [(KN, a.text(), NVGPR, 96)])

def parse_kv(args):
    kw = {}
    for x in args:
        k, v = x.split("=", 1)
        if v in ("True", "False", "None"):
            v = eval(v)
        else:
            try: v = int(v)
            except ValueError: pass
        kw[k] = v
    return kw

if __name__ == "__main__":
    out = sys.argv[1]
    open(out, "w").write(gen(**parse_kv(sys.argv[2:])))
```

```python
import sys
from asmlib import *

L_Q = 0
L_E = 98304
L_KP = L_E + 8192
KP_STRIDE = 400
L_VP = L_KP + 8 * KP_STRIDE
L_FLAG = L_VP + 3072
LDS_BYTES = L_FLAG + 64
F_TRIG, F_READY, F_MODE, F_FIN, F_STAMP, F_E, F_JOIN, F_QISS = 0, 4, 8, 12, 16, 48, 52, 56
STAMP_OFF = 8 << 20
SPIN_LDS = 1 << 22
SPIN_GLB = 1 << 16
NKV = 3
NQ = 8
NW = NKV + NQ
RING = 12
BR = 76
ACC = 108
AOP = 140
H0, H1 = 148, 149
NVGPR = 152

DEF = dict(ld="nt", st="nt", stamps=None, qdepth=3, depth=8, trigp=None, fast=True, dry=False, xmap="xcd",
           round_emul=True, prio=True, rot=True, tsleep=1, auxsleep=32, auxpolls=3, psleep=0, pipe=0, kvonly=False, cld="nt", cst="", touch=False, cld1=None, dbgmode=0, ramp=True, rampoff=0, cdelay=0, early=True, qiss=True, noclear=False, idle=0, stampE=False, eself=False, diag=False, amp=0, ampfrom=0)

def gen(**kw):
    o = dict(DEF); o.update(kw)
    globals().update({"_o": o})
    ld, st, stamps, qdepth, D = o["ld"], o["st"], o["stamps"], o["qdepth"], o["depth"]
    dry, fast = o["dry"], o["fast"]
    assert D % 2 == 0 and 8 <= D <= 14
    trigp = o["trigp"] if o["trigp"] is not None else (62 - D) // 2 + 1
    a = Asm()
    def stamp(i):
        if stamps:
            a("s_memrealtime s[%d:%d]" % (64 + 2 * i, 65 + 2 * i))
    def lds_poll(off, val, name, sleep=1, dryskip=False):
        lab = a.newlabel("Lp" + name); done = a.newlabel("Ld" + name)
        if dryskip:
            a("s_cbranch_execz %s" % done)
        a("s_mov_b32 s62, %d" % SPIN_LDS)
        a("v_mov_b32 v%d, %d" % (H0, L_FLAG + off))
        a.label(lab)
        a("ds_read_b32 v%d, v%d" % (H1, H0))
        a("s_waitcnt lgkmcnt(0)")
        a("v_readfirstlane_b32 s63, v%d" % H1)
        a("s_sub_u32 s62, s62, 1")
        a("s_cbranch_scc1 %s" % done)
        a("s_cmp_ge_u32 s63, %s" % val)
        a("s_cbranch_scc1 %s" % done)
        a("s_sleep %d" % sleep)
        a("s_branch %s" % lab)
        a.label(done)
    def lds_signal(off, val=1):
        a("v_mov_b32 v%d, %d" % (H0, L_FLAG + off))
        a("v_mov_b32 v%d, %d" % (H1, val))
        a("s_and_b32 exec_lo, s90, 1")
        a("s_mov_b32 exec_hi, 0")
        a("ds_add_u32 v%d, v%d" % (H0, H1))
        a("s_mov_b64 exec, s[90:91]")
    def pubflag():
        lab = a.newlabel("Lpf")
        a("s_waitcnt vmcnt(0)")
        a("v_mov_b32 v%d, %d" % (H0, L_FLAG + F_JOIN))
        a("v_mov_b32 v%d, 1" % H1)
        a("s_mov_b64 exec, 1")
        a("ds_add_rtn_u32 v%d, v%d, v%d" % (H1, H0, H1))
        a("s_waitcnt lgkmcnt(0)")
        a("v_readfirstlane_b32 s58, v%d" % H1)
        a("s_cmp_eq_u32 s58, 2")
        a("s_cbranch_scc0 %s" % lab)
        a("s_getreg_b32 s58, hwreg(HW_REG_XCC_ID)")
        a("s_and_b32 s58, s58, 7")
        a("s_or_b32 s58, s58, 0xc0")
        a("v_mov_b32 v%d, s58" % H1)
        a("s_add_u32 s58, s59, s21")
        a("buffer_store_byte v%d, off, s[44:47], s58 sc1" % H1)
        a.label(lab)
        a("s_mov_b64 exec, -1")
    def kbase(vdst, sks):
        a("s_add_u32 s93, %s, s92" % sks)
        a("s_and_b32 s93, s93, 7")
        a("s_mul_i32 s93, s93, 24576")
        a("s_cmp_ge_u32 %s, 8" % sks)
        a("s_cselect_b32 s93, 0x1000000, s93")
        a("v_add_u32 v%d, s93, v5" % vdst)

    stamp(0)
    if o["amp"]:
        a("s_memrealtime s[94:95]")
    a("s_cmp_ge_u32 s2, 256")
    a("s_cbranch_scc1 L_end")
    a("s_load_dwordx16 s[4:19], s[0:1], 0")
    a("v_lshrrev_b32 v1, 6, v0")
    a("v_and_b32 v0, 63, v0")
    a("v_readfirstlane_b32 s3, v1")
    if o["xmap"] == "xcd":
        a("s_lshr_b32 s20, s2, 6")
        a("s_lshl_b32 s20, s20, 3")
        a("s_and_b32 s21, s2, 7")
        a("s_add_u32 s20, s20, s21")
        a("s_lshr_b32 s21, s2, 3")
        a("s_and_b32 s21, s21, 7")
    else:
        a("s_lshr_b32 s20, s2, 3")
        a("s_and_b32 s21, s2, 7")
    a("s_and_b32 s22, s21, 1")
    a("s_lshr_b32 s23, s21, 1")
    a("v_and_b32 v3, 7, v0")
    a("v_lshrrev_b32 v4, 3, v0")
    a("v_mul_u32_u24 v1, 3072, v4")
    a("v_lshl_add_u32 v1, v3, 4, v1")
    a("s_lshl_b32 s52, s3, 7")
    a("v_add_u32 v5, s52, v1")
    if o["rot"]:
        a("s_lshr_b32 s92, s2, 3")
        a("s_add_u32 s92, s92, s2")
        a("s_and_b32 s92, s92, 7")
    else:
        a("s_mov_b32 s92, 0")
    a("s_mul_i32 s93, s92, 24576")
    a("v_add_u32 v6, s93, v5")
    a("s_add_u32 s93, s92, 1")
    a("s_and_b32 s93, s93, 7")
    a("s_mul_i32 s93, s93, 24576")
    a("v_add_u32 v7, s93, v5")
    a("s_mul_i32 s58, s20, 786432")
    a("s_mul_i32 s59, s23, 196608")
    a("s_add_u32 s59, s59, s58")
    a("s_mov_b32 s26, 196608")
    a("s_mov_b32 s27, 0x20000")
    a("s_mov_b64 s[90:91], -1")
    a("s_cmp_eq_u32 s22, 0")
    a("s_waitcnt lgkmcnt(0)")
    a("s_cselect_b32 s24, s6, s8")
    a("s_cselect_b32 s25, s7, s9")
    a("s_cselect_b32 s28, s10, s12")
    a("s_cselect_b32 s29, s11, s13")
    a("s_add_u32 s24, s24, s59")
    a("s_addc_u32 s25, s25, 0")
    a("s_cmp_ge_u32 s3, %d" % NKV)
    a("s_cbranch_scc1 L_notkv0")
    if o["eself"]:
        a("s_mov_b32 s30, 32768")
        a("s_mov_b32 s31, 0x20000")
        a("v_lshlrev_b32 v2, 12, v3")
        a("v_lshl_add_u32 v2, v4, 4, v2")
        a("s_lshl_b32 s58, s23, 10")
        for k in range(8):
            a("s_mov_b32 m0, %d" % (L_E + k * 1024))
            a("s_nop 0")
            a("buffer_load_dwordx4 v2, s[28:31], s58 offen lds")
            if k < 7:
                a("s_add_u32 s58, s58, 128")
        a("s_mul_i32 s58, s20, 786432")
    def xload(slot, vb, j):
        r = RING + 4 * slot
        a("buffer_load_dwordx4 v[%d:%d], v%d, s[24:27], 0 offen offset:%d %s" % (r, r + 3, vb, j * 384, ld))
    for n in range(D):
        xload(n, 6 + n // 8, n % 8)
    a.label("L_notkv0")
    a("s_mov_b32 s30, 32768")
    a("s_mov_b32 s31, 0x20000")
    a("s_mul_i32 s59, s21, 98304")
    a("s_add_u32 s58, s58, s59")
    a("s_add_u32 s32, s4, s58")
    a("s_addc_u32 s33, s5, 0")
    a("s_mov_b32 s34, 98304")
    a("s_mov_b32 s35, 0x20000")
    a("s_add_u32 s36, s14, s58")
    a("s_addc_u32 s37, s15, 0")
    a("s_mov_b32 s38, 98304")
    a("s_mov_b32 s39, 0x20000")
    a("s_mul_i32 s58, s20, 49152")
    a("s_add_u32 s40, s18, s58")
    a("s_addc_u32 s41, s19, 0")
    a("s_mov_b32 s42, 49152")
    a("s_mov_b32 s43, 0x20000")
    a("s_mov_b32 s44, s16")
    a("s_mov_b32 s45, s17")
    a("s_mov_b32 s46, 256")
    a("s_mov_b32 s47, 0x20000")
    a("s_mov_b32 s48, 0x05040100")
    a("s_mov_b32 s49, 0x07060302")
    a("s_mov_b32 s50, 0x3d93cd3a")
    a("s_mov_b32 s51, 0x3fb8aa3b")
    a("s_lshl_b32 s53, s22, 2")
    a("s_add_u32 s53, s53, s23")
    a("s_mul_i32 s53, s53, 6144")
    a("s_cmp_lg_u32 s3, %d" % (NW - 1))
    a("s_cbranch_scc1 L_noinit")
    a("v_lshlrev_b32 v110, 2, v0")
    a("v_add_u32 v110, %d, v110" % L_FLAG)
    a("v_mov_b32 v111, 0")
    a("s_mov_b64 exec, 0xffff")
    a("ds_write_b32 v110, v111")
    a("s_mov_b64 exec, -1")
    a("s_waitcnt lgkmcnt(0)")
    a.label("L_noinit")
    a("s_cmp_ge_u32 s3, %d" % NKV)
    a("s_cbranch_scc1 L_qwave")

    for r in range(ACC, ACC + 32):
        a("v_mov_b32 v%d, 0" % r)
    a("v_lshlrev_b32 v11, 4, v0")
    a("v_add_u32 v11, %d, v11" % L_E)
    a("s_mov_b32 s54, 0")
    if o["prio"]:
        a("s_setprio 2")
    a("s_barrier")
    a.label("L_kvloop")
    q0 = D // 8
    qs = sorted(set((2 * i + D) // 8 for i in range(8)) | set((2 * i + 1 + D) // 8 for i in range(8)))
    a("s_lshl_b32 s55, s54, 1")
    for k, q in enumerate(qs):
        a("s_add_u32 s56, s55, %d" % q)
        kbase(6 + k, "s56")
    for i in range(8):
        a("s_waitcnt vmcnt(%d)" % (D - 2))
        for u in range(2):
            n = 2 * i + u + D
            xload(n % 16, 6 + qs.index(n // 8), n % 8)
        P_last_iter = 24 + i
        if o["ramp"]:
            first = 32 - D // 2 - o["rampoff"]
            for itx in (2, 3):
                Pn = 8 * itx + i
                if first <= Pn < first + D // 2:
                    lab = a.newlabel("Lnt")
                    a("s_cmp_lg_u32 s54, %d" % itx)
                    a("s_cbranch_scc1 %s" % lab)
                    lds_signal(F_TRIG)
                    a.label(lab)
        elif i == trigp % 8:
            lab = a.newlabel("Lnt")
            a("s_cmp_lg_u32 s54, %d" % (trigp // 8))
            a("s_cbranch_scc1 %s" % lab)
            lds_signal(F_TRIG)
            a.label(lab)
        jj = i % 4
        if jj == 2:
            h = i // 4
            if h == 0:
                lab = a.newlabel("Lne")
                a("s_cmp_lg_u32 s54, 0")
                a("s_cbranch_scc1 %s" % lab)
                if not o["eself"]:
                    lds_poll(F_E, 1, "E")
                if o["stampE"]:
                    a("s_memrealtime s[80:81]")
                a.label(lab)
            a("s_add_u32 s93, s55, s92")
            if h:
                a("s_add_u32 s93, s93, 1")
            a("s_and_b32 s93, s93, 7")
            a("s_lshl_b32 s93, s93, 10")
            a("v_add_u32 v10, s93, v11")
            a("ds_read_b128 v[%d:%d], v10" % (AOP + 4 * h, AOP + 4 * h + 3))
        r0 = RING + 8 * i; r1 = r0 + 4
        for m in range(4):
            a("v_perm_b32 v%d, v%d, v%d, s48" % (BR + 4 * (2 * m) + jj, r1 + m, r0 + m))
            a("v_perm_b32 v%d, v%d, v%d, s49" % (BR + 4 * (2 * m + 1) + jj, r1 + m, r0 + m))
        if jj == 3:
            h = i // 4
            a("s_waitcnt lgkmcnt(0)")
            a("s_nop 0")
            for e in range(8):
                a("v_mfma_f32_16x16x32_bf16 v[%d:%d], v[%d:%d], v[%d:%d], v[%d:%d]" % (ACC + 4 * e, ACC + 3 + 4 * e, AOP + 4 * h, AOP + 4 * h + 3, BR + 4 * e, BR + 3 + 4 * e, ACC + 4 * e, ACC + 3 + 4 * e))
    a("s_add_u32 s54, s54, 1")
    a("s_cmp_lt_u32 s54, 4")
    a("s_cbranch_scc1 L_kvloop")
    stamp(1)
    if o["dbgmode"] in (1, 2, 3):
        a("s_branch L_fin")
    a.label("L_kvpost")
    a("s_and_b32 s52, s3, 3")
    a("v_lshrrev_b32 v9, 5, v0")
    a("v_lshlrev_b32 v9, 10, v9")
    a("v_bfe_u32 v8, v0, 4, 1")
    a("v_lshl_add_u32 v9, v8, 7, v9")
    a("v_and_b32 v8, 7, v0")
    a("v_lshl_add_u32 v9, v8, 4, v9")
    a("s_lshl_b32 s58, s52, 11")
    a("v_add_u32 v9, s58, v9")
    a("v_lshlrev_b32 v3, 4, v0")
    a("v_add_u32 v3, s58, v3")
    a("v_mov_b32 v%d, %d" % (H0, L_FLAG))
    a("ds_read_b32 v%d, v%d offset:%d" % (H1, H0, F_MODE))
    for e in range(4):
        for t in range(4):
            a("v_permlane32_swap_b32 v%d, v%d" % (ACC + 4 * e + t, ACC + 16 + 4 * e + t))
    for e in range(4):
        for t in range(4):
            x = ACC + 4 * e + t; y = ACC + 16 + 4 * e + t
            a("v_add_f32_dpp v%d, v%d, v%d row_ror:8 row_mask:0xf bank_mask:0xf" % (x, y, x))
    for e in range(4):
        for t in range(4):
            x = ACC + 4 * e + t
            a("v_min_u32 v%d, -2, v%d" % (x, x))
    a("s_waitcnt lgkmcnt(0)")
    a("v_readfirstlane_b32 s63, v%d" % H1)
    a("s_lshl_b32 s59, s20, 3")
    a("s_cbranch_execz L_pubdone")
    a("s_and_b32 exec_lo, s90, 0x00ff00ff")
    a("s_and_b32 exec_hi, s91, 0x00ff00ff")
    a("s_cmp_eq_u32 s63, 2")
    a("s_cbranch_scc1 L_pubfast")
    for e in range(4):
        a("buffer_store_dwordx4 v[%d:%d], v9, s[40:43], s53 offen offset:%d sc1" % (ACC + 4 * e, ACC + 3 + 4 * e, e * 256))
    a("s_mov_b64 exec, s[90:91]")
    a("s_branch L_slow")
    a.label("L_pubfast")
    for e in range(4):
        a("buffer_store_dwordx4 v[%d:%d], v9, s[40:43], s53 offen offset:%d %s" % (ACC + 4 * e, ACC + 3 + 4 * e, e * 256, o["cst"]))
    a("s_mov_b64 exec, s[90:91]")
    a.label("L_pubdone")
    stamp(2)
    C = RING
    a("s_and_b32 s57, s90, 0xff")
    a("s_mov_b32 s62, %d" % SPIN_GLB)
    if o["cdelay"]:
        lab = a.newlabel("Lcd")
        a("s_cbranch_execz %s" % lab)
        a("s_sleep %d" % o["cdelay"])
        a.label(lab)
    def issue_pending(fl=None):
        fl = o["cld"] if fl is None else fl
        for p in range(8):
            lab = a.newlabel("Lc")
            a("s_bitcmp1_b32 s57, %d" % p)
            a("s_cbranch_scc0 %s" % lab)
            a("s_mov_b32 s58, %d" % (p * 6144))
            for i in range(2):
                r = C + 4 * (p * 2 + i)
                a("buffer_load_dwordx4 v[%d:%d], v3, s[40:43], s58 offen offset:%d %s" % (r, r + 3, i * 1024, fl))
            a.label(lab)
    def check_pending():
        for p in range(8):
            lab = a.newlabel("Lk")
            r = C + 8 * p
            a("s_bitcmp1_b32 s57, %d" % p)
            a("s_cbranch_scc0 %s" % lab)
            a("v_max3_u32 v8, v%d, v%d, v%d" % (r, r + 1, r + 2))
            a("v_max3_u32 v8, v8, v%d, v%d" % (r + 3, r + 4))
            a("v_max3_u32 v8, v8, v%d, v%d" % (r + 5, r + 6))
            a("v_max_u32 v8, v8, v%d" % (r + 7))
            a("v_cmp_eq_u32 vcc, -1, v8")
            a("s_cbranch_vccnz %s" % lab)
            a("s_bitset0_b32 s57, %d" % p)
            a.label(lab)
    if not o["pipe"]:
        if o["cld1"] is not None:
            issue_pending(o["cld1"])
            a("s_branch L_collect1")
        a.label("L_collect")
        issue_pending()
        a.label("L_collect1")
        a("s_waitcnt vmcnt(0)")
        if stamps:
            lab = a.newlabel("Lfa")
            a("s_cmp_eq_u32 s62, %d" % SPIN_GLB)
            a("s_cbranch_scc0 %s" % lab)
            stamp(7)
            a.label(lab)
        check_pending()
        a("s_cmp_eq_u32 s57, 0")
        a("s_cbranch_scc1 L_collected")
        a("s_sub_u32 s62, s62, 1")
        a("s_cbranch_scc1 L_collected")
        if o["psleep"]:
            a("s_sleep %d" % o["psleep"])
        a("s_branch L_collect")
    else:
        a.label("L_collect")
        issue_pending()
        a("s_cmp_eq_u32 s62, %d" % SPIN_GLB)
        a("s_cbranch_scc0 L_nowait")
        a("s_waitcnt vmcnt(0)")
        a("s_branch L_chk")
        a.label("L_nowait")
        a("s_sleep %d" % o["pipe"])
        a.label("L_chk")
        check_pending()
        a("s_cmp_eq_u32 s57, 0")
        a("s_cbranch_scc1 L_collected")
        a("s_sub_u32 s62, s62, 1")
        a("s_cbranch_scc0 L_collect")
    a.label("L_collected")
    stamp(3)
    S = BR
    for m in range(2):
        for i in range(2):
            for t in range(4):
                q = [C + 4 * (2 * (4 * m + k) + i) + t for k in range(4)]
                d = S + 8 * m + 4 * i + t
                a("v_add_f32 v%d, v%d, v%d" % (d, q[0], q[1]))
                a("v_add_f32 v%d, v%d, v%d" % (d + 16, q[2], q[3]))
                a("v_add_f32 v%d, v%d, v%d" % (d, d, d + 16))
    a("v_bfe_u32 v6, v0, 3, 1")
    a("v_and_b32 v7, 7, v0")
    a("v_lshrrev_b32 v8, 4, v0")
    a("v_mul_u32_u24 v9, %d, v6" % (4 * KP_STRIDE))
    a("v_lshl_add_u32 v9, v7, 4, v9")
    a("v_lshl_add_u32 v9, v8, 1, v9")
    a("s_lshl_b32 s58, s52, 7")
    a("s_add_u32 s58, s58, %d" % L_KP)
    a("v_add_u32 v9, s58, v9")
    a("v_lshl_add_u32 v10, v7, 3, v8")
    a("v_lshlrev_b32 v10, 4, v10")
    a("v_lshl_add_u32 v10, v6, 3, v10")
    a("s_lshl_b32 s58, s52, 10")
    a("s_add_u32 s58, s58, %d" % L_VP)
    a("v_add_u32 v10, s58, v10")
    P = ACC + 16
    for i in range(2):
        b = S + 4 * i
        a("v_cvt_pk_bf16_f32 v%d, v%d, v%d" % (P + 2 * i, b, b + 1))
        a("v_cvt_pk_bf16_f32 v%d, v%d, v%d" % (P + 1 + 2 * i, b + 2, b + 3))
        b = S + 8 + 4 * i
        a("v_cvt_pk_bf16_f32 v%d, v%d, v%d" % (P + 4 + 2 * i, b, b + 1))
        a("v_cvt_pk_bf16_f32 v%d, v%d, v%d" % (P + 5 + 2 * i, b + 2, b + 3))
    for i in range(2):
        a("ds_write_b16 v9, v%d offset:%d" % (P + 2 * i, 0 * KP_STRIDE + 8 * i))
        a("ds_write_b16_d16_hi v9, v%d offset:%d" % (P + 2 * i, 1 * KP_STRIDE + 8 * i))
        a("ds_write_b16 v9, v%d offset:%d" % (P + 1 + 2 * i, 2 * KP_STRIDE + 8 * i))
        a("ds_write_b16_d16_hi v9, v%d offset:%d" % (P + 1 + 2 * i, 3 * KP_STRIDE + 8 * i))
        a("ds_write_b64 v10, v[%d:%d] offset:%d" % (P + 4 + 2 * i, P + 5 + 2 * i, 64 * i))
    a("s_waitcnt lgkmcnt(0)")
    lds_signal(F_READY)
    stamp(4)
    if dry:
        a("s_cbranch_execz L_dryret1")
    a("s_cmp_eq_u32 s63, 2")
    a("s_cbranch_scc0 L_kvend")
    if not o["diag"]:
        pubflag()
    a.label("L_kvend")
    if stamps:
        a("s_waitcnt lgkmcnt(0)")
        a("s_mov_b32 s74, %s" % ("s80" if o["stampE"] else "s78"))
        a("s_sub_u32 s79, %d, s62" % SPIN_GLB)
    a("s_branch L_fin")
    a.label("L_slow")
    pubflag()
    a("s_mov_b32 s62, %d" % SPIN_GLB)
    a("s_mov_b64 exec, 1")
    a.label("L_slowpoll")
    a("v_mov_b32 v6, 0")
    a("v_mov_b32 v7, 0")
    a("buffer_atomic_or_x2 v[6:7], off, s[44:47], s59 sc0 sc1")
    a("s_waitcnt vmcnt(0)")
    a("v_and_b32 v6, v6, v7")
    a("v_and_b32 v6, 0x40404040, v6")
    a("s_nop 0")
    a("v_readfirstlane_b32 s58, v6")
    a("s_cmp_eq_u32 s58, 0x40404040")
    a("s_cbranch_scc1 L_slowgo")
    a("s_sub_u32 s62, s62, 1")
    a("s_cbranch_scc1 L_slowgo")
    a("s_sleep 32")
    a("s_branch L_slowpoll")
    a.label("L_slowgo")
    a("s_mov_b64 exec, -1")
    for p in range(8):
        a("s_mov_b32 s58, %d" % (p * 6144))
        for i in range(2):
            r = C + 4 * (p * 2 + i)
            a("buffer_load_dwordx4 v[%d:%d], v3, s[40:43], s58 offen offset:%d sc1" % (r, r + 3, i * 1024))
    a("s_waitcnt vmcnt(0)")
    a("s_branch L_collected")

    a.label("L_qwave")
    a("s_barrier")
    for n in range(6):
        a("v_add_u32 v110, %d, v0" % (64 * n))
        a("v_mul_u32_u24 v111, 2731, v110")
        a("v_lshrrev_b32 v111, 17, v111")
        a("v_and_b32 v111, 7, v111")
        a("v_lshlrev_b32 v111, 4, v111")
        a("v_lshlrev_b32 v110, 4, v110")
        a("v_xor_b32 v%d, v110, v111" % (140 + n))
    a("s_sub_u32 s55, s3, %d" % NKV)
    a("s_mul_i32 s56, s55, 12288")
    if o["dbgmode"] == 1:
        a("s_cmp_eq_u32 s3, %d" % (NKV + 1))
        a("s_cbranch_scc0 L_fin")
    a("s_cmp_eq_u32 s3, %d" % (NKV + 0))
    a("s_cbranch_scc1 L_aux")
    if not o["eself"]:
        a("s_cmp_eq_u32 s3, %d" % (NKV + 1))
        a("s_cbranch_scc1 L_estage")
    if o["touch"]:
        lab = a.newlabel("Lnt")
        a("s_cmp_eq_u32 s3, %d" % (NKV + 4))
        a("s_cbranch_scc0 %s" % lab)
        a("v_mul_u32_u24 v12, 98300, v0")
        a("s_mov_b64 exec, 3")
        a("buffer_load_dword v13, v12, s[32:35], 0 offen")
        a("buffer_load_dword v14, v12, s[36:39], 0 offen")
        a("s_mov_b64 exec, -1")
        a("s_waitcnt vmcnt(0)")
        a.label(lab)
    if dry:
        a("s_cmp_eq_u32 s3, %d" % (NKV + 2))
        a("s_cbranch_scc1 L_dry1")
        a("s_cmp_eq_u32 s3, %d" % (NKV + 3))
        a("s_cbranch_scc1 L_dry2")
    a("s_branch L_qmain")
    if dry:
        a.label("L_dry1")
        a("s_mov_b64 s[90:91], 0")
        a("s_mov_b64 exec, 0")
        a("s_branch L_kvpost")
        a.label("L_dryret1")
        a("s_mov_b64 s[90:91], -1")
        a("s_mov_b64 exec, -1")
        a("s_branch L_qmain")
        a.label("L_dry2")
        a("s_mov_b64 s[90:91], 0")
        a("s_mov_b64 exec, 0")
        a("s_branch L_phase2")
        a.label("L_dryret2")
        a("s_mov_b64 s[90:91], -1")
        a("s_mov_b64 exec, -1")
        a("s_branch L_qmain")

    a.label("L_estage")
    a("v_and_b32 v3, 7, v0")
    a("v_lshrrev_b32 v4, 3, v0")
    a("v_lshlrev_b32 v2, 12, v3")
    a("v_lshl_add_u32 v2, v4, 4, v2")
    a("s_lshl_b32 s58, s23, 10")
    for k in range(8):
        a("s_mov_b32 m0, %d" % (L_E + k * 1024))
        a("s_nop 0")
        a("buffer_load_dwordx4 v2, s[28:31], s58 offen lds")
        if k < 7:
            a("s_add_u32 s58, s58, 128")
    a("s_waitcnt vmcnt(0)")
    lds_signal(F_E)
    a("s_branch L_qmain")

    a.label("L_aux")
    a("v_lshlrev_b32 v1, 4, v0")
    for r in range(12, 16):
        a("v_mov_b32 v%d, -1" % r)
    a("s_mov_b32 s58, s53")
    for n in range(6):
        if n == 4:
            a("s_add_u32 s58, s58, 4096")
        if not o["noclear"]:
            a("buffer_store_dwordx4 v[12:15], v1, s[40:43], s58 offen offset:%d" % ((n % 4) * 1024))
    a("s_getreg_b32 s57, hwreg(HW_REG_XCC_ID)")
    a("s_and_b32 s57, s57, 7")
    a("s_or_b32 s57, s57, 0x80")
    a("v_mov_b32 v2, s57")
    a("s_lshl_b32 s59, s20, 3")
    a("s_add_u32 s58, s59, s21")
    a("s_mul_i32 s57, s57, 0x01010101")
    a("s_waitcnt vmcnt(0)")
    if o["diag"]:
        a("s_branch L_auxfast")
    a("s_mov_b64 exec, 1")
    a("buffer_store_byte v2, off, s[44:47], s58")
    a("s_mov_b32 s62, %d" % o["auxpolls"])
    a.label("L_auxpoll")
    a("s_sleep %d" % o["auxsleep"])
    a("buffer_load_dwordx2 v[4:5], off, s[44:47], s59 sc1")
    a("s_waitcnt vmcnt(0)")
    a("v_readfirstlane_b32 s60, v4")
    a("v_readfirstlane_b32 s61, v5")
    a("s_and_b32 s60, s60, 0xbfbfbfbf")
    a("s_and_b32 s61, s61, 0xbfbfbfbf")
    a("s_cmp_eq_u32 s60, s57")
    a("s_cselect_b32 s60, s61, 0")
    a("s_cmp_eq_u32 s60, s57")
    a("s_cbranch_scc1 L_auxfast")
    a("s_sub_u32 s62, s62, 1")
    a("s_cbranch_scc0 L_auxpoll")
    a("s_branch L_auxdone")
    a.label("L_auxfast")
    if fast:
        a("s_mov_b64 exec, -1")
        lds_signal(F_MODE, 2)
    a.label("L_auxdone")
    a("s_mov_b64 exec, -1")
    stamp(3)

    a.label("L_qmain")
    if o["dbgmode"] in (1, 2):
        a("s_branch L_fin")
    if o["ramp"]:
        a("s_sub_u32 s57, s3, %d" % NKV)
        a("s_mul_i32 s57, s57, %d" % (3 * D // 2))
        a("s_lshr_b32 s57, s57, 3")
        a("s_add_u32 s57, s57, 1")
        lds_poll(F_TRIG, "s57", "T", sleep=o["tsleep"])
    else:
        lds_poll(F_TRIG, 1, "T", sleep=o["tsleep"])
    stamp(1)
    def q_dma(k):
        t, n = divmod(k, 6)
        a("s_add_u32 m0, s56, %d" % (L_Q + t * 6144 + n * 1024))
        if t == 1 and n == 0:
            a("s_add_u32 s57, s56, 6144")
        else:
            a("s_nop 0")
        a("buffer_load_dwordx4 v%d, s[32:35], %s offen %s lds" % (140 + n, "s56" if t == 0 else "s57", ld))
    for k in range(12):
        if k >= qdepth:
            a("s_waitcnt vmcnt(%d)" % (qdepth - 1))
        if o["early"] and k >= 6 + qdepth - 1 and k < 12:
            pass
        q_dma(k)
        if o["early"] and k >= 5 + qdepth and k < 11:
            a("ds_read_b32 v%d, v%d offset:%d" % (H1, H0, F_READY - F_TRIG))
            a("s_waitcnt lgkmcnt(0)")
            a("v_readfirstlane_b32 s63, v%d" % H1)
            a("s_cmp_ge_u32 s63, 3")
            a("s_cbranch_scc1 L_rest%d" % (k + 1))
    if o["early"]:
        a("s_branch L_allissued")
        for k in range(6 + qdepth, 12):
            a.label("L_rest%d" % k)
            q_dma(k)
        a.label("L_allissued")
    if o["qiss"]:
        lds_signal(F_QISS)
    stamp(2)
    if o["dbgmode"] == 3:
        a("s_branch L_fin")

    a.label("L_phase2")
    a("v_and_b32 v138, 15, v0")
    a("v_lshrrev_b32 v139, 4, v0")
    a("v_lshrrev_b32 v132, 1, v138")
    a("v_xor_b32 v132, v132, v139")
    a("v_lshlrev_b32 v132, 4, v132")
    a("v_mul_u32_u24 v133, 384, v138")
    a("v_add_u32 v132, v132, v133")
    a("v_add_u32 v132, s56, v132")
    a("v_xor_b32 v133, 64, v132")
    a("v_and_b32 v134, 7, v0")
    a("v_mul_u32_u24 v134, %d, v134" % KP_STRIDE)
    a("v_lshl_add_u32 v134, v139, 4, v134")
    a("v_add_u32 v134, %d, v134" % L_KP)
    a("v_lshrrev_b32 v146, 2, v138")
    a("v_and_b32 v147, 3, v138")
    a("v_lshl_add_u32 v135, v146, 3, v147")
    a("v_lshlrev_b32 v135, 4, v135")
    a("v_and_b32 v147, 1, v139")
    a("v_lshl_add_u32 v135, v147, 3, v135")
    a("v_add_u32 v135, %d, v135" % L_VP)
    a("v_lshlrev_b32 v136, 4, v0")
    a("v_cmp_gt_u32 vcc, 32, v0")
    a("v_mov_b32 v137, 0")
    a("s_nop 0")
    a("v_cndmask_b32_e64 v137, v137, 1.0, vcc")
    a("s_waitcnt vmcnt(6)")
    for m in range(6):
        a("ds_read_b128 v[%d:%d], v%d offset:%d" % (52 + 4 * m, 55 + 4 * m, 132 + (m & 1), (m >> 1) * 128))
    lds_poll(F_READY, 3, "R", dryskip=True)
    stamp(4)
    for m in range(6):
        a("ds_read_b128 v[%d:%d], v134 offset:%d" % (4 + 4 * m, 7 + 4 * m, m * 64))
    for T in range(12):
        U, b = divmod(T, 2)
        a("ds_read_b64 v[%d:%d], v135 offset:%d" % (28 + 2 * T, 29 + 2 * T, (32 * U + 4 * b) * 16))
    a("s_mov_b32 s55, 0")
    a("s_waitcnt lgkmcnt(12)")
    a("s_branch L_tile1")
    a.label("L_tile")
    a("s_waitcnt vmcnt(6)")
    for m in range(6):
        a("ds_read_b128 v[%d:%d], v%d offset:%d" % (52 + 4 * m, 55 + 4 * m, 132 + (m & 1), (m >> 1) * 128))
    a("s_waitcnt lgkmcnt(0)")
    a.label("L_tile1")
    for m in range(6):
        a("v_mfma_f32_16x16x32_bf16 v[76:79], v[%d:%d], v[%d:%d], %s" % (4 + 4 * m, 7 + 4 * m, 52 + 4 * m, 55 + 4 * m, "0" if m == 0 else "v[76:79]"))
    a("s_add_u32 s58, s56, 4096")
    a("s_nop 6")
    Z = 76
    def rnd():
        a("v_cvt_pk_bf16_f32 v80, v76, v77")
        a("v_cvt_pk_bf16_f32 v81, v78, v79")
        a("v_lshlrev_b32 v76, 16, v80")
        a("v_and_b32 v77, 0xffff0000, v80")
        a("v_lshlrev_b32 v78, 16, v81")
        a("v_and_b32 v79, 0xffff0000, v81")
    if o["round_emul"]:
        rnd()
    for t in range(4):
        a("v_mul_f32 v%d, s50, v%d" % (Z + t, Z + t))
    if o["round_emul"]:
        rnd()
    a("v_max3_f32 v82, v76, v77, v78")
    a("v_max_f32 v82, v82, v79")
    a("v_mov_b32 v83, v82")
    a("s_nop 1")
    a("v_permlane16_swap_b32 v82, v83")
    a("s_nop 1")
    a("v_max_f32 v82, v82, v83")
    a("v_mul_f32 v82, s51, v82")
    for t in range(4):
        a("v_fma_f32 v%d, v%d, s51, -v82" % (Z + t, Z + t))
    for t in range(4):
        a("v_exp_f32 v%d, v%d" % (Z + t, Z + t))
    a("s_nop 0")
    a("v_add_f32 v82, v76, v77")
    a("v_add_f32 v83, v78, v79")
    a("v_add_f32 v82, v82, v83")
    a("v_mov_b32 v83, v82")
    a("s_nop 1")
    a("v_permlane16_swap_b32 v82, v83")
    a("s_nop 1")
    a("v_add_f32 v82, v82, v83")
    a("v_rcp_f32 v82, v82")
    a("s_nop 0")
    a("v_mul_f32 v82, v82, v137")
    for t in range(4):
        a("v_mul_f32 v%d, v%d, v82" % (Z + t, Z + t))
    a("v_cvt_pk_bf16_f32 v80, v76, v77")
    a("v_cvt_pk_bf16_f32 v81, v78, v79")
    a("s_waitcnt lgkmcnt(0)")
    a("s_nop 0")
    DD = 52
    for T in range(12):
        a("v_mfma_f32_16x16x16_bf16 v[%d:%d], v[%d:%d], v[80:81], 0" % (84 + 4 * T, 87 + 4 * T, 28 + 2 * T, 29 + 2 * T))
    def dreg(T):
        return 84 + 4 * T
    for U in range(6):
        pk = dreg(2 * U)
        if U == 0:
            a("s_nop 1")
        da, db = dreg(2 * U), dreg(2 * U + 1)
        a("v_cvt_pk_bf16_f32 v%d, v%d, v%d" % (pk, da, da + 1))
        a("v_cvt_pk_bf16_f32 v%d, v%d, v%d" % (pk + 1, da + 2, da + 3))
        a("v_cvt_pk_bf16_f32 v%d, v%d, v%d" % (pk + 2, db, db + 1))
        a("v_cvt_pk_bf16_f32 v%d, v%d, v%d" % (pk + 3, db + 2, db + 3))
        a("ds_write_b128 v%d, v[%d:%d] offset:%d" % (132 + (U & 1), pk, pk + 3, (U >> 1) * 128))
    a("s_waitcnt lgkmcnt(0)")
    if o["qiss"]:
        lab = a.newlabel("Lqi")
        a("s_cmp_lg_u32 s55, 0")
        a("s_cbranch_scc1 %s" % lab)
        lds_poll(F_QISS, 8, "I", dryskip=True)
        a.label(lab)
    for n in range(6):
        a("v_add_u32 v%d, s56, v%d" % (84 + n, 140 + n))
    for n in range(6):
        a("ds_read_b128 v[%d:%d], v%d" % (52 + 4 * n, 55 + 4 * n, 84 + n))
    for n in range(6):
        a("s_waitcnt lgkmcnt(%d)" % (5 - n))
        so, imm = ("s56", n * 1024) if n < 4 else ("s58", (n - 4) * 1024)
        lab = a.newlabel("Lst")
        if dry:
            a("s_cbranch_execz %s" % lab)
        a("buffer_store_dwordx4 v[%d:%d], v136, s[36:39], %s offen offset:%d %s" % (52 + 4 * n, 55 + 4 * n, so, imm, st))
        if dry:
            a.label(lab)
    if dry:
        a("s_cbranch_execz L_dryret2")
    a("s_add_u32 s56, s56, 6144")
    a("v_add_u32 v132, 6144, v132")
    a("v_add_u32 v133, 6144, v133")
    a("s_add_u32 s55, s55, 1")
    a("s_cmp_lt_u32 s55, 2")
    a("s_cbranch_scc1 L_tile")
    stamp(5)
    a.label("L_fin")
    if o["amp"]:
        a("s_waitcnt vmcnt(0)")
        a("s_memrealtime s[84:85]")
        a("s_waitcnt lgkmcnt(0)")
        a("s_sub_u32 s86, s84, s94")
        a("s_mul_i32 s86, s86, %d" % o["amp"])
        a("s_add_u32 s86, s86, s84")
        a.label("L_amp")
        a("s_sleep 8")
        a("s_memrealtime s[84:85]")
        a("s_waitcnt lgkmcnt(0)")
        a("s_sub_u32 s87, s86, s84")
        a("s_cmp_gt_i32 s87, 0")
        a("s_cbranch_scc1 L_amp")
    if stamps:
        a("s_waitcnt vmcnt(0)")
        stamp(6)
        a("s_getreg_b32 s78, hwreg(HW_REG_XCC_ID)")
        a("s_cmp_lt_u32 s3, %d" % NKV)
        a("s_cselect_b32 s79, s79, 0")
        a("s_lshl_b32 s79, s79, 8")
        a("s_or_b32 s78, s78, s79")
        a("s_waitcnt lgkmcnt(0)")
        a("s_lshl_b32 s58, s2, 9")
        a("s_lshl_b32 s59, s3, 5")
        a("s_add_u32 s58, s58, s59")
        a("s_add_u32 s58, s58, %d" % STAMP_OFF)
        a("s_mov_b32 s40, s18"); a("s_mov_b32 s41, s19"); a("s_mov_b32 s42, 0x1000000"); a("s_mov_b32 s43, 0x20000")
        for i in range(7):
            a("v_mov_b32 v%d, s%d" % (4 + i, 64 + 2 * i))
        a("v_mov_b32 v11, s78")
        a("s_mov_b64 exec, 1")
        if stamps != "dbg":
            a("buffer_store_dwordx4 v[4:7], off, s[40:43], s58")
            a("buffer_store_dwordx4 v[8:11], off, s[40:43], s58 offset:16")
        else:
            a("v_mov_b32 v12, %d" % (L_FLAG + 16))
            a("v_not_b32 v13, v4"); a("ds_max_u32 v12, v13 offset:0")
            a("ds_max_u32 v12, v10 offset:4")
            a("s_cmp_lt_u32 s3, %d" % NKV)
            a("s_cbranch_scc0 L_dq")
            a("ds_max_u32 v12, v5 offset:8")
            a("ds_max_u32 v12, v7 offset:12")
            a("s_branch L_dq2")
            a.label("L_dq")
            a("ds_max_u32 v12, v8 offset:16")
            a("ds_max_u32 v12, v6 offset:20")
            a("ds_max_u32 v12, v9 offset:28")
            a.label("L_dq2")
            a("ds_max_u32 v12, v4 offset:24")
            a("s_waitcnt lgkmcnt(0)")
            a("v_mov_b32 v15, 1")
            a("v_mov_b32 v17, %d" % (L_FLAG + F_FIN))
            a("ds_add_rtn_u32 v16, v17, v15")
            a("s_waitcnt lgkmcnt(0)")
            a("v_readfirstlane_b32 s59, v16")
            a("s_cmp_lg_u32 s59, %d" % (NW - 1))
            a("s_cbranch_scc1 L_end")
            a("s_mov_b64 exec, 0xff")
            a("v_lshlrev_b32 v18, 2, v0")
            a("v_add_u32 v19, %d, v18" % (L_FLAG + 16))
            a("ds_read_b32 v20, v19")
            a("s_waitcnt lgkmcnt(0)")
            a("buffer_atomic_umax v20, v18, s[44:47], 0 offen sc1")
    a.label("L_end")
    a("s_endpgm")
    return wrap(["; @launch grid=(256,1,1) block=(%d,1,1) lds=%d" % (NW * 64, LDS_BYTES)], [(KN, a.text(), NVGPR, 96)])

def parse_kv(args):
    kw = {}
    for x in args:
        k, v = x.split("=", 1)
        if v in ("True", "False", "None"):
            v = eval(v)
        else:
            try: v = int(v)
            except ValueError: pass
        kw[k] = v
    return kw

if __name__ == "__main__":
    out = sys.argv[1]
    open(out, "w").write(gen(**parse_kv(sys.argv[2:])))
```

```python
import sys
from asmlib import *

L_Q = 0
L_E = 98304
L_KP = L_E + 8192
KP_STRIDE = 400
L_VP = L_KP + 8 * KP_STRIDE
L_FLAG = L_VP + 3072
LDS_BYTES = L_FLAG + 64
F_TRIG, F_READY, F_MODE, F_FIN, F_STAMP, F_E, F_JOIN, F_QISS = 0, 4, 8, 12, 16, 48, 52, 56
STAMP_OFF = 8 << 20
SPIN_LDS = 1 << 22
SPIN_GLB = 1 << 16
NKV = 3
NQ = 8
NW = NKV + NQ
RING = 12
BR = 76
ACC = 108
AOP = 140
H0, H1 = 148, 149
NVGPR = 152

DEF = dict(ld="nt", st="nt", stamps=None, qdepth=3, depth=8, trigp=None, fast=True, dry=False, xmap="xcd",
           round_emul=True, prio=True, rot=True, tsleep=1, auxsleep=32, auxpolls=3, psleep=0, pipe=0, kvonly=False, cld="nt", cst="", touch=False, cld1=None, dbgmode=0, ramp=True, rampoff=0, cdelay=0, early=True, qiss=True, noclear=False, idle=0, stampE=False, eself=True, diag=False, amp=0, ampat=None)

def gen(**kw):
    o = dict(DEF); o.update(kw)
    globals().update({"_o": o})
    ld, st, stamps, qdepth, D = o["ld"], o["st"], o["stamps"], o["qdepth"], o["depth"]
    dry, fast = o["dry"], o["fast"]
    assert D % 2 == 0 and 8 <= D <= 14
    trigp = o["trigp"] if o["trigp"] is not None else (62 - D) // 2 + 1
    a = Asm()
    def stamp(i):
        if stamps:
            a("s_memrealtime s[%d:%d]" % (64 + 2 * i, 65 + 2 * i))
    def amppt(name):
        if o["amp"] and o["ampat"] == name:
            a("s_memrealtime s[96:97]")
    def lds_poll(off, val, name, sleep=1, dryskip=False):
        lab = a.newlabel("Lp" + name); done = a.newlabel("Ld" + name)
        if dryskip:
            a("s_cbranch_execz %s" % done)
        a("s_mov_b32 s62, %d" % SPIN_LDS)
        a("v_mov_b32 v%d, %d" % (H0, L_FLAG + off))
        a.label(lab)
        a("ds_read_b32 v%d, v%d" % (H1, H0))
        a("s_waitcnt lgkmcnt(0)")
        a("v_readfirstlane_b32 s63, v%d" % H1)
        a("s_sub_u32 s62, s62, 1")
        a("s_cbranch_scc1 %s" % done)
        a("s_cmp_ge_u32 s63, %s" % val)
        a("s_cbranch_scc1 %s" % done)
        a("s_sleep %d" % sleep)
        a("s_branch %s" % lab)
        a.label(done)
    def lds_signal(off, val=1):
        a("v_mov_b32 v%d, %d" % (H0, L_FLAG + off))
        a("v_mov_b32 v%d, %d" % (H1, val))
        a("s_and_b32 exec_lo, s90, 1")
        a("s_mov_b32 exec_hi, 0")
        a("ds_add_u32 v%d, v%d" % (H0, H1))
        a("s_mov_b64 exec, s[90:91]")
    def pubflag():
        lab = a.newlabel("Lpf")
        a("s_waitcnt vmcnt(0)")
        a("v_mov_b32 v%d, %d" % (H0, L_FLAG + F_JOIN))
        a("v_mov_b32 v%d, 1" % H1)
        a("s_mov_b64 exec, 1")
        a("ds_add_rtn_u32 v%d, v%d, v%d" % (H1, H0, H1))
        a("s_waitcnt lgkmcnt(0)")
        a("v_readfirstlane_b32 s58, v%d" % H1)
        a("s_cmp_eq_u32 s58, 2")
        a("s_cbranch_scc0 %s" % lab)
        a("s_getreg_b32 s58, hwreg(HW_REG_XCC_ID)")
        a("s_and_b32 s58, s58, 7")
        a("s_or_b32 s58, s58, 0xc0")
        a("v_mov_b32 v%d, s58" % H1)
        a("s_add_u32 s58, s59, s21")
        a("buffer_store_byte v%d, off, s[44:47], s58 sc1" % H1)
        a.label(lab)
        a("s_mov_b64 exec, -1")
    def kbase(vdst, sks):
        a("s_add_u32 s93, %s, s92" % sks)
        a("s_and_b32 s93, s93, 7")
        a("s_mul_i32 s93, s93, 24576")
        a("s_cmp_ge_u32 %s, 8" % sks)
        a("s_cselect_b32 s93, 0x1000000, s93")
        a("v_add_u32 v%d, s93, v5" % vdst)

    stamp(0)
    if o["amp"]:
        a("s_memrealtime s[94:95]")
        a("s_memrealtime s[96:97]")
    a("s_cmp_ge_u32 s2, 256")
    a("s_cbranch_scc1 L_end")
    a("s_load_dwordx16 s[4:19], s[0:1], 0")
    a("v_lshrrev_b32 v1, 6, v0")
    a("v_and_b32 v0, 63, v0")
    a("v_readfirstlane_b32 s3, v1")
    if o["xmap"] == "xcd":
        a("s_lshr_b32 s20, s2, 6")
        a("s_lshl_b32 s20, s20, 3")
        a("s_and_b32 s21, s2, 7")
        a("s_add_u32 s20, s20, s21")
        a("s_lshr_b32 s21, s2, 3")
        a("s_and_b32 s21, s21, 7")
    else:
        a("s_lshr_b32 s20, s2, 3")
        a("s_and_b32 s21, s2, 7")
    a("s_and_b32 s22, s21, 1")
    a("s_lshr_b32 s23, s21, 1")
    a("v_and_b32 v3, 7, v0")
    a("v_lshrrev_b32 v4, 3, v0")
    a("v_mul_u32_u24 v1, 3072, v4")
    a("v_lshl_add_u32 v1, v3, 4, v1")
    a("s_lshl_b32 s52, s3, 7")
    a("v_add_u32 v5, s52, v1")
    if o["rot"]:
        a("s_lshr_b32 s92, s2, 3")
        a("s_add_u32 s92, s92, s2")
        a("s_and_b32 s92, s92, 7")
    else:
        a("s_mov_b32 s92, 0")
    a("s_mul_i32 s93, s92, 24576")
    a("v_add_u32 v6, s93, v5")
    a("s_add_u32 s93, s92, 1")
    a("s_and_b32 s93, s93, 7")
    a("s_mul_i32 s93, s93, 24576")
    a("v_add_u32 v7, s93, v5")
    a("s_mul_i32 s58, s20, 786432")
    a("s_mul_i32 s59, s23, 196608")
    a("s_add_u32 s59, s59, s58")
    a("s_mov_b32 s26, 196608")
    a("s_mov_b32 s27, 0x20000")
    a("s_mov_b64 s[90:91], -1")
    a("s_cmp_eq_u32 s22, 0")
    a("s_waitcnt lgkmcnt(0)")
    a("s_cselect_b32 s24, s6, s8")
    a("s_cselect_b32 s25, s7, s9")
    a("s_cselect_b32 s28, s10, s12")
    a("s_cselect_b32 s29, s11, s13")
    a("s_add_u32 s24, s24, s59")
    a("s_addc_u32 s25, s25, 0")
    a("s_cmp_ge_u32 s3, %d" % NKV)
    a("s_cbranch_scc1 L_notkv0")
    if o["eself"]:
        a("s_mov_b32 s30, 32768")
        a("s_mov_b32 s31, 0x20000")
        a("v_lshlrev_b32 v2, 12, v3")
        a("v_lshl_add_u32 v2, v4, 4, v2")
        a("s_lshl_b32 s58, s23, 10")
        for k in range(8):
            a("s_mov_b32 m0, %d" % (L_E + k * 1024))
            a("s_nop 0")
            a("buffer_load_dwordx4 v2, s[28:31], s58 offen lds")
            if k < 7:
                a("s_add_u32 s58, s58, 128")
        a("s_mul_i32 s58, s20, 786432")
    def xload(slot, vb, j):
        r = RING + 4 * slot
        a("buffer_load_dwordx4 v[%d:%d], v%d, s[24:27], 0 offen offset:%d %s" % (r, r + 3, vb, j * 384, ld))
    for n in range(D):
        xload(n, 6 + n // 8, n % 8)
    amppt("issued0")
    a.label("L_notkv0")
    a("s_mov_b32 s30, 32768")
    a("s_mov_b32 s31, 0x20000")
    a("s_mul_i32 s59, s21, 98304")
    a("s_add_u32 s58, s58, s59")
    a("s_add_u32 s32, s4, s58")
    a("s_addc_u32 s33, s5, 0")
    a("s_mov_b32 s34, 98304")
    a("s_mov_b32 s35, 0x20000")
    a("s_add_u32 s36, s14, s58")
    a("s_addc_u32 s37, s15, 0")
    a("s_mov_b32 s38, 98304")
    a("s_mov_b32 s39, 0x20000")
    a("s_mul_i32 s58, s20, 49152")
    a("s_add_u32 s40, s18, s58")
    a("s_addc_u32 s41, s19, 0")
    a("s_mov_b32 s42, 49152")
    a("s_mov_b32 s43, 0x20000")
    a("s_mov_b32 s44, s16")
    a("s_mov_b32 s45, s17")
    a("s_mov_b32 s46, 256")
    a("s_mov_b32 s47, 0x20000")
    a("s_mov_b32 s48, 0x05040100")
    a("s_mov_b32 s49, 0x07060302")
    a("s_mov_b32 s50, 0x3d93cd3a")
    a("s_mov_b32 s51, 0x3fb8aa3b")
    a("s_lshl_b32 s53, s22, 2")
    a("s_add_u32 s53, s53, s23")
    a("s_mul_i32 s53, s53, 6144")
    a("s_cmp_lg_u32 s3, %d" % (NW - 1))
    a("s_cbranch_scc1 L_noinit")
    a("v_lshlrev_b32 v110, 2, v0")
    a("v_add_u32 v110, %d, v110" % L_FLAG)
    a("v_mov_b32 v111, 0")
    a("s_mov_b64 exec, 0xffff")
    a("ds_write_b32 v110, v111")
    a("s_mov_b64 exec, -1")
    a("s_waitcnt lgkmcnt(0)")
    a.label("L_noinit")
    a("s_cmp_ge_u32 s3, %d" % NKV)
    a("s_cbranch_scc1 L_qwave")

    for r in range(ACC, ACC + 32):
        a("v_mov_b32 v%d, 0" % r)
    a("v_lshlrev_b32 v11, 4, v0")
    a("v_add_u32 v11, %d, v11" % L_E)
    a("s_mov_b32 s54, 0")
    if o["prio"]:
        a("s_setprio 2")
    a("s_barrier")
    a.label("L_kvloop")
    q0 = D // 8
    qs = sorted(set((2 * i + D) // 8 for i in range(8)) | set((2 * i + 1 + D) // 8 for i in range(8)))
    a("s_lshl_b32 s55, s54, 1")
    for k, q in enumerate(qs):
        a("s_add_u32 s56, s55, %d" % q)
        kbase(6 + k, "s56")
    for i in range(8):
        a("s_waitcnt vmcnt(%d)" % (D - 2))
        for u in range(2):
            n = 2 * i + u + D
            xload(n % 16, 6 + qs.index(n // 8), n % 8)
        P_last_iter = 24 + i
        if o["ramp"]:
            first = 32 - D // 2 - o["rampoff"]
            for itx in (2, 3):
                Pn = 8 * itx + i
                if first <= Pn < first + D // 2:
                    lab = a.newlabel("Lnt")
                    a("s_cmp_lg_u32 s54, %d" % itx)
                    a("s_cbranch_scc1 %s" % lab)
                    lds_signal(F_TRIG)
                    a.label(lab)
        elif i == trigp % 8:
            lab = a.newlabel("Lnt")
            a("s_cmp_lg_u32 s54, %d" % (trigp // 8))
            a("s_cbranch_scc1 %s" % lab)
            lds_signal(F_TRIG)
            a.label(lab)
        jj = i % 4
        if jj == 2:
            h = i // 4
            if h == 0:
                lab = a.newlabel("Lne")
                a("s_cmp_lg_u32 s54, 0")
                a("s_cbranch_scc1 %s" % lab)
                if not o["eself"]:
                    lds_poll(F_E, 1, "E")
                amppt("first")
                if o["stampE"]:
                    a("s_memrealtime s[80:81]")
                a.label(lab)
            a("s_add_u32 s93, s55, s92")
            if h:
                a("s_add_u32 s93, s93, 1")
            a("s_and_b32 s93, s93, 7")
            a("s_lshl_b32 s93, s93, 10")
            a("v_add_u32 v10, s93, v11")
            a("ds_read_b128 v[%d:%d], v10" % (AOP + 4 * h, AOP + 4 * h + 3))
        r0 = RING + 8 * i; r1 = r0 + 4
        for m in range(4):
            a("v_perm_b32 v%d, v%d, v%d, s48" % (BR + 4 * (2 * m) + jj, r1 + m, r0 + m))
            a("v_perm_b32 v%d, v%d, v%d, s49" % (BR + 4 * (2 * m + 1) + jj, r1 + m, r0 + m))
        if jj == 3:
            h = i // 4
            a("s_waitcnt lgkmcnt(0)")
            a("s_nop 0")
            for e in range(8):
                a("v_mfma_f32_16x16x32_bf16 v[%d:%d], v[%d:%d], v[%d:%d], v[%d:%d]" % (ACC + 4 * e, ACC + 3 + 4 * e, AOP + 4 * h, AOP + 4 * h + 3, BR + 4 * e, BR + 3 + 4 * e, ACC + 4 * e, ACC + 3 + 4 * e))
    a("s_add_u32 s54, s54, 1")
    a("s_cmp_lt_u32 s54, 4")
    a("s_cbranch_scc1 L_kvloop")
    stamp(1)
    amppt("kvend")
    if o["dbgmode"] in (1, 2, 3):
        a("s_branch L_fin")
    a.label("L_kvpost")
    a("s_and_b32 s52, s3, 3")
    a("v_lshrrev_b32 v9, 5, v0")
    a("v_lshlrev_b32 v9, 10, v9")
    a("v_bfe_u32 v8, v0, 4, 1")
    a("v_lshl_add_u32 v9, v8, 7, v9")
    a("v_and_b32 v8, 7, v0")
    a("v_lshl_add_u32 v9, v8, 4, v9")
    a("s_lshl_b32 s58, s52, 11")
    a("v_add_u32 v9, s58, v9")
    a("v_lshlrev_b32 v3, 4, v0")
    a("v_add_u32 v3, s58, v3")
    a("v_mov_b32 v%d, %d" % (H0, L_FLAG))
    a("ds_read_b32 v%d, v%d offset:%d" % (H1, H0, F_MODE))
    for e in range(4):
        for t in range(4):
            a("v_permlane32_swap_b32 v%d, v%d" % (ACC + 4 * e + t, ACC + 16 + 4 * e + t))
    for e in range(4):
        for t in range(4):
            x = ACC + 4 * e + t; y = ACC + 16 + 4 * e + t
            a("v_add_f32_dpp v%d, v%d, v%d row_ror:8 row_mask:0xf bank_mask:0xf" % (x, y, x))
    for e in range(4):
        for t in range(4):
            x = ACC + 4 * e + t
            a("v_min_u32 v%d, -2, v%d" % (x, x))
    a("s_waitcnt lgkmcnt(0)")
    a("v_readfirstlane_b32 s63, v%d" % H1)
    a("s_lshl_b32 s59, s20, 3")
    a("s_cbranch_execz L_pubdone")
    a("s_and_b32 exec_lo, s90, 0x00ff00ff")
    a("s_and_b32 exec_hi, s91, 0x00ff00ff")
    a("s_cmp_eq_u32 s63, 2")
    a("s_cbranch_scc1 L_pubfast")
    for e in range(4):
        a("buffer_store_dwordx4 v[%d:%d], v9, s[40:43], s53 offen offset:%d sc1" % (ACC + 4 * e, ACC + 3 + 4 * e, e * 256))
    a("s_mov_b64 exec, s[90:91]")
    a("s_branch L_slow")
    a.label("L_pubfast")
    for e in range(4):
        a("buffer_store_dwordx4 v[%d:%d], v9, s[40:43], s53 offen offset:%d %s" % (ACC + 4 * e, ACC + 3 + 4 * e, e * 256, o["cst"]))
    a("s_mov_b64 exec, s[90:91]")
    a.label("L_pubdone")
    stamp(2)
    C = RING
    a("s_and_b32 s57, s90, 0xff")
    a("s_mov_b32 s62, %d" % SPIN_GLB)
    if o["cdelay"]:
        lab = a.newlabel("Lcd")
        a("s_cbranch_execz %s" % lab)
        a("s_sleep %d" % o["cdelay"])
        a.label(lab)
    def issue_pending(fl=None):
        fl = o["cld"] if fl is None else fl
        for p in range(8):
            lab = a.newlabel("Lc")
            a("s_bitcmp1_b32 s57, %d" % p)
            a("s_cbranch_scc0 %s" % lab)
            a("s_mov_b32 s58, %d" % (p * 6144))
            for i in range(2):
                r = C + 4 * (p * 2 + i)
                a("buffer_load_dwordx4 v[%d:%d], v3, s[40:43], s58 offen offset:%d %s" % (r, r + 3, i * 1024, fl))
            a.label(lab)
    def check_pending():
        for p in range(8):
            lab = a.newlabel("Lk")
            r = C + 8 * p
            a("s_bitcmp1_b32 s57, %d" % p)
            a("s_cbranch_scc0 %s" % lab)
            a("v_max3_u32 v8, v%d, v%d, v%d" % (r, r + 1, r + 2))
            a("v_max3_u32 v8, v8, v%d, v%d" % (r + 3, r + 4))
            a("v_max3_u32 v8, v8, v%d, v%d" % (r + 5, r + 6))
            a("v_max_u32 v8, v8, v%d" % (r + 7))
            a("v_cmp_eq_u32 vcc, -1, v8")
            a("s_cbranch_vccnz %s" % lab)
            a("s_bitset0_b32 s57, %d" % p)
            a.label(lab)
    if not o["pipe"]:
        if o["cld1"] is not None:
            issue_pending(o["cld1"])
            a("s_branch L_collect1")
        a.label("L_collect")
        issue_pending()
        a.label("L_collect1")
        a("s_waitcnt vmcnt(0)")
        if stamps:
            lab = a.newlabel("Lfa")
            a("s_cmp_eq_u32 s62, %d" % SPIN_GLB)
            a("s_cbranch_scc0 %s" % lab)
            stamp(7)
            a.label(lab)
        check_pending()
        a("s_cmp_eq_u32 s57, 0")
        a("s_cbranch_scc1 L_collected")
        a("s_sub_u32 s62, s62, 1")
        a("s_cbranch_scc1 L_collected")
        if o["psleep"]:
            a("s_sleep %d" % o["psleep"])
        a("s_branch L_collect")
    else:
        a.label("L_collect")
        issue_pending()
        a("s_cmp_eq_u32 s62, %d" % SPIN_GLB)
        a("s_cbranch_scc0 L_nowait")
        a("s_waitcnt vmcnt(0)")
        a("s_branch L_chk")
        a.label("L_nowait")
        a("s_sleep %d" % o["pipe"])
        a.label("L_chk")
        check_pending()
        a("s_cmp_eq_u32 s57, 0")
        a("s_cbranch_scc1 L_collected")
        a("s_sub_u32 s62, s62, 1")
        a("s_cbranch_scc0 L_collect")
    a.label("L_collected")
    stamp(3)
    S = BR
    for m in range(2):
        for i in range(2):
            for t in range(4):
                q = [C + 4 * (2 * (4 * m + k) + i) + t for k in range(4)]
                d = S + 8 * m + 4 * i + t
                a("v_add_f32 v%d, v%d, v%d" % (d, q[0], q[1]))
                a("v_add_f32 v%d, v%d, v%d" % (d + 16, q[2], q[3]))
                a("v_add_f32 v%d, v%d, v%d" % (d, d, d + 16))
    a("v_bfe_u32 v6, v0, 3, 1")
    a("v_and_b32 v7, 7, v0")
    a("v_lshrrev_b32 v8, 4, v0")
    a("v_mul_u32_u24 v9, %d, v6" % (4 * KP_STRIDE))
    a("v_lshl_add_u32 v9, v7, 4, v9")
    a("v_lshl_add_u32 v9, v8, 1, v9")
    a("s_lshl_b32 s58, s52, 7")
    a("s_add_u32 s58, s58, %d" % L_KP)
    a("v_add_u32 v9, s58, v9")
    a("v_lshl_add_u32 v10, v7, 3, v8")
    a("v_lshlrev_b32 v10, 4, v10")
    a("v_lshl_add_u32 v10, v6, 3, v10")
    a("s_lshl_b32 s58, s52, 10")
    a("s_add_u32 s58, s58, %d" % L_VP)
    a("v_add_u32 v10, s58, v10")
    P = ACC + 16
    for i in range(2):
        b = S + 4 * i
        a("v_cvt_pk_bf16_f32 v%d, v%d, v%d" % (P + 2 * i, b, b + 1))
        a("v_cvt_pk_bf16_f32 v%d, v%d, v%d" % (P + 1 + 2 * i, b + 2, b + 3))
        b = S + 8 + 4 * i
        a("v_cvt_pk_bf16_f32 v%d, v%d, v%d" % (P + 4 + 2 * i, b, b + 1))
        a("v_cvt_pk_bf16_f32 v%d, v%d, v%d" % (P + 5 + 2 * i, b + 2, b + 3))
    for i in range(2):
        a("ds_write_b16 v9, v%d offset:%d" % (P + 2 * i, 0 * KP_STRIDE + 8 * i))
        a("ds_write_b16_d16_hi v9, v%d offset:%d" % (P + 2 * i, 1 * KP_STRIDE + 8 * i))
        a("ds_write_b16 v9, v%d offset:%d" % (P + 1 + 2 * i, 2 * KP_STRIDE + 8 * i))
        a("ds_write_b16_d16_hi v9, v%d offset:%d" % (P + 1 + 2 * i, 3 * KP_STRIDE + 8 * i))
        a("ds_write_b64 v10, v[%d:%d] offset:%d" % (P + 4 + 2 * i, P + 5 + 2 * i, 64 * i))
    a("s_waitcnt lgkmcnt(0)")
    lds_signal(F_READY)
    amppt("ready")
    stamp(4)
    if dry:
        a("s_cbranch_execz L_dryret1")
    a("s_cmp_eq_u32 s63, 2")
    a("s_cbranch_scc0 L_kvend")
    if not o["diag"]:
        pubflag()
    a.label("L_kvend")
    if stamps:
        a("s_waitcnt lgkmcnt(0)")
        a("s_mov_b32 s74, %s" % ("s80" if o["stampE"] else "s78"))
        a("s_sub_u32 s79, %d, s62" % SPIN_GLB)
    a("s_branch L_fin")
    a.label("L_slow")
    pubflag()
    a("s_mov_b32 s62, %d" % SPIN_GLB)
    a("s_mov_b64 exec, 1")
    a.label("L_slowpoll")
    a("v_mov_b32 v6, 0")
    a("v_mov_b32 v7, 0")
    a("buffer_atomic_or_x2 v[6:7], off, s[44:47], s59 sc0 sc1")
    a("s_waitcnt vmcnt(0)")
    a("v_and_b32 v6, v6, v7")
    a("v_and_b32 v6, 0x40404040, v6")
    a("s_nop 0")
    a("v_readfirstlane_b32 s58, v6")
    a("s_cmp_eq_u32 s58, 0x40404040")
    a("s_cbranch_scc1 L_slowgo")
    a("s_sub_u32 s62, s62, 1")
    a("s_cbranch_scc1 L_slowgo")
    a("s_sleep 32")
    a("s_branch L_slowpoll")
    a.label("L_slowgo")
    a("s_mov_b64 exec, -1")
    for p in range(8):
        a("s_mov_b32 s58, %d" % (p * 6144))
        for i in range(2):
            r = C + 4 * (p * 2 + i)
            a("buffer_load_dwordx4 v[%d:%d], v3, s[40:43], s58 offen offset:%d sc1" % (r, r + 3, i * 1024))
    a("s_waitcnt vmcnt(0)")
    a("s_branch L_collected")

    a.label("L_qwave")
    a("s_barrier")
    for n in range(6):
        a("v_add_u32 v110, %d, v0" % (64 * n))
        a("v_mul_u32_u24 v111, 2731, v110")
        a("v_lshrrev_b32 v111, 17, v111")
        a("v_and_b32 v111, 7, v111")
        a("v_lshlrev_b32 v111, 4, v111")
        a("v_lshlrev_b32 v110, 4, v110")
        a("v_xor_b32 v%d, v110, v111" % (140 + n))
    a("s_sub_u32 s55, s3, %d" % NKV)
    a("s_mul_i32 s56, s55, 12288")
    if o["dbgmode"] == 1:
        a("s_cmp_eq_u32 s3, %d" % (NKV + 1))
        a("s_cbranch_scc0 L_fin")
    a("s_cmp_eq_u32 s3, %d" % (NKV + 0))
    a("s_cbranch_scc1 L_aux")
    if not o["eself"]:
        a("s_cmp_eq_u32 s3, %d" % (NKV + 1))
        a("s_cbranch_scc1 L_estage")
    if o["touch"]:
        lab = a.newlabel("Lnt")
        a("s_cmp_eq_u32 s3, %d" % (NKV + 4))
        a("s_cbranch_scc0 %s" % lab)
        a("v_mul_u32_u24 v12, 98300, v0")
        a("s_mov_b64 exec, 3")
        a("buffer_load_dword v13, v12, s[32:35], 0 offen")
        a("buffer_load_dword v14, v12, s[36:39], 0 offen")
        a("s_mov_b64 exec, -1")
        a("s_waitcnt vmcnt(0)")
        a.label(lab)
    if dry:
        a("s_cmp_eq_u32 s3, %d" % (NKV + 2))
        a("s_cbranch_scc1 L_dry1")
        a("s_cmp_eq_u32 s3, %d" % (NKV + 3))
        a("s_cbranch_scc1 L_dry2")
    a("s_branch L_qmain")
    if dry:
        a.label("L_dry1")
        a("s_mov_b64 s[90:91], 0")
        a("s_mov_b64 exec, 0")
        a("s_branch L_kvpost")
        a.label("L_dryret1")
        a("s_mov_b64 s[90:91], -1")
        a("s_mov_b64 exec, -1")
        a("s_branch L_qmain")
        a.label("L_dry2")
        a("s_mov_b64 s[90:91], 0")
        a("s_mov_b64 exec, 0")
        a("s_branch L_phase2")
        a.label("L_dryret2")
        a("s_mov_b64 s[90:91], -1")
        a("s_mov_b64 exec, -1")
        a("s_branch L_qmain")

    a.label("L_estage")
    a("v_and_b32 v3, 7, v0")
    a("v_lshrrev_b32 v4, 3, v0")
    a("v_lshlrev_b32 v2, 12, v3")
    a("v_lshl_add_u32 v2, v4, 4, v2")
    a("s_lshl_b32 s58, s23, 10")
    for k in range(8):
        a("s_mov_b32 m0, %d" % (L_E + k * 1024))
        a("s_nop 0")
        a("buffer_load_dwordx4 v2, s[28:31], s58 offen lds")
        if k < 7:
            a("s_add_u32 s58, s58, 128")
    a("s_waitcnt vmcnt(0)")
    lds_signal(F_E)
    a("s_branch L_qmain")

    a.label("L_aux")
    a("v_lshlrev_b32 v1, 4, v0")
    for r in range(12, 16):
        a("v_mov_b32 v%d, -1" % r)
    a("s_mov_b32 s58, s53")
    for n in range(6):
        if n == 4:
            a("s_add_u32 s58, s58, 4096")
        if not o["noclear"]:
            a("buffer_store_dwordx4 v[12:15], v1, s[40:43], s58 offen offset:%d" % ((n % 4) * 1024))
    a("s_getreg_b32 s57, hwreg(HW_REG_XCC_ID)")
    a("s_and_b32 s57, s57, 7")
    a("s_or_b32 s57, s57, 0x80")
    a("v_mov_b32 v2, s57")
    a("s_lshl_b32 s59, s20, 3")
    a("s_add_u32 s58, s59, s21")
    a("s_mul_i32 s57, s57, 0x01010101")
    a("s_waitcnt vmcnt(0)")
    if o["diag"]:
        a("s_branch L_auxfast")
    a("s_mov_b64 exec, 1")
    a("buffer_store_byte v2, off, s[44:47], s58")
    a("s_mov_b32 s62, %d" % o["auxpolls"])
    a.label("L_auxpoll")
    a("s_sleep %d" % o["auxsleep"])
    a("buffer_load_dwordx2 v[4:5], off, s[44:47], s59 sc1")
    a("s_waitcnt vmcnt(0)")
    a("v_readfirstlane_b32 s60, v4")
    a("v_readfirstlane_b32 s61, v5")
    a("s_and_b32 s60, s60, 0xbfbfbfbf")
    a("s_and_b32 s61, s61, 0xbfbfbfbf")
    a("s_cmp_eq_u32 s60, s57")
    a("s_cselect_b32 s60, s61, 0")
    a("s_cmp_eq_u32 s60, s57")
    a("s_cbranch_scc1 L_auxfast")
    a("s_sub_u32 s62, s62, 1")
    a("s_cbranch_scc0 L_auxpoll")
    a("s_branch L_auxdone")
    a.label("L_auxfast")
    if fast:
        a("s_mov_b64 exec, -1")
        lds_signal(F_MODE, 2)
    a.label("L_auxdone")
    a("s_mov_b64 exec, -1")
    stamp(3)

    a.label("L_qmain")
    if o["dbgmode"] in (1, 2):
        a("s_branch L_fin")
    if o["ramp"]:
        a("s_sub_u32 s57, s3, %d" % NKV)
        a("s_mul_i32 s57, s57, %d" % (3 * D // 2))
        a("s_lshr_b32 s57, s57, 3")
        a("s_add_u32 s57, s57, 1")
        lds_poll(F_TRIG, "s57", "T", sleep=o["tsleep"])
    else:
        lds_poll(F_TRIG, 1, "T", sleep=o["tsleep"])
    stamp(1)
    def q_dma(k):
        t, n = divmod(k, 6)
        a("s_add_u32 m0, s56, %d" % (L_Q + t * 6144 + n * 1024))
        if t == 1 and n == 0:
            a("s_add_u32 s57, s56, 6144")
        else:
            a("s_nop 0")
        a("buffer_load_dwordx4 v%d, s[32:35], %s offen %s lds" % (140 + n, "s56" if t == 0 else "s57", ld))
    for k in range(12):
        if k >= qdepth:
            a("s_waitcnt vmcnt(%d)" % (qdepth - 1))
        if o["early"] and k >= 6 + qdepth - 1 and k < 12:
            pass
        q_dma(k)
        if o["early"] and k >= 5 + qdepth and k < 11:
            a("ds_read_b32 v%d, v%d offset:%d" % (H1, H0, F_READY - F_TRIG))
            a("s_waitcnt lgkmcnt(0)")
            a("v_readfirstlane_b32 s63, v%d" % H1)
            a("s_cmp_ge_u32 s63, 3")
            a("s_cbranch_scc1 L_rest%d" % (k + 1))
    if o["early"]:
        a("s_branch L_allissued")
        for k in range(6 + qdepth, 12):
            a.label("L_rest%d" % k)
            q_dma(k)
        a.label("L_allissued")
    if o["qiss"]:
        lds_signal(F_QISS)
    amppt("qiss")
    stamp(2)
    if o["dbgmode"] == 3:
        a("s_branch L_fin")

    a.label("L_phase2")
    a("v_and_b32 v138, 15, v0")
    a("v_lshrrev_b32 v139, 4, v0")
    a("v_lshrrev_b32 v132, 1, v138")
    a("v_xor_b32 v132, v132, v139")
    a("v_lshlrev_b32 v132, 4, v132")
    a("v_mul_u32_u24 v133, 384, v138")
    a("v_add_u32 v132, v132, v133")
    a("v_add_u32 v132, s56, v132")
    a("v_xor_b32 v133, 64, v132")
    a("v_and_b32 v134, 7, v0")
    a("v_mul_u32_u24 v134, %d, v134" % KP_STRIDE)
    a("v_lshl_add_u32 v134, v139, 4, v134")
    a("v_add_u32 v134, %d, v134" % L_KP)
    a("v_lshrrev_b32 v146, 2, v138")
    a("v_and_b32 v147, 3, v138")
    a("v_lshl_add_u32 v135, v146, 3, v147")
    a("v_lshlrev_b32 v135, 4, v135")
    a("v_and_b32 v147, 1, v139")
    a("v_lshl_add_u32 v135, v147, 3, v135")
    a("v_add_u32 v135, %d, v135" % L_VP)
    a("v_lshlrev_b32 v136, 4, v0")
    a("v_cmp_gt_u32 vcc, 32, v0")
    a("v_mov_b32 v137, 0")
    a("s_nop 0")
    a("v_cndmask_b32_e64 v137, v137, 1.0, vcc")
    a("s_waitcnt vmcnt(6)")
    for m in range(6):
        a("ds_read_b128 v[%d:%d], v%d offset:%d" % (52 + 4 * m, 55 + 4 * m, 132 + (m & 1), (m >> 1) * 128))
    lds_poll(F_READY, 3, "R", dryskip=True)
    stamp(4)
    for m in range(6):
        a("ds_read_b128 v[%d:%d], v134 offset:%d" % (4 + 4 * m, 7 + 4 * m, m * 64))
    for T in range(12):
        U, b = divmod(T, 2)
        a("ds_read_b64 v[%d:%d], v135 offset:%d" % (28 + 2 * T, 29 + 2 * T, (32 * U + 4 * b) * 16))
    a("s_mov_b32 s55, 0")
    a("s_waitcnt lgkmcnt(12)")
    a("s_branch L_tile1")
    a.label("L_tile")
    a("s_waitcnt vmcnt(6)")
    for m in range(6):
        a("ds_read_b128 v[%d:%d], v%d offset:%d" % (52 + 4 * m, 55 + 4 * m, 132 + (m & 1), (m >> 1) * 128))
    a("s_waitcnt lgkmcnt(0)")
    a.label("L_tile1")
    for m in range(6):
        a("v_mfma_f32_16x16x32_bf16 v[76:79], v[%d:%d], v[%d:%d], %s" % (4 + 4 * m, 7 + 4 * m, 52 + 4 * m, 55 + 4 * m, "0" if m == 0 else "v[76:79]"))
    a("s_add_u32 s58, s56, 4096")
    a("s_nop 6")
    Z = 76
    def rnd():
        a("v_cvt_pk_bf16_f32 v80, v76, v77")
        a("v_cvt_pk_bf16_f32 v81, v78, v79")
        a("v_lshlrev_b32 v76, 16, v80")
        a("v_and_b32 v77, 0xffff0000, v80")
        a("v_lshlrev_b32 v78, 16, v81")
        a("v_and_b32 v79, 0xffff0000, v81")
    if o["round_emul"]:
        rnd()
    for t in range(4):
        a("v_mul_f32 v%d, s50, v%d" % (Z + t, Z + t))
    if o["round_emul"]:
        rnd()
    a("v_max3_f32 v82, v76, v77, v78")
    a("v_max_f32 v82, v82, v79")
    a("v_mov_b32 v83, v82")
    a("s_nop 1")
    a("v_permlane16_swap_b32 v82, v83")
    a("s_nop 1")
    a("v_max_f32 v82, v82, v83")
    a("v_mul_f32 v82, s51, v82")
    for t in range(4):
        a("v_fma_f32 v%d, v%d, s51, -v82" % (Z + t, Z + t))
    for t in range(4):
        a("v_exp_f32 v%d, v%d" % (Z + t, Z + t))
    a("s_nop 0")
    a("v_add_f32 v82, v76, v77")
    a("v_add_f32 v83, v78, v79")
    a("v_add_f32 v82, v82, v83")
    a("v_mov_b32 v83, v82")
    a("s_nop 1")
    a("v_permlane16_swap_b32 v82, v83")
    a("s_nop 1")
    a("v_add_f32 v82, v82, v83")
    a("v_rcp_f32 v82, v82")
    a("s_nop 0")
    a("v_mul_f32 v82, v82, v137")
    for t in range(4):
        a("v_mul_f32 v%d, v%d, v82" % (Z + t, Z + t))
    a("v_cvt_pk_bf16_f32 v80, v76, v77")
    a("v_cvt_pk_bf16_f32 v81, v78, v79")
    a("s_waitcnt lgkmcnt(0)")
    a("s_nop 0")
    DD = 52
    for T in range(12):
        a("v_mfma_f32_16x16x16_bf16 v[%d:%d], v[%d:%d], v[80:81], 0" % (84 + 4 * T, 87 + 4 * T, 28 + 2 * T, 29 + 2 * T))
    def dreg(T):
        return 84 + 4 * T
    for U in range(6):
        pk = dreg(2 * U)
        if U == 0:
            a("s_nop 1")
        da, db = dreg(2 * U), dreg(2 * U + 1)
        a("v_cvt_pk_bf16_f32 v%d, v%d, v%d" % (pk, da, da + 1))
        a("v_cvt_pk_bf16_f32 v%d, v%d, v%d" % (pk + 1, da + 2, da + 3))
        a("v_cvt_pk_bf16_f32 v%d, v%d, v%d" % (pk + 2, db, db + 1))
        a("v_cvt_pk_bf16_f32 v%d, v%d, v%d" % (pk + 3, db + 2, db + 3))
        a("ds_write_b128 v%d, v[%d:%d] offset:%d" % (132 + (U & 1), pk, pk + 3, (U >> 1) * 128))
    a("s_waitcnt lgkmcnt(0)")
    if o["qiss"]:
        lab = a.newlabel("Lqi")
        a("s_cmp_lg_u32 s55, 0")
        a("s_cbranch_scc1 %s" % lab)
        lds_poll(F_QISS, 8, "I", dryskip=True)
        a.label(lab)
    for n in range(6):
        a("v_add_u32 v%d, s56, v%d" % (84 + n, 140 + n))
    for n in range(6):
        a("ds_read_b128 v[%d:%d], v%d" % (52 + 4 * n, 55 + 4 * n, 84 + n))
    for n in range(6):
        a("s_waitcnt lgkmcnt(%d)" % (5 - n))
        so, imm = ("s56", n * 1024) if n < 4 else ("s58", (n - 4) * 1024)
        lab = a.newlabel("Lst")
        if dry:
            a("s_cbranch_execz %s" % lab)
        a("buffer_store_dwordx4 v[%d:%d], v136, s[36:39], %s offen offset:%d %s" % (52 + 4 * n, 55 + 4 * n, so, imm, st))
        if dry:
            a.label(lab)
    if dry:
        a("s_cbranch_execz L_dryret2")
    a("s_add_u32 s56, s56, 6144")
    a("v_add_u32 v132, 6144, v132")
    a("v_add_u32 v133, 6144, v133")
    a("s_add_u32 s55, s55, 1")
    a("s_cmp_lt_u32 s55, 2")
    a("s_cbranch_scc1 L_tile")
    stamp(5)
    a.label("L_fin")
    if o["amp"]:
        a("s_waitcnt vmcnt(0)")
        a("s_memrealtime s[84:85]")
        a("s_waitcnt lgkmcnt(0)")
        a("s_sub_u32 s86, %s, s94" % ("s84" if o["ampat"] is None else "s96"))
        a("s_mul_i32 s86, s86, %d" % o["amp"])
        a("s_add_u32 s86, s86, s84")
        a.label("L_amp")
        a("s_sleep 8")
        a("s_memrealtime s[84:85]")
        a("s_waitcnt lgkmcnt(0)")
        a("s_sub_u32 s87, s86, s84")
        a("s_cmp_gt_i32 s87, 0")
        a("s_cbranch_scc1 L_amp")
    if stamps:
        a("s_waitcnt vmcnt(0)")
        stamp(6)
        a("s_getreg_b32 s78, hwreg(HW_REG_XCC_ID)")
        a("s_cmp_lt_u32 s3, %d" % NKV)
        a("s_cselect_b32 s79, s79, 0")
        a("s_lshl_b32 s79, s79, 8")
        a("s_or_b32 s78, s78, s79")
        a("s_waitcnt lgkmcnt(0)")
        a("s_lshl_b32 s58, s2, 9")
        a("s_lshl_b32 s59, s3, 5")
        a("s_add_u32 s58, s58, s59")
        a("s_add_u32 s58, s58, %d" % STAMP_OFF)
        a("s_mov_b32 s40, s18"); a("s_mov_b32 s41, s19"); a("s_mov_b32 s42, 0x1000000"); a("s_mov_b32 s43, 0x20000")
        for i in range(7):
            a("v_mov_b32 v%d, s%d" % (4 + i, 64 + 2 * i))
        a("v_mov_b32 v11, s78")
        a("s_mov_b64 exec, 1")
        if stamps != "dbg":
            a("buffer_store_dwordx4 v[4:7], off, s[40:43], s58")
            a("buffer_store_dwordx4 v[8:11], off, s[40:43], s58 offset:16")
        else:
            a("v_mov_b32 v12, %d" % (L_FLAG + 16))
            a("v_not_b32 v13, v4"); a("ds_max_u32 v12, v13 offset:0")
            a("ds_max_u32 v12, v10 offset:4")
            a("s_cmp_lt_u32 s3, %d" % NKV)
            a("s_cbranch_scc0 L_dq")
            a("ds_max_u32 v12, v5 offset:8")
            a("ds_max_u32 v12, v7 offset:12")
            a("s_branch L_dq2")
            a.label("L_dq")
            a("ds_max_u32 v12, v8 offset:16")
            a("ds_max_u32 v12, v6 offset:20")
            a("ds_max_u32 v12, v9 offset:28")
            a.label("L_dq2")
            a("ds_max_u32 v12, v4 offset:24")
            a("s_waitcnt lgkmcnt(0)")
            a("v_mov_b32 v15, 1")
            a("v_mov_b32 v17, %d" % (L_FLAG + F_FIN))
            a("ds_add_rtn_u32 v16, v17, v15")
            a("s_waitcnt lgkmcnt(0)")
            a("v_readfirstlane_b32 s59, v16")
            a("s_cmp_lg_u32 s59, %d" % (NW - 1))
            a("s_cbranch_scc1 L_end")
            a("s_mov_b64 exec, 0xff")
            a("v_lshlrev_b32 v18, 2, v0")
            a("v_add_u32 v19, %d, v18" % (L_FLAG + 16))
            a("ds_read_b32 v20, v19")
            a("s_waitcnt lgkmcnt(0)")
            a("buffer_atomic_umax v20, v18, s[44:47], 0 offen sc1")
    a.label("L_end")
    a("s_endpgm")
    return wrap(["; @launch grid=(256,1,1) block=(%d,1,1) lds=%d" % (NW * 64, LDS_BYTES)], [(KN, a.text(), NVGPR, 100)])

def parse_kv(args):
    kw = {}
    for x in args:
        k, v = x.split("=", 1)
        if v in ("True", "False", "None"):
            v = eval(v)
        else:
            try: v = int(v)
            except ValueError: pass
        kw[k] = v
    return kw

if __name__ == "__main__":
    out = sys.argv[1]
    open(out, "w").write(gen(**parse_kv(sys.argv[2:])))
```

```python
import sys
from asmlib import *

L_Q = 0
L_E = 98304
L_KP = L_E + 8192
KP_STRIDE = 400
L_VP = L_KP + 8 * KP_STRIDE
L_FLAG = L_VP + 3072
LDS_BYTES = L_FLAG + 64
F_TRIG, F_READY, F_MODE, F_FIN, F_STAMP, F_E, F_JOIN, F_QISS = 0, 4, 8, 12, 16, 48, 52, 56
STAMP_OFF = 8 << 20
SPIN_LDS = 1 << 22
SPIN_GLB = 1 << 16
NKV = 3
NQ = 8
NW = NKV + NQ
RING = 12
BR = 76
ACC = 108
AOP = 140
H0, H1 = 148, 149
NVGPR = 152

DEF = dict(ld="nt", st="nt", stamps=None, qdepth=3, depth=8, trigp=None, fast=True, dry=False, xmap="xcd",
           round_emul=True, prio=True, rot=True, tsleep=1, auxsleep=32, auxpolls=3, psleep=0, pipe=0, kvonly=False, cld="nt", cst="", touch=False, cld1=None, dbgmode=0, ramp=True, rampoff=0, cdelay=0, early=True, qiss=True, noclear=False, idle=0, stampE=False, eself=True, diag=False, amp=0, ampat=None, probe=False, psl=0, hold=0)

def gen(**kw):
    o = dict(DEF); o.update(kw)
    globals().update({"_o": o})
    ld, st, stamps, qdepth, D = o["ld"], o["st"], o["stamps"], o["qdepth"], o["depth"]
    dry, fast = o["dry"], o["fast"]
    assert D % 2 == 0 and 8 <= D <= 14
    trigp = o["trigp"] if o["trigp"] is not None else (62 - D) // 2 + 1
    a = Asm()
    def stamp(i):
        if stamps:
            a("s_memrealtime s[%d:%d]" % (64 + 2 * i, 65 + 2 * i))
    def amppt(name):
        if o["amp"] and o["ampat"] == name:
            a("s_memrealtime s[96:97]")
    def lds_poll(off, val, name, sleep=1, dryskip=False):
        lab = a.newlabel("Lp" + name); done = a.newlabel("Ld" + name)
        if dryskip:
            a("s_cbranch_execz %s" % done)
        a("s_mov_b32 s62, %d" % SPIN_LDS)
        a("v_mov_b32 v%d, %d" % (H0, L_FLAG + off))
        a.label(lab)
        a("ds_read_b32 v%d, v%d" % (H1, H0))
        a("s_waitcnt lgkmcnt(0)")
        a("v_readfirstlane_b32 s63, v%d" % H1)
        a("s_sub_u32 s62, s62, 1")
        a("s_cbranch_scc1 %s" % done)
        a("s_cmp_ge_u32 s63, %s" % val)
        a("s_cbranch_scc1 %s" % done)
        a("s_sleep %d" % sleep)
        a("s_branch %s" % lab)
        a.label(done)
    def lds_signal(off, val=1):
        a("v_mov_b32 v%d, %d" % (H0, L_FLAG + off))
        a("v_mov_b32 v%d, %d" % (H1, val))
        a("s_and_b32 exec_lo, s90, 1")
        a("s_mov_b32 exec_hi, 0")
        a("ds_add_u32 v%d, v%d" % (H0, H1))
        a("s_mov_b64 exec, s[90:91]")
    def pubflag():
        lab = a.newlabel("Lpf")
        a("s_waitcnt vmcnt(0)")
        a("v_mov_b32 v%d, %d" % (H0, L_FLAG + F_JOIN))
        a("v_mov_b32 v%d, 1" % H1)
        a("s_mov_b64 exec, 1")
        a("ds_add_rtn_u32 v%d, v%d, v%d" % (H1, H0, H1))
        a("s_waitcnt lgkmcnt(0)")
        a("v_readfirstlane_b32 s58, v%d" % H1)
        a("s_cmp_eq_u32 s58, 2")
        a("s_cbranch_scc0 %s" % lab)
        a("s_getreg_b32 s58, hwreg(HW_REG_XCC_ID)")
        a("s_and_b32 s58, s58, 7")
        a("s_or_b32 s58, s58, 0xc0")
        a("v_mov_b32 v%d, s58" % H1)
        a("s_add_u32 s58, s59, s21")
        a("buffer_store_byte v%d, off, s[44:47], s58 sc1" % H1)
        a.label(lab)
        a("s_mov_b64 exec, -1")
    def kbase(vdst, sks):
        a("s_add_u32 s93, %s, s92" % sks)
        a("s_and_b32 s93, s93, 7")
        a("s_mul_i32 s93, s93, 24576")
        a("s_cmp_ge_u32 %s, 8" % sks)
        a("s_cselect_b32 s93, 0x1000000, s93")
        a("v_add_u32 v%d, s93, v5" % vdst)

    stamp(0)
    if o["hold"]:
        a("s_memrealtime s[98:99]")
    if o["amp"]:
        a("s_memrealtime s[94:95]")
        a("s_memrealtime s[96:97]")
    a("s_cmp_ge_u32 s2, 256")
    a("s_cbranch_scc1 L_end")
    a("s_load_dwordx16 s[4:19], s[0:1], 0")
    a("v_lshrrev_b32 v1, 6, v0")
    a("v_and_b32 v0, 63, v0")
    a("v_readfirstlane_b32 s3, v1")
    if o["xmap"] == "xcd":
        a("s_lshr_b32 s20, s2, 6")
        a("s_lshl_b32 s20, s20, 3")
        a("s_and_b32 s21, s2, 7")
        a("s_add_u32 s20, s20, s21")
        a("s_lshr_b32 s21, s2, 3")
        a("s_and_b32 s21, s21, 7")
    else:
        a("s_lshr_b32 s20, s2, 3")
        a("s_and_b32 s21, s2, 7")
    a("s_and_b32 s22, s21, 1")
    a("s_lshr_b32 s23, s21, 1")
    a("v_and_b32 v3, 7, v0")
    a("v_lshrrev_b32 v4, 3, v0")
    a("v_mul_u32_u24 v1, 3072, v4")
    a("v_lshl_add_u32 v1, v3, 4, v1")
    a("s_lshl_b32 s52, s3, 7")
    a("v_add_u32 v5, s52, v1")
    if o["rot"]:
        a("s_lshr_b32 s92, s2, 3")
        a("s_add_u32 s92, s92, s2")
        a("s_and_b32 s92, s92, 7")
    else:
        a("s_mov_b32 s92, 0")
    a("s_mul_i32 s93, s92, 24576")
    a("v_add_u32 v6, s93, v5")
    a("s_add_u32 s93, s92, 1")
    a("s_and_b32 s93, s93, 7")
    a("s_mul_i32 s93, s93, 24576")
    a("v_add_u32 v7, s93, v5")
    a("s_mul_i32 s58, s20, 786432")
    a("s_mul_i32 s59, s23, 196608")
    a("s_add_u32 s59, s59, s58")
    a("s_mov_b32 s26, 196608")
    a("s_mov_b32 s27, 0x20000")
    a("s_mov_b64 s[90:91], -1")
    amppt("prekarg")
    a("s_waitcnt lgkmcnt(0)")
    amppt("karg")
    a("s_cmp_eq_u32 s22, 0")
    a("s_cselect_b32 s24, s6, s8")
    a("s_cselect_b32 s25, s7, s9")
    a("s_cselect_b32 s28, s10, s12")
    a("s_cselect_b32 s29, s11, s13")
    a("s_add_u32 s24, s24, s59")
    a("s_addc_u32 s25, s25, 0")
    a("s_cmp_ge_u32 s3, %d" % NKV)
    a("s_cbranch_scc1 L_notkv0")
    if o["eself"]:
        a("s_mov_b32 s30, 32768")
        a("s_mov_b32 s31, 0x20000")
        a("v_lshlrev_b32 v2, 12, v3")
        a("v_lshl_add_u32 v2, v4, 4, v2")
        a("s_lshl_b32 s58, s23, 10")
        for k in range(8):
            a("s_mov_b32 m0, %d" % (L_E + k * 1024))
            a("s_nop 0")
            a("buffer_load_dwordx4 v2, s[28:31], s58 offen lds")
            if k < 7:
                a("s_add_u32 s58, s58, 128")
        a("s_mul_i32 s58, s20, 786432")
    def xload(slot, vb, j):
        r = RING + 4 * slot
        a("buffer_load_dwordx4 v[%d:%d], v%d, s[24:27], 0 offen offset:%d %s" % (r, r + 3, vb, j * 384, ld))
    for n in range(D):
        xload(n, 6 + n // 8, n % 8)
    amppt("issued0")
    a.label("L_notkv0")
    a("s_mov_b32 s30, 32768")
    a("s_mov_b32 s31, 0x20000")
    a("s_mul_i32 s59, s21, 98304")
    a("s_add_u32 s58, s58, s59")
    a("s_add_u32 s32, s4, s58")
    a("s_addc_u32 s33, s5, 0")
    a("s_mov_b32 s34, 98304")
    a("s_mov_b32 s35, 0x20000")
    a("s_add_u32 s36, s14, s58")
    a("s_addc_u32 s37, s15, 0")
    a("s_mov_b32 s38, 98304")
    a("s_mov_b32 s39, 0x20000")
    a("s_mul_i32 s58, s20, 49152")
    a("s_add_u32 s40, s18, s58")
    a("s_addc_u32 s41, s19, 0")
    a("s_mov_b32 s42, 49152")
    a("s_mov_b32 s43, 0x20000")
    a("s_mov_b32 s44, s16")
    a("s_mov_b32 s45, s17")
    a("s_mov_b32 s46, 256")
    a("s_mov_b32 s47, 0x20000")
    a("s_mov_b32 s48, 0x05040100")
    a("s_mov_b32 s49, 0x07060302")
    a("s_mov_b32 s50, 0x3d93cd3a")
    a("s_mov_b32 s51, 0x3fb8aa3b")
    a("s_lshl_b32 s53, s22, 2")
    a("s_add_u32 s53, s53, s23")
    a("s_mul_i32 s53, s53, 6144")
    a("s_cmp_lg_u32 s3, %d" % (NW - 1))
    a("s_cbranch_scc1 L_noinit")
    a("v_lshlrev_b32 v110, 2, v0")
    a("v_add_u32 v110, %d, v110" % L_FLAG)
    a("v_mov_b32 v111, 0")
    a("s_mov_b64 exec, 0xffff")
    a("ds_write_b32 v110, v111")
    a("s_mov_b64 exec, -1")
    a("s_waitcnt lgkmcnt(0)")
    a.label("L_noinit")
    a("s_cmp_ge_u32 s3, %d" % NKV)
    a("s_cbranch_scc1 L_qwave")

    for r in range(ACC, ACC + 32):
        a("v_mov_b32 v%d, 0" % r)
    a("v_lshlrev_b32 v11, 4, v0")
    a("v_add_u32 v11, %d, v11" % L_E)
    a("s_mov_b32 s54, 0")
    if o["prio"]:
        a("s_setprio 2")
    a("s_barrier")
    a.label("L_kvloop")
    q0 = D // 8
    qs = sorted(set((2 * i + D) // 8 for i in range(8)) | set((2 * i + 1 + D) // 8 for i in range(8)))
    a("s_lshl_b32 s55, s54, 1")
    for k, q in enumerate(qs):
        a("s_add_u32 s56, s55, %d" % q)
        kbase(6 + k, "s56")
    for i in range(8):
        a("s_waitcnt vmcnt(%d)" % (D - 2))
        for u in range(2):
            n = 2 * i + u + D
            xload(n % 16, 6 + qs.index(n // 8), n % 8)
        P_last_iter = 24 + i
        if o["ramp"]:
            first = 32 - D // 2 - o["rampoff"]
            for itx in (2, 3):
                Pn = 8 * itx + i
                if first <= Pn < first + D // 2:
                    lab = a.newlabel("Lnt")
                    a("s_cmp_lg_u32 s54, %d" % itx)
                    a("s_cbranch_scc1 %s" % lab)
                    lds_signal(F_TRIG)
                    a.label(lab)
        elif i == trigp % 8:
            lab = a.newlabel("Lnt")
            a("s_cmp_lg_u32 s54, %d" % (trigp // 8))
            a("s_cbranch_scc1 %s" % lab)
            lds_signal(F_TRIG)
            a.label(lab)
        jj = i % 4
        if jj == 2:
            h = i // 4
            if h == 0:
                lab = a.newlabel("Lne")
                a("s_cmp_lg_u32 s54, 0")
                a("s_cbranch_scc1 %s" % lab)
                if not o["eself"]:
                    lds_poll(F_E, 1, "E")
                amppt("first")
                if o["stampE"]:
                    a("s_memrealtime s[80:81]")
                a.label(lab)
            a("s_add_u32 s93, s55, s92")
            if h:
                a("s_add_u32 s93, s93, 1")
            a("s_and_b32 s93, s93, 7")
            a("s_lshl_b32 s93, s93, 10")
            a("v_add_u32 v10, s93, v11")
            a("ds_read_b128 v[%d:%d], v10" % (AOP + 4 * h, AOP + 4 * h + 3))
        r0 = RING + 8 * i; r1 = r0 + 4
        for m in range(4):
            a("v_perm_b32 v%d, v%d, v%d, s48" % (BR + 4 * (2 * m) + jj, r1 + m, r0 + m))
            a("v_perm_b32 v%d, v%d, v%d, s49" % (BR + 4 * (2 * m + 1) + jj, r1 + m, r0 + m))
        if jj == 3:
            h = i // 4
            a("s_waitcnt lgkmcnt(0)")
            a("s_nop 0")
            for e in range(8):
                a("v_mfma_f32_16x16x32_bf16 v[%d:%d], v[%d:%d], v[%d:%d], v[%d:%d]" % (ACC + 4 * e, ACC + 3 + 4 * e, AOP + 4 * h, AOP + 4 * h + 3, BR + 4 * e, BR + 3 + 4 * e, ACC + 4 * e, ACC + 3 + 4 * e))
    a("s_add_u32 s54, s54, 1")
    a("s_cmp_lt_u32 s54, 4")
    a("s_cbranch_scc1 L_kvloop")
    stamp(1)
    amppt("kvend")
    if o["dbgmode"] in (1, 2, 3):
        a("s_branch L_fin")
    a.label("L_kvpost")
    a("s_and_b32 s52, s3, 3")
    a("v_lshrrev_b32 v9, 5, v0")
    a("v_lshlrev_b32 v9, 10, v9")
    a("v_bfe_u32 v8, v0, 4, 1")
    a("v_lshl_add_u32 v9, v8, 7, v9")
    a("v_and_b32 v8, 7, v0")
    a("v_lshl_add_u32 v9, v8, 4, v9")
    a("s_lshl_b32 s58, s52, 11")
    a("v_add_u32 v9, s58, v9")
    a("v_lshlrev_b32 v3, 4, v0")
    a("v_add_u32 v3, s58, v3")
    a("v_mov_b32 v%d, %d" % (H0, L_FLAG))
    a("ds_read_b32 v%d, v%d offset:%d" % (H1, H0, F_MODE))
    for e in range(4):
        for t in range(4):
            a("v_permlane32_swap_b32 v%d, v%d" % (ACC + 4 * e + t, ACC + 16 + 4 * e + t))
    for e in range(4):
        for t in range(4):
            x = ACC + 4 * e + t; y = ACC + 16 + 4 * e + t
            a("v_add_f32_dpp v%d, v%d, v%d row_ror:8 row_mask:0xf bank_mask:0xf" % (x, y, x))
    for e in range(4):
        for t in range(4):
            x = ACC + 4 * e + t
            a("v_min_u32 v%d, -2, v%d" % (x, x))
    a("s_waitcnt lgkmcnt(0)")
    a("v_readfirstlane_b32 s63, v%d" % H1)
    a("s_lshl_b32 s59, s20, 3")
    a("s_cbranch_execz L_pubdone")
    a("s_and_b32 exec_lo, s90, 0x00ff00ff")
    a("s_and_b32 exec_hi, s91, 0x00ff00ff")
    a("s_cmp_eq_u32 s63, 2")
    a("s_cbranch_scc1 L_pubfast")
    for e in range(4):
        a("buffer_store_dwordx4 v[%d:%d], v9, s[40:43], s53 offen offset:%d sc1" % (ACC + 4 * e, ACC + 3 + 4 * e, e * 256))
    a("s_mov_b64 exec, s[90:91]")
    a("s_branch L_slow")
    a.label("L_pubfast")
    for e in range(4):
        a("buffer_store_dwordx4 v[%d:%d], v9, s[40:43], s53 offen offset:%d %s" % (ACC + 4 * e, ACC + 3 + 4 * e, e * 256, o["cst"]))
    a("s_mov_b64 exec, s[90:91]")
    a.label("L_pubdone")
    stamp(2)
    C = RING
    a("s_and_b32 s57, s90, 0xff")
    a("s_mov_b32 s62, %d" % SPIN_GLB)
    if o["cdelay"]:
        lab = a.newlabel("Lcd")
        a("s_cbranch_execz %s" % lab)
        a("s_sleep %d" % o["cdelay"])
        a.label(lab)
    def issue_pending(fl=None):
        fl = o["cld"] if fl is None else fl
        for p in range(8):
            lab = a.newlabel("Lc")
            a("s_bitcmp1_b32 s57, %d" % p)
            a("s_cbranch_scc0 %s" % lab)
            a("s_mov_b32 s58, %d" % (p * 6144))
            for i in range(2):
                r = C + 4 * (p * 2 + i)
                a("buffer_load_dwordx4 v[%d:%d], v3, s[40:43], s58 offen offset:%d %s" % (r, r + 3, i * 1024, fl))
            a.label(lab)
    def check_pending():
        for p in range(8):
            lab = a.newlabel("Lk")
            r = C + 8 * p
            a("s_bitcmp1_b32 s57, %d" % p)
            a("s_cbranch_scc0 %s" % lab)
            a("v_max3_u32 v8, v%d, v%d, v%d" % (r, r + 1, r + 2))
            a("v_max3_u32 v8, v8, v%d, v%d" % (r + 3, r + 4))
            a("v_max3_u32 v8, v8, v%d, v%d" % (r + 5, r + 6))
            a("v_max_u32 v8, v8, v%d" % (r + 7))
            a("v_cmp_eq_u32 vcc, -1, v8")
            a("s_cbranch_vccnz %s" % lab)
            a("s_bitset0_b32 s57, %d" % p)
            a.label(lab)
    if o["probe"]:
        a("s_and_b32 s56, s90, 0xff")
        a("s_lshl_b32 s55, s21, 2")
        a("s_add_u32 s55, s55, 13")
        a("s_mov_b32 s54, 30")
        a.label("L_probe")
        a("s_cmp_eq_u32 s56, 0")
        a("s_cbranch_scc1 L_probedone")
        a("s_and_b32 s58, s55, 31")
        a("s_lshl_b32 s58, s58, 6")
        a("s_lshl_b32 s93, s52, 11")
        a("s_add_u32 s58, s58, s93")
        a("s_add_u32 s82, s40, s58")
        a("s_addc_u32 s83, s41, 0")
        for p in range(8):
            a("s_load_dword s%d, s[82:83], %d" % (4 + p, p * 6144))
        a("s_add_u32 s55, s55, 1")
        a("s_waitcnt lgkmcnt(0)")
        for p in range(8):
            lab = a.newlabel("Lp")
            a("s_bitcmp1_b32 s56, %d" % p)
            a("s_cbranch_scc0 %s" % lab)
            a("s_cmp_eq_u32 s%d, -1" % (4 + p))
            a("s_cbranch_scc1 %s" % lab)
            a("s_bitset0_b32 s56, %d" % p)
            a("s_mov_b32 s58, %d" % (p * 6144))
            for i in range(2):
                r = C + 4 * (p * 2 + i)
                a("buffer_load_dwordx4 v[%d:%d], v3, s[40:43], s58 offen offset:%d %s" % (r, r + 3, i * 1024, o["cld"]))
            a.label(lab)
        if o["psl"]:
            a("s_sleep %d" % o["psl"])
        a("s_sub_u32 s54, s54, 1")
        a("s_cbranch_scc0 L_probe")
        a.label("L_probedone")
        a("s_mov_b32 s57, s56")
        a("s_and_b32 s56, s90, 0xff")
        issue_pending()
        a("s_mov_b32 s57, s56")
        a("s_branch L_collect1")
        a.label("L_collect")
        issue_pending()
        a.label("L_collect1")
        a("s_waitcnt vmcnt(0)")
        if stamps:
            lab = a.newlabel("Lfa")
            a("s_cmp_eq_u32 s62, %d" % SPIN_GLB)
            a("s_cbranch_scc0 %s" % lab)
            stamp(7)
            a.label(lab)
        check_pending()
        a("s_cmp_eq_u32 s57, 0")
        a("s_cbranch_scc1 L_collected")
        a("s_sub_u32 s62, s62, 1")
        a("s_cbranch_scc1 L_collected")
        a("s_branch L_collect")
    elif not o["pipe"]:
        if o["cld1"] is not None:
            issue_pending(o["cld1"])
            a("s_branch L_collect1")
        a.label("L_collect")
        issue_pending()
        a.label("L_collect1")
        a("s_waitcnt vmcnt(0)")
        if stamps:
            lab = a.newlabel("Lfa")
            a("s_cmp_eq_u32 s62, %d" % SPIN_GLB)
            a("s_cbranch_scc0 %s" % lab)
            stamp(7)
            a.label(lab)
        check_pending()
        a("s_cmp_eq_u32 s57, 0")
        a("s_cbranch_scc1 L_collected")
        a("s_sub_u32 s62, s62, 1")
        a("s_cbranch_scc1 L_collected")
        if o["psleep"]:
            a("s_sleep %d" % o["psleep"])
        a("s_branch L_collect")
    else:
        a.label("L_collect")
        issue_pending()
        a("s_cmp_eq_u32 s62, %d" % SPIN_GLB)
        a("s_cbranch_scc0 L_nowait")
        a("s_waitcnt vmcnt(0)")
        a("s_branch L_chk")
        a.label("L_nowait")
        a("s_sleep %d" % o["pipe"])
        a.label("L_chk")
        check_pending()
        a("s_cmp_eq_u32 s57, 0")
        a("s_cbranch_scc1 L_collected")
        a("s_sub_u32 s62, s62, 1")
        a("s_cbranch_scc0 L_collect")
    a.label("L_collected")
    stamp(3)
    S = BR
    for m in range(2):
        for i in range(2):
            for t in range(4):
                q = [C + 4 * (2 * (4 * m + k) + i) + t for k in range(4)]
                d = S + 8 * m + 4 * i + t
                a("v_add_f32 v%d, v%d, v%d" % (d, q[0], q[1]))
                a("v_add_f32 v%d, v%d, v%d" % (d + 16, q[2], q[3]))
                a("v_add_f32 v%d, v%d, v%d" % (d, d, d + 16))
    a("v_bfe_u32 v6, v0, 3, 1")
    a("v_and_b32 v7, 7, v0")
    a("v_lshrrev_b32 v8, 4, v0")
    a("v_mul_u32_u24 v9, %d, v6" % (4 * KP_STRIDE))
    a("v_lshl_add_u32 v9, v7, 4, v9")
    a("v_lshl_add_u32 v9, v8, 1, v9")
    a("s_lshl_b32 s58, s52, 7")
    a("s_add_u32 s58, s58, %d" % L_KP)
    a("v_add_u32 v9, s58, v9")
    a("v_lshl_add_u32 v10, v7, 3, v8")
    a("v_lshlrev_b32 v10, 4, v10")
    a("v_lshl_add_u32 v10, v6, 3, v10")
    a("s_lshl_b32 s58, s52, 10")
    a("s_add_u32 s58, s58, %d" % L_VP)
    a("v_add_u32 v10, s58, v10")
    P = ACC + 16
    for i in range(2):
        b = S + 4 * i
        a("v_cvt_pk_bf16_f32 v%d, v%d, v%d" % (P + 2 * i, b, b + 1))
        a("v_cvt_pk_bf16_f32 v%d, v%d, v%d" % (P + 1 + 2 * i, b + 2, b + 3))
        b = S + 8 + 4 * i
        a("v_cvt_pk_bf16_f32 v%d, v%d, v%d" % (P + 4 + 2 * i, b, b + 1))
        a("v_cvt_pk_bf16_f32 v%d, v%d, v%d" % (P + 5 + 2 * i, b + 2, b + 3))
    for i in range(2):
        a("ds_write_b16 v9, v%d offset:%d" % (P + 2 * i, 0 * KP_STRIDE + 8 * i))
        a("ds_write_b16_d16_hi v9, v%d offset:%d" % (P + 2 * i, 1 * KP_STRIDE + 8 * i))
        a("ds_write_b16 v9, v%d offset:%d" % (P + 1 + 2 * i, 2 * KP_STRIDE + 8 * i))
        a("ds_write_b16_d16_hi v9, v%d offset:%d" % (P + 1 + 2 * i, 3 * KP_STRIDE + 8 * i))
        a("ds_write_b64 v10, v[%d:%d] offset:%d" % (P + 4 + 2 * i, P + 5 + 2 * i, 64 * i))
    a("s_waitcnt lgkmcnt(0)")
    lds_signal(F_READY)
    amppt("ready")
    stamp(4)
    if dry:
        a("s_cbranch_execz L_dryret1")
    a("s_cmp_eq_u32 s63, 2")
    a("s_cbranch_scc0 L_kvend")
    if not o["diag"]:
        pubflag()
    a.label("L_kvend")
    if stamps:
        a("s_waitcnt lgkmcnt(0)")
        a("s_mov_b32 s74, %s" % ("s80" if o["stampE"] else "s78"))
        a("s_sub_u32 s79, %d, s62" % SPIN_GLB)
    a("s_branch L_fin")
    a.label("L_slow")
    pubflag()
    a("s_mov_b32 s62, %d" % SPIN_GLB)
    a("s_mov_b64 exec, 1")
    a.label("L_slowpoll")
    a("v_mov_b32 v6, 0")
    a("v_mov_b32 v7, 0")
    a("buffer_atomic_or_x2 v[6:7], off, s[44:47], s59 sc0 sc1")
    a("s_waitcnt vmcnt(0)")
    a("v_and_b32 v6, v6, v7")
    a("v_and_b32 v6, 0x40404040, v6")
    a("s_nop 0")
    a("v_readfirstlane_b32 s58, v6")
    a("s_cmp_eq_u32 s58, 0x40404040")
    a("s_cbranch_scc1 L_slowgo")
    a("s_sub_u32 s62, s62, 1")
    a("s_cbranch_scc1 L_slowgo")
    a("s_sleep 32")
    a("s_branch L_slowpoll")
    a.label("L_slowgo")
    a("s_mov_b64 exec, -1")
    for p in range(8):
        a("s_mov_b32 s58, %d" % (p * 6144))
        for i in range(2):
            r = C + 4 * (p * 2 + i)
            a("buffer_load_dwordx4 v[%d:%d], v3, s[40:43], s58 offen offset:%d sc1" % (r, r + 3, i * 1024))
    a("s_waitcnt vmcnt(0)")
    a("s_branch L_collected")

    a.label("L_qwave")
    a("s_barrier")
    for n in range(6):
        a("v_add_u32 v110, %d, v0" % (64 * n))
        a("v_mul_u32_u24 v111, 2731, v110")
        a("v_lshrrev_b32 v111, 17, v111")
        a("v_and_b32 v111, 7, v111")
        a("v_lshlrev_b32 v111, 4, v111")
        a("v_lshlrev_b32 v110, 4, v110")
        a("v_xor_b32 v%d, v110, v111" % (140 + n))
    a("s_sub_u32 s55, s3, %d" % NKV)
    a("s_mul_i32 s56, s55, 12288")
    if o["dbgmode"] == 1:
        a("s_cmp_eq_u32 s3, %d" % (NKV + 1))
        a("s_cbranch_scc0 L_fin")
    a("s_cmp_eq_u32 s3, %d" % (NKV + 0))
    a("s_cbranch_scc1 L_aux")
    if not o["eself"]:
        a("s_cmp_eq_u32 s3, %d" % (NKV + 1))
        a("s_cbranch_scc1 L_estage")
    if o["touch"]:
        lab = a.newlabel("Lnt")
        a("s_cmp_eq_u32 s3, %d" % (NKV + 4))
        a("s_cbranch_scc0 %s" % lab)
        a("v_mul_u32_u24 v12, 98300, v0")
        a("s_mov_b64 exec, 3")
        a("buffer_load_dword v13, v12, s[32:35], 0 offen")
        a("buffer_load_dword v14, v12, s[36:39], 0 offen")
        a("s_mov_b64 exec, -1")
        a("s_waitcnt vmcnt(0)")
        a.label(lab)
    if dry:
        a("s_cmp_eq_u32 s3, %d" % (NKV + 2))
        a("s_cbranch_scc1 L_dry1")
        a("s_cmp_eq_u32 s3, %d" % (NKV + 3))
        a("s_cbranch_scc1 L_dry2")
    a("s_branch L_qmain")
    if dry:
        a.label("L_dry1")
        a("s_mov_b64 s[90:91], 0")
        a("s_mov_b64 exec, 0")
        a("s_branch L_kvpost")
        a.label("L_dryret1")
        a("s_mov_b64 s[90:91], -1")
        a("s_mov_b64 exec, -1")
        a("s_branch L_qmain")
        a.label("L_dry2")
        a("s_mov_b64 s[90:91], 0")
        a("s_mov_b64 exec, 0")
        a("s_branch L_phase2")
        a.label("L_dryret2")
        a("s_mov_b64 s[90:91], -1")
        a("s_mov_b64 exec, -1")
        a("s_branch L_qmain")

    a.label("L_estage")
    a("v_and_b32 v3, 7, v0")
    a("v_lshrrev_b32 v4, 3, v0")
    a("v_lshlrev_b32 v2, 12, v3")
    a("v_lshl_add_u32 v2, v4, 4, v2")
    a("s_lshl_b32 s58, s23, 10")
    for k in range(8):
        a("s_mov_b32 m0, %d" % (L_E + k * 1024))
        a("s_nop 0")
        a("buffer_load_dwordx4 v2, s[28:31], s58 offen lds")
        if k < 7:
            a("s_add_u32 s58, s58, 128")
    a("s_waitcnt vmcnt(0)")
    lds_signal(F_E)
    a("s_branch L_qmain")

    a.label("L_aux")
    a("v_lshlrev_b32 v1, 4, v0")
    for r in range(12, 16):
        a("v_mov_b32 v%d, -1" % r)
    a("s_mov_b32 s58, s53")
    for n in range(6):
        if n == 4:
            a("s_add_u32 s58, s58, 4096")
        if not o["noclear"]:
            a("buffer_store_dwordx4 v[12:15], v1, s[40:43], s58 offen offset:%d" % ((n % 4) * 1024))
    a("s_getreg_b32 s57, hwreg(HW_REG_XCC_ID)")
    a("s_and_b32 s57, s57, 7")
    a("s_or_b32 s57, s57, 0x80")
    a("v_mov_b32 v2, s57")
    a("s_lshl_b32 s59, s20, 3")
    a("s_add_u32 s58, s59, s21")
    a("s_mul_i32 s57, s57, 0x01010101")
    a("s_waitcnt vmcnt(0)")
    if o["diag"]:
        a("s_branch L_auxfast")
    a("s_mov_b64 exec, 1")
    a("buffer_store_byte v2, off, s[44:47], s58")
    a("s_mov_b32 s62, %d" % o["auxpolls"])
    a.label("L_auxpoll")
    a("s_sleep %d" % o["auxsleep"])
    a("buffer_load_dwordx2 v[4:5], off, s[44:47], s59 sc1")
    a("s_waitcnt vmcnt(0)")
    a("v_readfirstlane_b32 s60, v4")
    a("v_readfirstlane_b32 s61, v5")
    a("s_and_b32 s60, s60, 0xbfbfbfbf")
    a("s_and_b32 s61, s61, 0xbfbfbfbf")
    a("s_cmp_eq_u32 s60, s57")
    a("s_cselect_b32 s60, s61, 0")
    a("s_cmp_eq_u32 s60, s57")
    a("s_cbranch_scc1 L_auxfast")
    a("s_sub_u32 s62, s62, 1")
    a("s_cbranch_scc0 L_auxpoll")
    a("s_branch L_auxdone")
    a.label("L_auxfast")
    if fast:
        a("s_mov_b64 exec, -1")
        lds_signal(F_MODE, 2)
    a.label("L_auxdone")
    a("s_mov_b64 exec, -1")
    stamp(3)

    a.label("L_qmain")
    if o["dbgmode"] in (1, 2):
        a("s_branch L_fin")
    if o["ramp"]:
        a("s_sub_u32 s57, s3, %d" % NKV)
        a("s_mul_i32 s57, s57, %d" % (3 * D // 2))
        a("s_lshr_b32 s57, s57, 3")
        a("s_add_u32 s57, s57, 1")
        lds_poll(F_TRIG, "s57", "T", sleep=o["tsleep"])
    else:
        lds_poll(F_TRIG, 1, "T", sleep=o["tsleep"])
    stamp(1)
    def q_dma(k):
        t, n = divmod(k, 6)
        a("s_add_u32 m0, s56, %d" % (L_Q + t * 6144 + n * 1024))
        if t == 1 and n == 0:
            a("s_add_u32 s57, s56, 6144")
        else:
            a("s_nop 0")
        a("buffer_load_dwordx4 v%d, s[32:35], %s offen %s lds" % (140 + n, "s56" if t == 0 else "s57", ld))
    for k in range(12):
        if k >= qdepth:
            a("s_waitcnt vmcnt(%d)" % (qdepth - 1))
        if o["early"] and k >= 6 + qdepth - 1 and k < 12:
            pass
        q_dma(k)
        if o["early"] and k >= 5 + qdepth and k < 11:
            a("ds_read_b32 v%d, v%d offset:%d" % (H1, H0, F_READY - F_TRIG))
            a("s_waitcnt lgkmcnt(0)")
            a("v_readfirstlane_b32 s63, v%d" % H1)
            a("s_cmp_ge_u32 s63, 3")
            a("s_cbranch_scc1 L_rest%d" % (k + 1))
    if o["early"]:
        a("s_branch L_allissued")
        for k in range(6 + qdepth, 12):
            a.label("L_rest%d" % k)
            q_dma(k)
        a.label("L_allissued")
    if o["qiss"]:
        lds_signal(F_QISS)
    amppt("qiss")
    stamp(2)
    if o["dbgmode"] == 3:
        a("s_branch L_fin")

    a.label("L_phase2")
    a("v_and_b32 v138, 15, v0")
    a("v_lshrrev_b32 v139, 4, v0")
    a("v_lshrrev_b32 v132, 1, v138")
    a("v_xor_b32 v132, v132, v139")
    a("v_lshlrev_b32 v132, 4, v132")
    a("v_mul_u32_u24 v133, 384, v138")
    a("v_add_u32 v132, v132, v133")
    a("v_add_u32 v132, s56, v132")
    a("v_xor_b32 v133, 64, v132")
    a("v_and_b32 v134, 7, v0")
    a("v_mul_u32_u24 v134, %d, v134" % KP_STRIDE)
    a("v_lshl_add_u32 v134, v139, 4, v134")
    a("v_add_u32 v134, %d, v134" % L_KP)
    a("v_lshrrev_b32 v146, 2, v138")
    a("v_and_b32 v147, 3, v138")
    a("v_lshl_add_u32 v135, v146, 3, v147")
    a("v_lshlrev_b32 v135, 4, v135")
    a("v_and_b32 v147, 1, v139")
    a("v_lshl_add_u32 v135, v147, 3, v135")
    a("v_add_u32 v135, %d, v135" % L_VP)
    a("v_lshlrev_b32 v136, 4, v0")
    a("v_cmp_gt_u32 vcc, 32, v0")
    a("v_mov_b32 v137, 0")
    a("s_nop 0")
    a("v_cndmask_b32_e64 v137, v137, 1.0, vcc")
    a("s_waitcnt vmcnt(6)")
    for m in range(6):
        a("ds_read_b128 v[%d:%d], v%d offset:%d" % (52 + 4 * m, 55 + 4 * m, 132 + (m & 1), (m >> 1) * 128))
    lds_poll(F_READY, 3, "R", dryskip=True)
    stamp(4)
    for m in range(6):
        a("ds_read_b128 v[%d:%d], v134 offset:%d" % (4 + 4 * m, 7 + 4 * m, m * 64))
    for T in range(12):
        U, b = divmod(T, 2)
        a("ds_read_b64 v[%d:%d], v135 offset:%d" % (28 + 2 * T, 29 + 2 * T, (32 * U + 4 * b) * 16))
    a("s_mov_b32 s55, 0")
    a("s_waitcnt lgkmcnt(12)")
    a("s_branch L_tile1")
    a.label("L_tile")
    a("s_waitcnt vmcnt(6)")
    for m in range(6):
        a("ds_read_b128 v[%d:%d], v%d offset:%d" % (52 + 4 * m, 55 + 4 * m, 132 + (m & 1), (m >> 1) * 128))
    a("s_waitcnt lgkmcnt(0)")
    a.label("L_tile1")
    for m in range(6):
        a("v_mfma_f32_16x16x32_bf16 v[76:79], v[%d:%d], v[%d:%d], %s" % (4 + 4 * m, 7 + 4 * m, 52 + 4 * m, 55 + 4 * m, "0" if m == 0 else "v[76:79]"))
    a("s_add_u32 s58, s56, 4096")
    a("s_nop 6")
    Z = 76
    def rnd():
        a("v_cvt_pk_bf16_f32 v80, v76, v77")
        a("v_cvt_pk_bf16_f32 v81, v78, v79")
        a("v_lshlrev_b32 v76, 16, v80")
        a("v_and_b32 v77, 0xffff0000, v80")
        a("v_lshlrev_b32 v78, 16, v81")
        a("v_and_b32 v79, 0xffff0000, v81")
    if o["round_emul"]:
        rnd()
    for t in range(4):
        a("v_mul_f32 v%d, s50, v%d" % (Z + t, Z + t))
    if o["round_emul"]:
        rnd()
    a("v_max3_f32 v82, v76, v77, v78")
    a("v_max_f32 v82, v82, v79")
    a("v_mov_b32 v83, v82")
    a("s_nop 1")
    a("v_permlane16_swap_b32 v82, v83")
    a("s_nop 1")
    a("v_max_f32 v82, v82, v83")
    a("v_mul_f32 v82, s51, v82")
    for t in range(4):
        a("v_fma_f32 v%d, v%d, s51, -v82" % (Z + t, Z + t))
    for t in range(4):
        a("v_exp_f32 v%d, v%d" % (Z + t, Z + t))
    a("s_nop 0")
    a("v_add_f32 v82, v76, v77")
    a("v_add_f32 v83, v78, v79")
    a("v_add_f32 v82, v82, v83")
    a("v_mov_b32 v83, v82")
    a("s_nop 1")
    a("v_permlane16_swap_b32 v82, v83")
    a("s_nop 1")
    a("v_add_f32 v82, v82, v83")
    a("v_rcp_f32 v82, v82")
    a("s_nop 0")
    a("v_mul_f32 v82, v82, v137")
    for t in range(4):
        a("v_mul_f32 v%d, v%d, v82" % (Z + t, Z + t))
    a("v_cvt_pk_bf16_f32 v80, v76, v77")
    a("v_cvt_pk_bf16_f32 v81, v78, v79")
    a("s_waitcnt lgkmcnt(0)")
    a("s_nop 0")
    DD = 52
    for T in range(12):
        a("v_mfma_f32_16x16x16_bf16 v[%d:%d], v[%d:%d], v[80:81], 0" % (84 + 4 * T, 87 + 4 * T, 28 + 2 * T, 29 + 2 * T))
    def dreg(T):
        return 84 + 4 * T
    for U in range(6):
        pk = dreg(2 * U)
        if U == 0:
            a("s_nop 1")
        da, db = dreg(2 * U), dreg(2 * U + 1)
        a("v_cvt_pk_bf16_f32 v%d, v%d, v%d" % (pk, da, da + 1))
        a("v_cvt_pk_bf16_f32 v%d, v%d, v%d" % (pk + 1, da + 2, da + 3))
        a("v_cvt_pk_bf16_f32 v%d, v%d, v%d" % (pk + 2, db, db + 1))
        a("v_cvt_pk_bf16_f32 v%d, v%d, v%d" % (pk + 3, db + 2, db + 3))
        a("ds_write_b128 v%d, v[%d:%d] offset:%d" % (132 + (U & 1), pk, pk + 3, (U >> 1) * 128))
    a("s_waitcnt lgkmcnt(0)")
    if o["qiss"]:
        lab = a.newlabel("Lqi")
        a("s_cmp_lg_u32 s55, 0")
        a("s_cbranch_scc1 %s" % lab)
        lds_poll(F_QISS, 8, "I", dryskip=True)
        if o["hold"]:
            a("s_add_u32 s98, s98, %d" % o["hold"])
            a.label("L_hold")
            a("s_memrealtime s[84:85]")
            a("s_waitcnt lgkmcnt(0)")
            a("s_sub_u32 s87, s98, s84")
            a("s_cmp_gt_i32 s87, 0")
            a("s_cbranch_scc0 L_holdend")
            a("s_sleep 2")
            a("s_branch L_hold")
            a.label("L_holdend")
        a.label(lab)
    for n in range(6):
        a("v_add_u32 v%d, s56, v%d" % (84 + n, 140 + n))
    for n in range(6):
        a("ds_read_b128 v[%d:%d], v%d" % (52 + 4 * n, 55 + 4 * n, 84 + n))
    for n in range(6):
        a("s_waitcnt lgkmcnt(%d)" % (5 - n))
        so, imm = ("s56", n * 1024) if n < 4 else ("s58", (n - 4) * 1024)
        lab = a.newlabel("Lst")
        if dry:
            a("s_cbranch_execz %s" % lab)
        a("buffer_store_dwordx4 v[%d:%d], v136, s[36:39], %s offen offset:%d %s" % (52 + 4 * n, 55 + 4 * n, so, imm, st))
        if dry:
            a.label(lab)
    if dry:
        a("s_cbranch_execz L_dryret2")
    a("s_add_u32 s56, s56, 6144")
    a("v_add_u32 v132, 6144, v132")
    a("v_add_u32 v133, 6144, v133")
    a("s_add_u32 s55, s55, 1")
    a("s_cmp_lt_u32 s55, 2")
    a("s_cbranch_scc1 L_tile")
    stamp(5)
    a.label("L_fin")
    if o["amp"]:
        a("s_waitcnt vmcnt(0)")
        a("s_memrealtime s[84:85]")
        a("s_waitcnt lgkmcnt(0)")
        a("s_sub_u32 s86, %s, s94" % ("s84" if o["ampat"] is None else "s96"))
        a("s_mul_i32 s86, s86, %d" % o["amp"])
        a("s_add_u32 s86, s86, s84")
        a.label("L_amp")
        a("s_sleep 8")
        a("s_memrealtime s[84:85]")
        a("s_waitcnt lgkmcnt(0)")
        a("s_sub_u32 s87, s86, s84")
        a("s_cmp_gt_i32 s87, 0")
        a("s_cbranch_scc1 L_amp")
    if stamps:
        a("s_waitcnt vmcnt(0)")
        stamp(6)
        a("s_getreg_b32 s78, hwreg(HW_REG_XCC_ID)")
        a("s_cmp_lt_u32 s3, %d" % NKV)
        a("s_cselect_b32 s79, s79, 0")
        a("s_lshl_b32 s79, s79, 8")
        a("s_or_b32 s78, s78, s79")
        a("s_waitcnt lgkmcnt(0)")
        a("s_lshl_b32 s58, s2, 9")
        a("s_lshl_b32 s59, s3, 5")
        a("s_add_u32 s58, s58, s59")
        a("s_add_u32 s58, s58, %d" % STAMP_OFF)
        a("s_mov_b32 s40, s18"); a("s_mov_b32 s41, s19"); a("s_mov_b32 s42, 0x1000000"); a("s_mov_b32 s43, 0x20000")
        for i in range(7):
            a("v_mov_b32 v%d, s%d" % (4 + i, 64 + 2 * i))
        a("v_mov_b32 v11, s78")
        a("s_mov_b64 exec, 1")
        if stamps != "dbg":
            a("buffer_store_dwordx4 v[4:7], off, s[40:43], s58")
            a("buffer_store_dwordx4 v[8:11], off, s[40:43], s58 offset:16")
        else:
            a("v_mov_b32 v12, %d" % (L_FLAG + 16))
            a("v_not_b32 v13, v4"); a("ds_max_u32 v12, v13 offset:0")
            a("ds_max_u32 v12, v10 offset:4")
            a("s_cmp_lt_u32 s3, %d" % NKV)
            a("s_cbranch_scc0 L_dq")
            a("ds_max_u32 v12, v5 offset:8")
            a("ds_max_u32 v12, v7 offset:12")
            a("s_branch L_dq2")
            a.label("L_dq")
            a("ds_max_u32 v12, v8 offset:16")
            a("ds_max_u32 v12, v6 offset:20")
            a("ds_max_u32 v12, v9 offset:28")
            a.label("L_dq2")
            a("ds_max_u32 v12, v4 offset:24")
            a("s_waitcnt lgkmcnt(0)")
            a("v_mov_b32 v15, 1")
            a("v_mov_b32 v17, %d" % (L_FLAG + F_FIN))
            a("ds_add_rtn_u32 v16, v17, v15")
            a("s_waitcnt lgkmcnt(0)")
            a("v_readfirstlane_b32 s59, v16")
            a("s_cmp_lg_u32 s59, %d" % (NW - 1))
            a("s_cbranch_scc1 L_end")
            a("s_mov_b64 exec, 0xff")
            a("v_lshlrev_b32 v18, 2, v0")
            a("v_add_u32 v19, %d, v18" % (L_FLAG + 16))
            a("ds_read_b32 v20, v19")
            a("s_waitcnt lgkmcnt(0)")
            a("buffer_atomic_umax v20, v18, s[44:47], 0 offen sc1")
    a.label("L_end")
    a("s_endpgm")
    return wrap(["; @launch grid=(256,1,1) block=(%d,1,1) lds=%d" % (NW * 64, LDS_BYTES)], [(KN, a.text(), NVGPR, 102)])

def parse_kv(args):
    kw = {}
    for x in args:
        k, v = x.split("=", 1)
        if v in ("True", "False", "None"):
            v = eval(v)
        else:
            try: v = int(v)
            except ValueError: pass
        kw[k] = v
    return kw

if __name__ == "__main__":
    out = sys.argv[1]
    open(out, "w").write(gen(**parse_kv(sys.argv[2:])))
```

```python
import sys
from asmlib import *

L_Q = 0
L_E = 98304
L_KP = L_E + 8192
KP_STRIDE = 400
L_VP = L_KP + 8 * KP_STRIDE
L_FLAG = L_VP + 3072
LDS_BYTES = L_FLAG + 64
F_TRIG, F_READY, F_MODE, F_FIN, F_STAMP, F_E, F_JOIN, F_QISS = 0, 4, 8, 12, 16, 48, 52, 56
STAMP_OFF = 8 << 20
SPIN_LDS = 1 << 22
SPIN_GLB = 1 << 16
NKV = 3
NQ = 8
NW = NKV + NQ
RING = 12
BR = 76
ACC = 108
AOP = 140
H0, H1 = 148, 149
NVGPR = 152

DEF = dict(ld="nt", st="nt", stamps=None, qdepth=3, depth=8, trigp=None, fast=True, dry=False, xmap="xcd",
           round_emul=True, prio=True, rot=True, tsleep=1, auxsleep=32, auxpolls=3, psleep=0, pipe=0, kvonly=False, cld="nt", cst="", touch=False, cld1=None, dbgmode=0, ramp=True, rampoff=0, cdelay=0, early=True, qiss=True, noclear=False, idle=0, stampE=False, eself=True, diag=False, amp=0, ampat=None, probe=False, psl=0, hold=0, edirect=True)

def gen(**kw):
    o = dict(DEF); o.update(kw)
    globals().update({"_o": o})
    ld, st, stamps, qdepth, D = o["ld"], o["st"], o["stamps"], o["qdepth"], o["depth"]
    dry, fast = o["dry"], o["fast"]
    assert D % 2 == 0 and 8 <= D <= 14
    trigp = o["trigp"] if o["trigp"] is not None else (62 - D) // 2 + 1
    a = Asm()
    def stamp(i):
        if stamps:
            a("s_memrealtime s[%d:%d]" % (64 + 2 * i, 65 + 2 * i))
    def amppt(name):
        if o["amp"] and o["ampat"] == name:
            a("s_memrealtime s[96:97]")
    def lds_poll(off, val, name, sleep=1, dryskip=False):
        lab = a.newlabel("Lp" + name); done = a.newlabel("Ld" + name)
        if dryskip:
            a("s_cbranch_execz %s" % done)
        a("s_mov_b32 s62, %d" % SPIN_LDS)
        a("v_mov_b32 v%d, %d" % (H0, L_FLAG + off))
        a.label(lab)
        a("ds_read_b32 v%d, v%d" % (H1, H0))
        a("s_waitcnt lgkmcnt(0)")
        a("v_readfirstlane_b32 s63, v%d" % H1)
        a("s_sub_u32 s62, s62, 1")
        a("s_cbranch_scc1 %s" % done)
        a("s_cmp_ge_u32 s63, %s" % val)
        a("s_cbranch_scc1 %s" % done)
        a("s_sleep %d" % sleep)
        a("s_branch %s" % lab)
        a.label(done)
    def lds_signal(off, val=1):
        a("v_mov_b32 v%d, %d" % (H0, L_FLAG + off))
        a("v_mov_b32 v%d, %d" % (H1, val))
        a("s_and_b32 exec_lo, s90, 1")
        a("s_mov_b32 exec_hi, 0")
        a("ds_add_u32 v%d, v%d" % (H0, H1))
        a("s_mov_b64 exec, s[90:91]")
    def pubflag():
        lab = a.newlabel("Lpf")
        a("s_waitcnt vmcnt(0)")
        a("v_mov_b32 v%d, %d" % (H0, L_FLAG + F_JOIN))
        a("v_mov_b32 v%d, 1" % H1)
        a("s_mov_b64 exec, 1")
        a("ds_add_rtn_u32 v%d, v%d, v%d" % (H1, H0, H1))
        a("s_waitcnt lgkmcnt(0)")
        a("v_readfirstlane_b32 s58, v%d" % H1)
        a("s_cmp_eq_u32 s58, 2")
        a("s_cbranch_scc0 %s" % lab)
        a("s_getreg_b32 s58, hwreg(HW_REG_XCC_ID)")
        a("s_and_b32 s58, s58, 7")
        a("s_or_b32 s58, s58, 0xc0")
        a("v_mov_b32 v%d, s58" % H1)
        a("s_add_u32 s58, s59, s21")
        a("buffer_store_byte v%d, off, s[44:47], s58 sc1" % H1)
        a.label(lab)
        a("s_mov_b64 exec, -1")
    def kbase(vdst, sks):
        a("s_add_u32 s93, %s, s92" % sks)
        a("s_and_b32 s93, s93, 7")
        a("s_mul_i32 s93, s93, 24576")
        a("s_cmp_ge_u32 %s, 8" % sks)
        a("s_cselect_b32 s93, 0x1000000, s93")
        a("v_add_u32 v%d, s93, v5" % vdst)

    stamp(0)
    if o["hold"]:
        a("s_memrealtime s[98:99]")
    if o["amp"]:
        a("s_memrealtime s[94:95]")
        a("s_memrealtime s[96:97]")
    a("s_cmp_ge_u32 s2, 256")
    a("s_cbranch_scc1 L_end")
    a("s_load_dwordx16 s[4:19], s[0:1], 0")
    a("v_lshrrev_b32 v1, 6, v0")
    a("v_and_b32 v0, 63, v0")
    a("v_readfirstlane_b32 s3, v1")
    if o["xmap"] == "xcd":
        a("s_lshr_b32 s20, s2, 6")
        a("s_lshl_b32 s20, s20, 3")
        a("s_and_b32 s21, s2, 7")
        a("s_add_u32 s20, s20, s21")
        a("s_lshr_b32 s21, s2, 3")
        a("s_and_b32 s21, s21, 7")
    else:
        a("s_lshr_b32 s20, s2, 3")
        a("s_and_b32 s21, s2, 7")
    a("s_and_b32 s22, s21, 1")
    a("s_lshr_b32 s23, s21, 1")
    a("v_and_b32 v3, 7, v0")
    a("v_lshrrev_b32 v4, 3, v0")
    a("v_mul_u32_u24 v1, 3072, v4")
    a("v_lshl_add_u32 v1, v3, 4, v1")
    a("s_lshl_b32 s52, s3, 7")
    a("v_add_u32 v5, s52, v1")
    if o["rot"]:
        a("s_lshr_b32 s92, s2, 3")
        a("s_add_u32 s92, s92, s2")
        a("s_and_b32 s92, s92, 7")
    else:
        a("s_mov_b32 s92, 0")
    a("s_mul_i32 s93, s92, 24576")
    a("v_add_u32 v6, s93, v5")
    a("s_add_u32 s93, s92, 1")
    a("s_and_b32 s93, s93, 7")
    a("s_mul_i32 s93, s93, 24576")
    a("v_add_u32 v7, s93, v5")
    a("s_mul_i32 s58, s20, 786432")
    a("s_mul_i32 s59, s23, 196608")
    a("s_add_u32 s59, s59, s58")
    a("s_mov_b32 s26, 196608")
    a("s_mov_b32 s27, 0x20000")
    a("s_mov_b64 s[90:91], -1")
    amppt("prekarg")
    a("s_waitcnt lgkmcnt(0)")
    amppt("karg")
    a("s_cmp_eq_u32 s22, 0")
    a("s_cselect_b32 s24, s6, s8")
    a("s_cselect_b32 s25, s7, s9")
    a("s_cselect_b32 s28, s10, s12")
    a("s_cselect_b32 s29, s11, s13")
    a("s_add_u32 s24, s24, s59")
    a("s_addc_u32 s25, s25, 0")
    a("s_cmp_ge_u32 s3, %d" % NKV)
    a("s_cbranch_scc1 L_notkv0")
    if o["eself"] and not o["edirect"]:
        a("s_mov_b32 s30, 32768")
        a("s_mov_b32 s31, 0x20000")
        a("v_lshlrev_b32 v2, 12, v3")
        a("v_lshl_add_u32 v2, v4, 4, v2")
        a("s_lshl_b32 s58, s23, 10")
        for k in range(8):
            a("s_mov_b32 m0, %d" % (L_E + k * 1024))
            a("s_nop 0")
            a("buffer_load_dwordx4 v2, s[28:31], s58 offen lds")
            if k < 7:
                a("s_add_u32 s58, s58, 128")
        a("s_mul_i32 s58, s20, 786432")
    def xload(slot, vb, j):
        r = RING + 4 * slot
        a("buffer_load_dwordx4 v[%d:%d], v%d, s[24:27], 0 offen offset:%d %s" % (r, r + 3, vb, j * 384, ld))
    for n in range(D):
        xload(n, 6 + n // 8, n % 8)
    if o["edirect"]:
        a("s_mov_b32 s30, 32768")
        a("s_mov_b32 s31, 0x20000")
        a("v_lshlrev_b32 v2, 12, v3")
        a("v_lshl_add_u32 v2, v4, 4, v2")
        for h in range(2):
            a("s_add_u32 s93, s92, %d" % h)
            a("s_and_b32 s93, s93, 7")
            a("s_lshl_b32 s93, s93, 7")
            a("s_lshl_b32 s55, s23, 10")
            a("s_add_u32 s93, s93, s55")
            a("buffer_load_dwordx4 v[%d:%d], v2, s[28:31], s93 offen" % (AOP + 4 * h, AOP + 4 * h + 3))
    amppt("issued0")
    a.label("L_notkv0")
    a("s_mov_b32 s30, 32768")
    a("s_mov_b32 s31, 0x20000")
    a("s_mul_i32 s59, s21, 98304")
    a("s_add_u32 s58, s58, s59")
    a("s_add_u32 s32, s4, s58")
    a("s_addc_u32 s33, s5, 0")
    a("s_mov_b32 s34, 98304")
    a("s_mov_b32 s35, 0x20000")
    a("s_add_u32 s36, s14, s58")
    a("s_addc_u32 s37, s15, 0")
    a("s_mov_b32 s38, 98304")
    a("s_mov_b32 s39, 0x20000")
    a("s_mul_i32 s58, s20, 49152")
    a("s_add_u32 s40, s18, s58")
    a("s_addc_u32 s41, s19, 0")
    a("s_mov_b32 s42, 49152")
    a("s_mov_b32 s43, 0x20000")
    a("s_mov_b32 s44, s16")
    a("s_mov_b32 s45, s17")
    a("s_mov_b32 s46, 256")
    a("s_mov_b32 s47, 0x20000")
    a("s_mov_b32 s48, 0x05040100")
    a("s_mov_b32 s49, 0x07060302")
    a("s_mov_b32 s50, 0x3d93cd3a")
    a("s_mov_b32 s51, 0x3fb8aa3b")
    a("s_lshl_b32 s53, s22, 2")
    a("s_add_u32 s53, s53, s23")
    a("s_mul_i32 s53, s53, 6144")
    a("s_cmp_lg_u32 s3, %d" % (NW - 1))
    a("s_cbranch_scc1 L_noinit")
    a("v_lshlrev_b32 v110, 2, v0")
    a("v_add_u32 v110, %d, v110" % L_FLAG)
    a("v_mov_b32 v111, 0")
    a("s_mov_b64 exec, 0xffff")
    a("ds_write_b32 v110, v111")
    a("s_mov_b64 exec, -1")
    a("s_waitcnt lgkmcnt(0)")
    a.label("L_noinit")
    a("s_cmp_ge_u32 s3, %d" % NKV)
    a("s_cbranch_scc1 L_qwave")

    for r in range(ACC, ACC + 32):
        a("v_mov_b32 v%d, 0" % r)
    a("v_lshlrev_b32 v11, 4, v0")
    a("v_add_u32 v11, %d, v11" % L_E)
    a("s_mov_b32 s54, 0")
    if o["prio"]:
        a("s_setprio 2")
    a("s_barrier")
    a.label("L_kvloop")
    q0 = D // 8
    qs = sorted(set((2 * i + D) // 8 for i in range(8)) | set((2 * i + 1 + D) // 8 for i in range(8)))
    a("s_lshl_b32 s55, s54, 1")
    for k, q in enumerate(qs):
        a("s_add_u32 s56, s55, %d" % q)
        kbase(6 + k, "s56")
    for i in range(8):
        a("s_waitcnt vmcnt(%d)" % (D - 2))
        for u in range(2):
            n = 2 * i + u + D
            xload(n % 16, 6 + qs.index(n // 8), n % 8)
        P_last_iter = 24 + i
        if o["ramp"]:
            first = 32 - D // 2 - o["rampoff"]
            for itx in (2, 3):
                Pn = 8 * itx + i
                if first <= Pn < first + D // 2:
                    lab = a.newlabel("Lnt")
                    a("s_cmp_lg_u32 s54, %d" % itx)
                    a("s_cbranch_scc1 %s" % lab)
                    lds_signal(F_TRIG)
                    a.label(lab)
        elif i == trigp % 8:
            lab = a.newlabel("Lnt")
            a("s_cmp_lg_u32 s54, %d" % (trigp // 8))
            a("s_cbranch_scc1 %s" % lab)
            lds_signal(F_TRIG)
            a.label(lab)
        jj = i % 4
        if jj == 2:
            h = i // 4
            labs = a.newlabel("Lsk")
            if o["edirect"]:
                a("s_cmp_eq_u32 s54, 0")
                a("s_cbranch_scc1 %s" % labs)
                if h == 0:
                    lab = a.newlabel("Lne")
                    a("s_cmp_lg_u32 s54, 1")
                    a("s_cbranch_scc1 %s" % lab)
                    lds_poll(F_E, 1, "E")
                    a.label(lab)
            elif h == 0:
                lab = a.newlabel("Lne")
                a("s_cmp_lg_u32 s54, 0")
                a("s_cbranch_scc1 %s" % lab)
                if not o["eself"]:
                    lds_poll(F_E, 1, "E")
                amppt("first")
                if o["stampE"]:
                    a("s_memrealtime s[80:81]")
                a.label(lab)
            a("s_add_u32 s93, s55, s92")
            if h:
                a("s_add_u32 s93, s93, 1")
            a("s_and_b32 s93, s93, 7")
            a("s_lshl_b32 s93, s93, 10")
            a("v_add_u32 v10, s93, v11")
            a("ds_read_b128 v[%d:%d], v10" % (AOP + 4 * h, AOP + 4 * h + 3))
            a.label(labs)
        r0 = RING + 8 * i; r1 = r0 + 4
        for m in range(4):
            a("v_perm_b32 v%d, v%d, v%d, s48" % (BR + 4 * (2 * m) + jj, r1 + m, r0 + m))
            a("v_perm_b32 v%d, v%d, v%d, s49" % (BR + 4 * (2 * m + 1) + jj, r1 + m, r0 + m))
        if jj == 3:
            h = i // 4
            a("s_waitcnt lgkmcnt(0)")
            a("s_nop 0")
            for e in range(8):
                a("v_mfma_f32_16x16x32_bf16 v[%d:%d], v[%d:%d], v[%d:%d], v[%d:%d]" % (ACC + 4 * e, ACC + 3 + 4 * e, AOP + 4 * h, AOP + 4 * h + 3, BR + 4 * e, BR + 3 + 4 * e, ACC + 4 * e, ACC + 3 + 4 * e))
    a("s_add_u32 s54, s54, 1")
    a("s_cmp_lt_u32 s54, 4")
    a("s_cbranch_scc1 L_kvloop")
    stamp(1)
    amppt("kvend")
    if o["dbgmode"] in (1, 2, 3):
        a("s_branch L_fin")
    a.label("L_kvpost")
    a("s_and_b32 s52, s3, 3")
    a("v_lshrrev_b32 v9, 5, v0")
    a("v_lshlrev_b32 v9, 10, v9")
    a("v_bfe_u32 v8, v0, 4, 1")
    a("v_lshl_add_u32 v9, v8, 7, v9")
    a("v_and_b32 v8, 7, v0")
    a("v_lshl_add_u32 v9, v8, 4, v9")
    a("s_lshl_b32 s58, s52, 11")
    a("v_add_u32 v9, s58, v9")
    a("v_lshlrev_b32 v3, 4, v0")
    a("v_add_u32 v3, s58, v3")
    a("v_mov_b32 v%d, %d" % (H0, L_FLAG))
    a("ds_read_b32 v%d, v%d offset:%d" % (H1, H0, F_MODE))
    for e in range(4):
        for t in range(4):
            a("v_permlane32_swap_b32 v%d, v%d" % (ACC + 4 * e + t, ACC + 16 + 4 * e + t))
    for e in range(4):
        for t in range(4):
            x = ACC + 4 * e + t; y = ACC + 16 + 4 * e + t
            a("v_add_f32_dpp v%d, v%d, v%d row_ror:8 row_mask:0xf bank_mask:0xf" % (x, y, x))
    for e in range(4):
        for t in range(4):
            x = ACC + 4 * e + t
            a("v_min_u32 v%d, -2, v%d" % (x, x))
    a("s_waitcnt lgkmcnt(0)")
    a("v_readfirstlane_b32 s63, v%d" % H1)
    a("s_lshl_b32 s59, s20, 3")
    a("s_cbranch_execz L_pubdone")
    a("s_and_b32 exec_lo, s90, 0x00ff00ff")
    a("s_and_b32 exec_hi, s91, 0x00ff00ff")
    a("s_cmp_eq_u32 s63, 2")
    a("s_cbranch_scc1 L_pubfast")
    for e in range(4):
        a("buffer_store_dwordx4 v[%d:%d], v9, s[40:43], s53 offen offset:%d sc1" % (ACC + 4 * e, ACC + 3 + 4 * e, e * 256))
    a("s_mov_b64 exec, s[90:91]")
    a("s_branch L_slow")
    a.label("L_pubfast")
    for e in range(4):
        a("buffer_store_dwordx4 v[%d:%d], v9, s[40:43], s53 offen offset:%d %s" % (ACC + 4 * e, ACC + 3 + 4 * e, e * 256, o["cst"]))
    a("s_mov_b64 exec, s[90:91]")
    a.label("L_pubdone")
    stamp(2)
    C = RING
    a("s_and_b32 s57, s90, 0xff")
    a("s_mov_b32 s62, %d" % SPIN_GLB)
    if o["cdelay"]:
        lab = a.newlabel("Lcd")
        a("s_cbranch_execz %s" % lab)
        a("s_sleep %d" % o["cdelay"])
        a.label(lab)
    def issue_pending(fl=None):
        fl = o["cld"] if fl is None else fl
        for p in range(8):
            lab = a.newlabel("Lc")
            a("s_bitcmp1_b32 s57, %d" % p)
            a("s_cbranch_scc0 %s" % lab)
            a("s_mov_b32 s58, %d" % (p * 6144))
            for i in range(2):
                r = C + 4 * (p * 2 + i)
                a("buffer_load_dwordx4 v[%d:%d], v3, s[40:43], s58 offen offset:%d %s" % (r, r + 3, i * 1024, fl))
            a.label(lab)
    def check_pending():
        for p in range(8):
            lab = a.newlabel("Lk")
            r = C + 8 * p
            a("s_bitcmp1_b32 s57, %d" % p)
            a("s_cbranch_scc0 %s" % lab)
            a("v_max3_u32 v8, v%d, v%d, v%d" % (r, r + 1, r + 2))
            a("v_max3_u32 v8, v8, v%d, v%d" % (r + 3, r + 4))
            a("v_max3_u32 v8, v8, v%d, v%d" % (r + 5, r + 6))
            a("v_max_u32 v8, v8, v%d" % (r + 7))
            a("v_cmp_eq_u32 vcc, -1, v8")
            a("s_cbranch_vccnz %s" % lab)
            a("s_bitset0_b32 s57, %d" % p)
            a.label(lab)
    if o["probe"]:
        a("s_and_b32 s56, s90, 0xff")
        a("s_lshl_b32 s55, s21, 2")
        a("s_add_u32 s55, s55, 13")
        a("s_mov_b32 s54, 30")
        a.label("L_probe")
        a("s_cmp_eq_u32 s56, 0")
        a("s_cbranch_scc1 L_probedone")
        a("s_and_b32 s58, s55, 31")
        a("s_lshl_b32 s58, s58, 6")
        a("s_lshl_b32 s93, s52, 11")
        a("s_add_u32 s58, s58, s93")
        a("s_add_u32 s82, s40, s58")
        a("s_addc_u32 s83, s41, 0")
        for p in range(8):
            a("s_load_dword s%d, s[82:83], %d" % (4 + p, p * 6144))
        a("s_add_u32 s55, s55, 1")
        a("s_waitcnt lgkmcnt(0)")
        for p in range(8):
            lab = a.newlabel("Lp")
            a("s_bitcmp1_b32 s56, %d" % p)
            a("s_cbranch_scc0 %s" % lab)
            a("s_cmp_eq_u32 s%d, -1" % (4 + p))
            a("s_cbranch_scc1 %s" % lab)
            a("s_bitset0_b32 s56, %d" % p)
            a("s_mov_b32 s58, %d" % (p * 6144))
            for i in range(2):
                r = C + 4 * (p * 2 + i)
                a("buffer_load_dwordx4 v[%d:%d], v3, s[40:43], s58 offen offset:%d %s" % (r, r + 3, i * 1024, o["cld"]))
            a.label(lab)
        if o["psl"]:
            a("s_sleep %d" % o["psl"])
        a("s_sub_u32 s54, s54, 1")
        a("s_cbranch_scc0 L_probe")
        a.label("L_probedone")
        a("s_mov_b32 s57, s56")
        a("s_and_b32 s56, s90, 0xff")
        issue_pending()
        a("s_mov_b32 s57, s56")
        a("s_branch L_collect1")
        a.label("L_collect")
        issue_pending()
        a.label("L_collect1")
        a("s_waitcnt vmcnt(0)")
        if stamps:
            lab = a.newlabel("Lfa")
            a("s_cmp_eq_u32 s62, %d" % SPIN_GLB)
            a("s_cbranch_scc0 %s" % lab)
            stamp(7)
            a.label(lab)
        check_pending()
        a("s_cmp_eq_u32 s57, 0")
        a("s_cbranch_scc1 L_collected")
        a("s_sub_u32 s62, s62, 1")
        a("s_cbranch_scc1 L_collected")
        a("s_branch L_collect")
    elif not o["pipe"]:
        if o["cld1"] is not None:
            issue_pending(o["cld1"])
            a("s_branch L_collect1")
        a.label("L_collect")
        issue_pending()
        a.label("L_collect1")
        a("s_waitcnt vmcnt(0)")
        if stamps:
            lab = a.newlabel("Lfa")
            a("s_cmp_eq_u32 s62, %d" % SPIN_GLB)
            a("s_cbranch_scc0 %s" % lab)
            stamp(7)
            a.label(lab)
        check_pending()
        a("s_cmp_eq_u32 s57, 0")
        a("s_cbranch_scc1 L_collected")
        a("s_sub_u32 s62, s62, 1")
        a("s_cbranch_scc1 L_collected")
        if o["psleep"]:
            a("s_sleep %d" % o["psleep"])
        a("s_branch L_collect")
    else:
        a.label("L_collect")
        issue_pending()
        a("s_cmp_eq_u32 s62, %d" % SPIN_GLB)
        a("s_cbranch_scc0 L_nowait")
        a("s_waitcnt vmcnt(0)")
        a("s_branch L_chk")
        a.label("L_nowait")
        a("s_sleep %d" % o["pipe"])
        a.label("L_chk")
        check_pending()
        a("s_cmp_eq_u32 s57, 0")
        a("s_cbranch_scc1 L_collected")
        a("s_sub_u32 s62, s62, 1")
        a("s_cbranch_scc0 L_collect")
    a.label("L_collected")
    stamp(3)
    S = BR
    for m in range(2):
        for i in range(2):
            for t in range(4):
                q = [C + 4 * (2 * (4 * m + k) + i) + t for k in range(4)]
                d = S + 8 * m + 4 * i + t
                a("v_add_f32 v%d, v%d, v%d" % (d, q[0], q[1]))
                a("v_add_f32 v%d, v%d, v%d" % (d + 16, q[2], q[3]))
                a("v_add_f32 v%d, v%d, v%d" % (d, d, d + 16))
    a("v_bfe_u32 v6, v0, 3, 1")
    a("v_and_b32 v7, 7, v0")
    a("v_lshrrev_b32 v8, 4, v0")
    a("v_mul_u32_u24 v9, %d, v6" % (4 * KP_STRIDE))
    a("v_lshl_add_u32 v9, v7, 4, v9")
    a("v_lshl_add_u32 v9, v8, 1, v9")
    a("s_lshl_b32 s58, s52, 7")
    a("s_add_u32 s58, s58, %d" % L_KP)
    a("v_add_u32 v9, s58, v9")
    a("v_lshl_add_u32 v10, v7, 3, v8")
    a("v_lshlrev_b32 v10, 4, v10")
    a("v_lshl_add_u32 v10, v6, 3, v10")
    a("s_lshl_b32 s58, s52, 10")
    a("s_add_u32 s58, s58, %d" % L_VP)
    a("v_add_u32 v10, s58, v10")
    P = ACC + 16
    for i in range(2):
        b = S + 4 * i
        a("v_cvt_pk_bf16_f32 v%d, v%d, v%d" % (P + 2 * i, b, b + 1))
        a("v_cvt_pk_bf16_f32 v%d, v%d, v%d" % (P + 1 + 2 * i, b + 2, b + 3))
        b = S + 8 + 4 * i
        a("v_cvt_pk_bf16_f32 v%d, v%d, v%d" % (P + 4 + 2 * i, b, b + 1))
        a("v_cvt_pk_bf16_f32 v%d, v%d, v%d" % (P + 5 + 2 * i, b + 2, b + 3))
    for i in range(2):
        a("ds_write_b16 v9, v%d offset:%d" % (P + 2 * i, 0 * KP_STRIDE + 8 * i))
        a("ds_write_b16_d16_hi v9, v%d offset:%d" % (P + 2 * i, 1 * KP_STRIDE + 8 * i))
        a("ds_write_b16 v9, v%d offset:%d" % (P + 1 + 2 * i, 2 * KP_STRIDE + 8 * i))
        a("ds_write_b16_d16_hi v9, v%d offset:%d" % (P + 1 + 2 * i, 3 * KP_STRIDE + 8 * i))
        a("ds_write_b64 v10, v[%d:%d] offset:%d" % (P + 4 + 2 * i, P + 5 + 2 * i, 64 * i))
    a("s_waitcnt lgkmcnt(0)")
    lds_signal(F_READY)
    amppt("ready")
    stamp(4)
    if dry:
        a("s_cbranch_execz L_dryret1")
    a("s_cmp_eq_u32 s63, 2")
    a("s_cbranch_scc0 L_kvend")
    if not o["diag"]:
        pubflag()
    a.label("L_kvend")
    if stamps:
        a("s_waitcnt lgkmcnt(0)")
        a("s_mov_b32 s74, %s" % ("s80" if o["stampE"] else "s78"))
        a("s_sub_u32 s79, %d, s62" % SPIN_GLB)
    a("s_branch L_fin")
    a.label("L_slow")
    pubflag()
    a("s_mov_b32 s62, %d" % SPIN_GLB)
    a("s_mov_b64 exec, 1")
    a.label("L_slowpoll")
    a("v_mov_b32 v6, 0")
    a("v_mov_b32 v7, 0")
    a("buffer_atomic_or_x2 v[6:7], off, s[44:47], s59 sc0 sc1")
    a("s_waitcnt vmcnt(0)")
    a("v_and_b32 v6, v6, v7")
    a("v_and_b32 v6, 0x40404040, v6")
    a("s_nop 0")
    a("v_readfirstlane_b32 s58, v6")
    a("s_cmp_eq_u32 s58, 0x40404040")
    a("s_cbranch_scc1 L_slowgo")
    a("s_sub_u32 s62, s62, 1")
    a("s_cbranch_scc1 L_slowgo")
    a("s_sleep 32")
    a("s_branch L_slowpoll")
    a.label("L_slowgo")
    a("s_mov_b64 exec, -1")
    for p in range(8):
        a("s_mov_b32 s58, %d" % (p * 6144))
        for i in range(2):
            r = C + 4 * (p * 2 + i)
            a("buffer_load_dwordx4 v[%d:%d], v3, s[40:43], s58 offen offset:%d sc1" % (r, r + 3, i * 1024))
    a("s_waitcnt vmcnt(0)")
    a("s_branch L_collected")

    a.label("L_qwave")
    a("s_barrier")
    for n in range(6):
        a("v_add_u32 v110, %d, v0" % (64 * n))
        a("v_mul_u32_u24 v111, 2731, v110")
        a("v_lshrrev_b32 v111, 17, v111")
        a("v_and_b32 v111, 7, v111")
        a("v_lshlrev_b32 v111, 4, v111")
        a("v_lshlrev_b32 v110, 4, v110")
        a("v_xor_b32 v%d, v110, v111" % (140 + n))
    a("s_sub_u32 s55, s3, %d" % NKV)
    a("s_mul_i32 s56, s55, 12288")
    if o["dbgmode"] == 1:
        a("s_cmp_eq_u32 s3, %d" % (NKV + 1))
        a("s_cbranch_scc0 L_fin")
    a("s_cmp_eq_u32 s3, %d" % (NKV + 0))
    a("s_cbranch_scc1 L_aux")
    if o["edirect"] or not o["eself"]:
        a("s_cmp_eq_u32 s3, %d" % (NKV + 1))
        a("s_cbranch_scc1 L_estage")
    if o["touch"]:
        lab = a.newlabel("Lnt")
        a("s_cmp_eq_u32 s3, %d" % (NKV + 4))
        a("s_cbranch_scc0 %s" % lab)
        a("v_mul_u32_u24 v12, 98300, v0")
        a("s_mov_b64 exec, 3")
        a("buffer_load_dword v13, v12, s[32:35], 0 offen")
        a("buffer_load_dword v14, v12, s[36:39], 0 offen")
        a("s_mov_b64 exec, -1")
        a("s_waitcnt vmcnt(0)")
        a.label(lab)
    if dry:
        a("s_cmp_eq_u32 s3, %d" % (NKV + 2))
        a("s_cbranch_scc1 L_dry1")
        a("s_cmp_eq_u32 s3, %d" % (NKV + 3))
        a("s_cbranch_scc1 L_dry2")
    a("s_branch L_qmain")
    if dry:
        a.label("L_dry1")
        a("s_mov_b64 s[90:91], 0")
        a("s_mov_b64 exec, 0")
        a("s_branch L_kvpost")
        a.label("L_dryret1")
        a("s_mov_b64 s[90:91], -1")
        a("s_mov_b64 exec, -1")
        a("s_branch L_qmain")
        a.label("L_dry2")
        a("s_mov_b64 s[90:91], 0")
        a("s_mov_b64 exec, 0")
        a("s_branch L_phase2")
        a.label("L_dryret2")
        a("s_mov_b64 s[90:91], -1")
        a("s_mov_b64 exec, -1")
        a("s_branch L_qmain")

    a.label("L_estage")
    a("v_and_b32 v3, 7, v0")
    a("v_lshrrev_b32 v4, 3, v0")
    a("v_lshlrev_b32 v2, 12, v3")
    a("v_lshl_add_u32 v2, v4, 4, v2")
    a("s_lshl_b32 s58, s23, 10")
    for k in range(8):
        a("s_mov_b32 m0, %d" % (L_E + k * 1024))
        a("s_nop 0")
        a("buffer_load_dwordx4 v2, s[28:31], s58 offen lds")
        if k < 7:
            a("s_add_u32 s58, s58, 128")
    a("s_waitcnt vmcnt(0)")
    lds_signal(F_E)
    a("s_branch L_qmain")

    a.label("L_aux")
    a("v_lshlrev_b32 v1, 4, v0")
    for r in range(12, 16):
        a("v_mov_b32 v%d, -1" % r)
    a("s_mov_b32 s58, s53")
    for n in range(6):
        if n == 4:
            a("s_add_u32 s58, s58, 4096")
        if not o["noclear"]:
            a("buffer_store_dwordx4 v[12:15], v1, s[40:43], s58 offen offset:%d" % ((n % 4) * 1024))
    a("s_getreg_b32 s57, hwreg(HW_REG_XCC_ID)")
    a("s_and_b32 s57, s57, 7")
    a("s_or_b32 s57, s57, 0x80")
    a("v_mov_b32 v2, s57")
    a("s_lshl_b32 s59, s20, 3")
    a("s_add_u32 s58, s59, s21")
    a("s_mul_i32 s57, s57, 0x01010101")
    a("s_waitcnt vmcnt(0)")
    if o["diag"]:
        a("s_branch L_auxfast")
    a("s_mov_b64 exec, 1")
    a("buffer_store_byte v2, off, s[44:47], s58")
    a("s_mov_b32 s62, %d" % o["auxpolls"])
    a.label("L_auxpoll")
    a("s_sleep %d" % o["auxsleep"])
    a("buffer_load_dwordx2 v[4:5], off, s[44:47], s59 sc1")
    a("s_waitcnt vmcnt(0)")
    a("v_readfirstlane_b32 s60, v4")
    a("v_readfirstlane_b32 s61, v5")
    a("s_and_b32 s60, s60, 0xbfbfbfbf")
    a("s_and_b32 s61, s61, 0xbfbfbfbf")
    a("s_cmp_eq_u32 s60, s57")
    a("s_cselect_b32 s60, s61, 0")
    a("s_cmp_eq_u32 s60, s57")
    a("s_cbranch_scc1 L_auxfast")
    a("s_sub_u32 s62, s62, 1")
    a("s_cbranch_scc0 L_auxpoll")
    a("s_branch L_auxdone")
    a.label("L_auxfast")
    if fast:
        a("s_mov_b64 exec, -1")
        lds_signal(F_MODE, 2)
    a.label("L_auxdone")
    a("s_mov_b64 exec, -1")
    stamp(3)

    a.label("L_qmain")
    if o["dbgmode"] in (1, 2):
        a("s_branch L_fin")
    if o["ramp"]:
        a("s_sub_u32 s57, s3, %d" % NKV)
        a("s_mul_i32 s57, s57, %d" % (3 * D // 2))
        a("s_lshr_b32 s57, s57, 3")
        a("s_add_u32 s57, s57, 1")
        lds_poll(F_TRIG, "s57", "T", sleep=o["tsleep"])
    else:
        lds_poll(F_TRIG, 1, "T", sleep=o["tsleep"])
    stamp(1)
    def q_dma(k):
        t, n = divmod(k, 6)
        a("s_add_u32 m0, s56, %d" % (L_Q + t * 6144 + n * 1024))
        if t == 1 and n == 0:
            a("s_add_u32 s57, s56, 6144")
        else:
            a("s_nop 0")
        a("buffer_load_dwordx4 v%d, s[32:35], %s offen %s lds" % (140 + n, "s56" if t == 0 else "s57", ld))
    for k in range(12):
        if k >= qdepth:
            a("s_waitcnt vmcnt(%d)" % (qdepth - 1))
        if o["early"] and k >= 6 + qdepth - 1 and k < 12:
            pass
        q_dma(k)
        if o["early"] and k >= 5 + qdepth and k < 11:
            a("ds_read_b32 v%d, v%d offset:%d" % (H1, H0, F_READY - F_TRIG))
            a("s_waitcnt lgkmcnt(0)")
            a("v_readfirstlane_b32 s63, v%d" % H1)
            a("s_cmp_ge_u32 s63, 3")
            a("s_cbranch_scc1 L_rest%d" % (k + 1))
    if o["early"]:
        a("s_branch L_allissued")
        for k in range(6 + qdepth, 12):
            a.label("L_rest%d" % k)
            q_dma(k)
        a.label("L_allissued")
    if o["qiss"]:
        lds_signal(F_QISS)
    amppt("qiss")
    stamp(2)
    if o["dbgmode"] == 3:
        a("s_branch L_fin")

    a.label("L_phase2")
    a("v_and_b32 v138, 15, v0")
    a("v_lshrrev_b32 v139, 4, v0")
    a("v_lshrrev_b32 v132, 1, v138")
    a("v_xor_b32 v132, v132, v139")
    a("v_lshlrev_b32 v132, 4, v132")
    a("v_mul_u32_u24 v133, 384, v138")
    a("v_add_u32 v132, v132, v133")
    a("v_add_u32 v132, s56, v132")
    a("v_xor_b32 v133, 64, v132")
    a("v_and_b32 v134, 7, v0")
    a("v_mul_u32_u24 v134, %d, v134" % KP_STRIDE)
    a("v_lshl_add_u32 v134, v139, 4, v134")
    a("v_add_u32 v134, %d, v134" % L_KP)
    a("v_lshrrev_b32 v146, 2, v138")
    a("v_and_b32 v147, 3, v138")
    a("v_lshl_add_u32 v135, v146, 3, v147")
    a("v_lshlrev_b32 v135, 4, v135")
    a("v_and_b32 v147, 1, v139")
    a("v_lshl_add_u32 v135, v147, 3, v135")
    a("v_add_u32 v135, %d, v135" % L_VP)
    a("v_lshlrev_b32 v136, 4, v0")
    a("v_cmp_gt_u32 vcc, 32, v0")
    a("v_mov_b32 v137, 0")
    a("s_nop 0")
    a("v_cndmask_b32_e64 v137, v137, 1.0, vcc")
    a("s_waitcnt vmcnt(6)")
    for m in range(6):
        a("ds_read_b128 v[%d:%d], v%d offset:%d" % (52 + 4 * m, 55 + 4 * m, 132 + (m & 1), (m >> 1) * 128))
    lds_poll(F_READY, 3, "R", dryskip=True)
    stamp(4)
    for m in range(6):
        a("ds_read_b128 v[%d:%d], v134 offset:%d" % (4 + 4 * m, 7 + 4 * m, m * 64))
    for T in range(12):
        U, b = divmod(T, 2)
        a("ds_read_b64 v[%d:%d], v135 offset:%d" % (28 + 2 * T, 29 + 2 * T, (32 * U + 4 * b) * 16))
    a("s_mov_b32 s55, 0")
    a("s_waitcnt lgkmcnt(12)")
    a("s_branch L_tile1")
    a.label("L_tile")
    a("s_waitcnt vmcnt(6)")
    for m in range(6):
        a("ds_read_b128 v[%d:%d], v%d offset:%d" % (52 + 4 * m, 55 + 4 * m, 132 + (m & 1), (m >> 1) * 128))
    a("s_waitcnt lgkmcnt(0)")
    a.label("L_tile1")
    for m in range(6):
        a("v_mfma_f32_16x16x32_bf16 v[76:79], v[%d:%d], v[%d:%d], %s" % (4 + 4 * m, 7 + 4 * m, 52 + 4 * m, 55 + 4 * m, "0" if m == 0 else "v[76:79]"))
    a("s_add_u32 s58, s56, 4096")
    a("s_nop 6")
    Z = 76
    def rnd():
        a("v_cvt_pk_bf16_f32 v80, v76, v77")
        a("v_cvt_pk_bf16_f32 v81, v78, v79")
        a("v_lshlrev_b32 v76, 16, v80")
        a("v_and_b32 v77, 0xffff0000, v80")
        a("v_lshlrev_b32 v78, 16, v81")
        a("v_and_b32 v79, 0xffff0000, v81")
    if o["round_emul"]:
        rnd()
    for t in range(4):
        a("v_mul_f32 v%d, s50, v%d" % (Z + t, Z + t))
    if o["round_emul"]:
        rnd()
    a("v_max3_f32 v82, v76, v77, v78")
    a("v_max_f32 v82, v82, v79")
    a("v_mov_b32 v83, v82")
    a("s_nop 1")
    a("v_permlane16_swap_b32 v82, v83")
    a("s_nop 1")
    a("v_max_f32 v82, v82, v83")
    a("v_mul_f32 v82, s51, v82")
    for t in range(4):
        a("v_fma_f32 v%d, v%d, s51, -v82" % (Z + t, Z + t))
    for t in range(4):
        a("v_exp_f32 v%d, v%d" % (Z + t, Z + t))
    a("s_nop 0")
    a("v_add_f32 v82, v76, v77")
    a("v_add_f32 v83, v78, v79")
    a("v_add_f32 v82, v82, v83")
    a("v_mov_b32 v83, v82")
    a("s_nop 1")
    a("v_permlane16_swap_b32 v82, v83")
    a("s_nop 1")
    a("v_add_f32 v82, v82, v83")
    a("v_rcp_f32 v82, v82")
    a("s_nop 0")
    a("v_mul_f32 v82, v82, v137")
    for t in range(4):
        a("v_mul_f32 v%d, v%d, v82" % (Z + t, Z + t))
    a("v_cvt_pk_bf16_f32 v80, v76, v77")
    a("v_cvt_pk_bf16_f32 v81, v78, v79")
    a("s_waitcnt lgkmcnt(0)")
    a("s_nop 0")
    DD = 52
    for T in range(12):
        a("v_mfma_f32_16x16x16_bf16 v[%d:%d], v[%d:%d], v[80:81], 0" % (84 + 4 * T, 87 + 4 * T, 28 + 2 * T, 29 + 2 * T))
    def dreg(T):
        return 84 + 4 * T
    for U in range(6):
        pk = dreg(2 * U)
        if U == 0:
            a("s_nop 1")
        da, db = dreg(2 * U), dreg(2 * U + 1)
        a("v_cvt_pk_bf16_f32 v%d, v%d, v%d" % (pk, da, da + 1))
        a("v_cvt_pk_bf16_f32 v%d, v%d, v%d" % (pk + 1, da + 2, da + 3))
        a("v_cvt_pk_bf16_f32 v%d, v%d, v%d" % (pk + 2, db, db + 1))
        a("v_cvt_pk_bf16_f32 v%d, v%d, v%d" % (pk + 3, db + 2, db + 3))
        a("ds_write_b128 v%d, v[%d:%d] offset:%d" % (132 + (U & 1), pk, pk + 3, (U >> 1) * 128))
    a("s_waitcnt lgkmcnt(0)")
    if o["qiss"]:
        lab = a.newlabel("Lqi")
        a("s_cmp_lg_u32 s55, 0")
        a("s_cbranch_scc1 %s" % lab)
        lds_poll(F_QISS, 8, "I", dryskip=True)
        if o["hold"]:
            a("s_add_u32 s98, s98, %d" % o["hold"])
            a.label("L_hold")
            a("s_memrealtime s[84:85]")
            a("s_waitcnt lgkmcnt(0)")
            a("s_sub_u32 s87, s98, s84")
            a("s_cmp_gt_i32 s87, 0")
            a("s_cbranch_scc0 L_holdend")
            a("s_sleep 2")
            a("s_branch L_hold")
            a.label("L_holdend")
        a.label(lab)
    for n in range(6):
        a("v_add_u32 v%d, s56, v%d" % (84 + n, 140 + n))
    for n in range(6):
        a("ds_read_b128 v[%d:%d], v%d" % (52 + 4 * n, 55 + 4 * n, 84 + n))
    for n in range(6):
        a("s_waitcnt lgkmcnt(%d)" % (5 - n))
        so, imm = ("s56", n * 1024) if n < 4 else ("s58", (n - 4) * 1024)
        lab = a.newlabel("Lst")
        if dry:
            a("s_cbranch_execz %s" % lab)
        a("buffer_store_dwordx4 v[%d:%d], v136, s[36:39], %s offen offset:%d %s" % (52 + 4 * n, 55 + 4 * n, so, imm, st))
        if dry:
            a.label(lab)
    if dry:
        a("s_cbranch_execz L_dryret2")
    a("s_add_u32 s56, s56, 6144")
    a("v_add_u32 v132, 6144, v132")
    a("v_add_u32 v133, 6144, v133")
    a("s_add_u32 s55, s55, 1")
    a("s_cmp_lt_u32 s55, 2")
    a("s_cbranch_scc1 L_tile")
    stamp(5)
    a.label("L_fin")
    if o["amp"]:
        a("s_waitcnt vmcnt(0)")
        a("s_memrealtime s[84:85]")
        a("s_waitcnt lgkmcnt(0)")
        a("s_sub_u32 s86, %s, s94" % ("s84" if o["ampat"] is None else "s96"))
        a("s_mul_i32 s86, s86, %d" % o["amp"])
        a("s_add_u32 s86, s86, s84")
        a.label("L_amp")
        a("s_sleep 8")
        a("s_memrealtime s[84:85]")
        a("s_waitcnt lgkmcnt(0)")
        a("s_sub_u32 s87, s86, s84")
        a("s_cmp_gt_i32 s87, 0")
        a("s_cbranch_scc1 L_amp")
    if stamps:
        a("s_waitcnt vmcnt(0)")
        stamp(6)
        a("s_getreg_b32 s78, hwreg(HW_REG_XCC_ID)")
        a("s_cmp_lt_u32 s3, %d" % NKV)
        a("s_cselect_b32 s79, s79, 0")
        a("s_lshl_b32 s79, s79, 8")
        a("s_or_b32 s78, s78, s79")
        a("s_waitcnt lgkmcnt(0)")
        a("s_lshl_b32 s58, s2, 9")
        a("s_lshl_b32 s59, s3, 5")
        a("s_add_u32 s58, s58, s59")
        a("s_add_u32 s58, s58, %d" % STAMP_OFF)
        a("s_mov_b32 s40, s18"); a("s_mov_b32 s41, s19"); a("s_mov_b32 s42, 0x1000000"); a("s_mov_b32 s43, 0x20000")
        for i in range(7):
            a("v_mov_b32 v%d, s%d" % (4 + i, 64 + 2 * i))
        a("v_mov_b32 v11, s78")
        a("s_mov_b64 exec, 1")
        if stamps != "dbg":
            a("buffer_store_dwordx4 v[4:7], off, s[40:43], s58")
            a("buffer_store_dwordx4 v[8:11], off, s[40:43], s58 offset:16")
        else:
            a("v_mov_b32 v12, %d" % (L_FLAG + 16))
            a("v_not_b32 v13, v4"); a("ds_max_u32 v12, v13 offset:0")
            a("ds_max_u32 v12, v10 offset:4")
            a("s_cmp_lt_u32 s3, %d" % NKV)
            a("s_cbranch_scc0 L_dq")
            a("ds_max_u32 v12, v5 offset:8")
            a("ds_max_u32 v12, v7 offset:12")
            a("s_branch L_dq2")
            a.label("L_dq")
            a("ds_max_u32 v12, v8 offset:16")
            a("ds_max_u32 v12, v6 offset:20")
            a("ds_max_u32 v12, v9 offset:28")
            a.label("L_dq2")
            a("ds_max_u32 v12, v4 offset:24")
            a("s_waitcnt lgkmcnt(0)")
            a("v_mov_b32 v15, 1")
            a("v_mov_b32 v17, %d" % (L_FLAG + F_FIN))
            a("ds_add_rtn_u32 v16, v17, v15")
            a("s_waitcnt lgkmcnt(0)")
            a("v_readfirstlane_b32 s59, v16")
            a("s_cmp_lg_u32 s59, %d" % (NW - 1))
            a("s_cbranch_scc1 L_end")
            a("s_mov_b64 exec, 0xff")
            a("v_lshlrev_b32 v18, 2, v0")
            a("v_add_u32 v19, %d, v18" % (L_FLAG + 16))
            a("ds_read_b32 v20, v19")
            a("s_waitcnt lgkmcnt(0)")
            a("buffer_atomic_umax v20, v18, s[44:47], 0 offen sc1")
    a.label("L_end")
    a("s_endpgm")
    return wrap(["; @launch grid=(256,1,1) block=(%d,1,1) lds=%d" % (NW * 64, LDS_BYTES)], [(KN, a.text(), NVGPR, 102)])

def parse_kv(args):
    kw = {}
    for x in args:
        k, v = x.split("=", 1)
        if v in ("True", "False", "None"):
            v = eval(v)
        else:
            try: v = int(v)
            except ValueError: pass
        kw[k] = v
    return kw

if __name__ == "__main__":
    out = sys.argv[1]
    open(out, "w").write(gen(**parse_kv(sys.argv[2:])))
```

```python
import sys
from asmlib import *

L_Q = 0
L_E = 98304
L_KP = L_E + 8192
KP_STRIDE = 400
L_VP = L_KP + 8 * KP_STRIDE
L_FLAG = L_VP + 3072
LDS_BYTES = L_FLAG + 64
F_TRIG, F_READY, F_MODE, F_FIN, F_STAMP, F_E, F_JOIN, F_QISS, F_UNP = 0, 4, 8, 12, 16, 48, 52, 56, 60
STAMP_OFF = 8 << 20
SPIN_LDS = 1 << 22
SPIN_GLB = 1 << 16
NKV = 3
NQ = 8
NW = NKV + NQ
RING = 12
BR = 76
ACC = 108
AOP = 140
H0, H1 = 148, 149
NVGPR = 152

DEF = dict(ld="nt", st="nt", stamps=None, qdepth=3, depth=8, trigp=None, fast=True, dry=False, xmap="xcd",
           round_emul=True, prio=True, rot=True, tsleep=1, auxsleep=6, auxpolls=6, psleep=0, pipe=0, kvonly=False, cld="nt", cst="", touch=False, cld1=None, dbgmode=0, ramp=True, rampoff=0, cdelay=0, early=True, qiss=True, noclear=False, idle=0, stampE=False, eself=True, diag=False, amp=0, ampat=None, probe=False, psl=0, hold=0, edirect=True, auxdelay=70, burst=None, unpace=False)

def gen(**kw):
    o = dict(DEF); o.update(kw)
    globals().update({"_o": o})
    ld, st, stamps, qdepth, D = o["ld"], o["st"], o["stamps"], o["qdepth"], o["depth"]
    dry, fast = o["dry"], o["fast"]
    assert D % 2 == 0 and 8 <= D <= 14
    trigp = o["trigp"] if o["trigp"] is not None else (62 - D) // 2 + 1
    a = Asm()
    def stamp(i):
        if stamps:
            a("s_memrealtime s[%d:%d]" % (64 + 2 * i, 65 + 2 * i))
    def amppt(name):
        if o["amp"] and o["ampat"] == name:
            a("s_memrealtime s[96:97]")
    def lds_poll(off, val, name, sleep=1, dryskip=False):
        lab = a.newlabel("Lp" + name); done = a.newlabel("Ld" + name)
        if dryskip:
            a("s_cbranch_execz %s" % done)
        a("s_mov_b32 s62, %d" % SPIN_LDS)
        a("v_mov_b32 v%d, %d" % (H0, L_FLAG + off))
        a.label(lab)
        a("ds_read_b32 v%d, v%d" % (H1, H0))
        a("s_waitcnt lgkmcnt(0)")
        a("v_readfirstlane_b32 s63, v%d" % H1)
        a("s_sub_u32 s62, s62, 1")
        a("s_cbranch_scc1 %s" % done)
        a("s_cmp_ge_u32 s63, %s" % val)
        a("s_cbranch_scc1 %s" % done)
        a("s_sleep %d" % sleep)
        a("s_branch %s" % lab)
        a.label(done)
    def lds_signal(off, val=1):
        a("v_mov_b32 v%d, %d" % (H0, L_FLAG + off))
        a("v_mov_b32 v%d, %d" % (H1, val))
        a("s_and_b32 exec_lo, s90, 1")
        a("s_mov_b32 exec_hi, 0")
        a("ds_add_u32 v%d, v%d" % (H0, H1))
        a("s_mov_b64 exec, s[90:91]")
    def pubflag():
        lab = a.newlabel("Lpf")
        a("s_waitcnt vmcnt(0)")
        a("v_mov_b32 v%d, %d" % (H0, L_FLAG + F_JOIN))
        a("v_mov_b32 v%d, 1" % H1)
        a("s_mov_b64 exec, 1")
        a("ds_add_rtn_u32 v%d, v%d, v%d" % (H1, H0, H1))
        a("s_waitcnt lgkmcnt(0)")
        a("v_readfirstlane_b32 s58, v%d" % H1)
        a("s_cmp_eq_u32 s58, 2")
        a("s_cbranch_scc0 %s" % lab)
        a("s_getreg_b32 s58, hwreg(HW_REG_XCC_ID)")
        a("s_and_b32 s58, s58, 7")
        a("s_or_b32 s58, s58, 0xc0")
        a("v_mov_b32 v%d, s58" % H1)
        a("s_add_u32 s58, s59, s21")
        a("buffer_store_byte v%d, off, s[44:47], s58 sc1" % H1)
        a.label(lab)
        a("s_mov_b64 exec, -1")
    def kbase(vdst, sks):
        a("s_add_u32 s93, %s, s92" % sks)
        a("s_and_b32 s93, s93, 7")
        a("s_mul_i32 s93, s93, 24576")
        a("s_cmp_ge_u32 %s, 8" % sks)
        a("s_cselect_b32 s93, 0x1000000, s93")
        a("v_add_u32 v%d, s93, v5" % vdst)

    stamp(0)
    if o["hold"]:
        a("s_memrealtime s[98:99]")
    if o["amp"]:
        a("s_memrealtime s[94:95]")
        a("s_memrealtime s[96:97]")
    a("s_cmp_ge_u32 s2, 256")
    a("s_cbranch_scc1 L_end")
    a("s_load_dwordx16 s[4:19], s[0:1], 0")
    a("v_lshrrev_b32 v1, 6, v0")
    a("v_and_b32 v0, 63, v0")
    a("v_readfirstlane_b32 s3, v1")
    if o["xmap"] == "xcd":
        a("s_lshr_b32 s20, s2, 6")
        a("s_lshl_b32 s20, s20, 3")
        a("s_and_b32 s21, s2, 7")
        a("s_add_u32 s20, s20, s21")
        a("s_lshr_b32 s21, s2, 3")
        a("s_and_b32 s21, s21, 7")
    else:
        a("s_lshr_b32 s20, s2, 3")
        a("s_and_b32 s21, s2, 7")
    a("s_and_b32 s22, s21, 1")
    a("s_lshr_b32 s23, s21, 1")
    a("v_and_b32 v3, 7, v0")
    a("v_lshrrev_b32 v4, 3, v0")
    a("v_mul_u32_u24 v1, 3072, v4")
    a("v_lshl_add_u32 v1, v3, 4, v1")
    a("s_lshl_b32 s52, s3, 7")
    a("v_add_u32 v5, s52, v1")
    if o["rot"]:
        a("s_lshr_b32 s92, s2, 3")
        a("s_add_u32 s92, s92, s2")
        a("s_and_b32 s92, s92, 7")
    else:
        a("s_mov_b32 s92, 0")
    a("s_mul_i32 s93, s92, 24576")
    a("v_add_u32 v6, s93, v5")
    a("s_add_u32 s93, s92, 1")
    a("s_and_b32 s93, s93, 7")
    a("s_mul_i32 s93, s93, 24576")
    a("v_add_u32 v7, s93, v5")
    a("s_mul_i32 s58, s20, 786432")
    a("s_mul_i32 s59, s23, 196608")
    a("s_add_u32 s59, s59, s58")
    a("s_mov_b32 s26, 196608")
    a("s_mov_b32 s27, 0x20000")
    a("s_mov_b64 s[90:91], -1")
    amppt("prekarg")
    a("s_waitcnt lgkmcnt(0)")
    amppt("karg")
    a("s_cmp_eq_u32 s22, 0")
    a("s_cselect_b32 s24, s6, s8")
    a("s_cselect_b32 s25, s7, s9")
    a("s_cselect_b32 s28, s10, s12")
    a("s_cselect_b32 s29, s11, s13")
    a("s_add_u32 s24, s24, s59")
    a("s_addc_u32 s25, s25, 0")
    a("s_cmp_ge_u32 s3, %d" % NKV)
    a("s_cbranch_scc1 L_notkv0")
    if o["eself"] and not o["edirect"]:
        a("s_mov_b32 s30, 32768")
        a("s_mov_b32 s31, 0x20000")
        a("v_lshlrev_b32 v2, 12, v3")
        a("v_lshl_add_u32 v2, v4, 4, v2")
        a("s_lshl_b32 s58, s23, 10")
        for k in range(8):
            a("s_mov_b32 m0, %d" % (L_E + k * 1024))
            a("s_nop 0")
            a("buffer_load_dwordx4 v2, s[28:31], s58 offen lds")
            if k < 7:
                a("s_add_u32 s58, s58, 128")
        a("s_mul_i32 s58, s20, 786432")
    def xload(slot, vb, j):
        r = RING + 4 * slot
        a("buffer_load_dwordx4 v[%d:%d], v%d, s[24:27], 0 offen offset:%d %s" % (r, r + 3, vb, j * 384, ld))
    B = o["burst"] or D
    assert D <= B <= 16 and B % 2 == 0
    for n in range(D):
        xload(n, 6 + n // 8, n % 8)
    if o["edirect"]:
        a("s_mov_b32 s30, 32768")
        a("s_mov_b32 s31, 0x20000")
        a("v_lshlrev_b32 v2, 12, v3")
        a("v_lshl_add_u32 v2, v4, 4, v2")
        for h in range(2):
            a("s_add_u32 s93, s92, %d" % h)
            a("s_and_b32 s93, s93, 7")
            a("s_lshl_b32 s93, s93, 7")
            a("s_lshl_b32 s55, s23, 10")
            a("s_add_u32 s93, s93, s55")
            a("buffer_load_dwordx4 v[%d:%d], v2, s[28:31], s93 offen" % (AOP + 4 * h, AOP + 4 * h + 3))
    for n in range(D, B):
        xload(n, 6 + n // 8, n % 8)
    amppt("issued0")
    a.label("L_notkv0")
    a("s_mov_b32 s30, 32768")
    a("s_mov_b32 s31, 0x20000")
    a("s_mul_i32 s59, s21, 98304")
    a("s_add_u32 s58, s58, s59")
    a("s_add_u32 s32, s4, s58")
    a("s_addc_u32 s33, s5, 0")
    a("s_mov_b32 s34, 98304")
    a("s_mov_b32 s35, 0x20000")
    a("s_add_u32 s36, s14, s58")
    a("s_addc_u32 s37, s15, 0")
    a("s_mov_b32 s38, 98304")
    a("s_mov_b32 s39, 0x20000")
    a("s_mul_i32 s58, s20, 49152")
    a("s_add_u32 s40, s18, s58")
    a("s_addc_u32 s41, s19, 0")
    a("s_mov_b32 s42, 49152")
    a("s_mov_b32 s43, 0x20000")
    a("s_mov_b32 s44, s16")
    a("s_mov_b32 s45, s17")
    a("s_mov_b32 s46, 256")
    a("s_mov_b32 s47, 0x20000")
    a("s_mov_b32 s48, 0x05040100")
    a("s_mov_b32 s49, 0x07060302")
    a("s_mov_b32 s50, 0x3d93cd3a")
    a("s_mov_b32 s51, 0x3fb8aa3b")
    a("s_lshl_b32 s53, s22, 2")
    a("s_add_u32 s53, s53, s23")
    a("s_mul_i32 s53, s53, 6144")
    a("s_cmp_lg_u32 s3, %d" % (NW - 1))
    a("s_cbranch_scc1 L_noinit")
    a("v_lshlrev_b32 v110, 2, v0")
    a("v_add_u32 v110, %d, v110" % L_FLAG)
    a("v_mov_b32 v111, 0")
    a("s_mov_b64 exec, 0xffff")
    a("ds_write_b32 v110, v111")
    a("s_mov_b64 exec, -1")
    a("s_waitcnt lgkmcnt(0)")
    a.label("L_noinit")
    a("s_cmp_ge_u32 s3, %d" % NKV)
    a("s_cbranch_scc1 L_qwave")

    for r in range(ACC, ACC + 32):
        a("v_mov_b32 v%d, 0" % r)
    a("v_lshlrev_b32 v11, 4, v0")
    a("v_add_u32 v11, %d, v11" % L_E)
    a("s_mov_b32 s54, 0")
    if o["prio"]:
        a("s_setprio 2")
    a("s_barrier")
    a.label("L_kvloop")
    q0 = D // 8
    qs = sorted(set((2 * i + D) // 8 for i in range(8)) | set((2 * i + 1 + D) // 8 for i in range(8)))
    a("s_lshl_b32 s55, s54, 1")
    for k, q in enumerate(qs):
        a("s_add_u32 s56, s55, %d" % q)
        kbase(6 + k, "s56")
    for i in range(8):
        a("s_waitcnt vmcnt(%d)" % (D - 2))
        labb = None
        if 2 * i + D < B:
            labb = a.newlabel("Lbu")
            a("s_cmp_eq_u32 s54, 0")
            a("s_cbranch_scc1 %s" % labb)
        for u in range(2):
            n = 2 * i + u + D
            xload(n % 16, 6 + qs.index(n // 8), n % 8)
        if labb:
            a.label(labb)
        P_last_iter = 24 + i
        if o["ramp"]:
            first = 32 - D // 2 - o["rampoff"]
            for itx in (2, 3):
                Pn = 8 * itx + i
                if first <= Pn < first + D // 2:
                    lab = a.newlabel("Lnt")
                    a("s_cmp_lg_u32 s54, %d" % itx)
                    a("s_cbranch_scc1 %s" % lab)
                    lds_signal(F_TRIG)
                    a.label(lab)
        elif i == trigp % 8:
            lab = a.newlabel("Lnt")
            a("s_cmp_lg_u32 s54, %d" % (trigp // 8))
            a("s_cbranch_scc1 %s" % lab)
            lds_signal(F_TRIG)
            a.label(lab)
        jj = i % 4
        if jj == 2:
            h = i // 4
            labs = a.newlabel("Lsk")
            if o["edirect"]:
                a("s_cmp_eq_u32 s54, 0")
                a("s_cbranch_scc1 %s" % labs)
                if h == 0:
                    lab = a.newlabel("Lne")
                    a("s_cmp_lg_u32 s54, 1")
                    a("s_cbranch_scc1 %s" % lab)
                    lds_poll(F_E, 1, "E")
                    a.label(lab)
            elif h == 0:
                lab = a.newlabel("Lne")
                a("s_cmp_lg_u32 s54, 0")
                a("s_cbranch_scc1 %s" % lab)
                if not o["eself"]:
                    lds_poll(F_E, 1, "E")
                amppt("first")
                if o["stampE"]:
                    a("s_memrealtime s[80:81]")
                a.label(lab)
            a("s_add_u32 s93, s55, s92")
            if h:
                a("s_add_u32 s93, s93, 1")
            a("s_and_b32 s93, s93, 7")
            a("s_lshl_b32 s93, s93, 10")
            a("v_add_u32 v10, s93, v11")
            a("ds_read_b128 v[%d:%d], v10" % (AOP + 4 * h, AOP + 4 * h + 3))
            a.label(labs)
        r0 = RING + 8 * i; r1 = r0 + 4
        for m in range(4):
            a("v_perm_b32 v%d, v%d, v%d, s48" % (BR + 4 * (2 * m) + jj, r1 + m, r0 + m))
            a("v_perm_b32 v%d, v%d, v%d, s49" % (BR + 4 * (2 * m + 1) + jj, r1 + m, r0 + m))
        if jj == 3:
            h = i // 4
            a("s_waitcnt lgkmcnt(0)")
            a("s_nop 0")
            for e in range(8):
                a("v_mfma_f32_16x16x32_bf16 v[%d:%d], v[%d:%d], v[%d:%d], v[%d:%d]" % (ACC + 4 * e, ACC + 3 + 4 * e, AOP + 4 * h, AOP + 4 * h + 3, BR + 4 * e, BR + 3 + 4 * e, ACC + 4 * e, ACC + 3 + 4 * e))
    a("s_add_u32 s54, s54, 1")
    a("s_cmp_lt_u32 s54, 4")
    a("s_cbranch_scc1 L_kvloop")
    stamp(1)
    amppt("kvend")
    if o["dbgmode"] in (1, 2, 3):
        a("s_branch L_fin")
    a.label("L_kvpost")
    a("s_and_b32 s52, s3, 3")
    a("v_lshrrev_b32 v9, 5, v0")
    a("v_lshlrev_b32 v9, 10, v9")
    a("v_bfe_u32 v8, v0, 4, 1")
    a("v_lshl_add_u32 v9, v8, 7, v9")
    a("v_and_b32 v8, 7, v0")
    a("v_lshl_add_u32 v9, v8, 4, v9")
    a("s_lshl_b32 s58, s52, 11")
    a("v_add_u32 v9, s58, v9")
    a("v_lshlrev_b32 v3, 4, v0")
    a("v_add_u32 v3, s58, v3")
    a("v_mov_b32 v%d, %d" % (H0, L_FLAG))
    a("ds_read_b32 v%d, v%d offset:%d" % (H1, H0, F_MODE))
    for e in range(4):
        for t in range(4):
            a("v_permlane32_swap_b32 v%d, v%d" % (ACC + 4 * e + t, ACC + 16 + 4 * e + t))
    for e in range(4):
        for t in range(4):
            x = ACC + 4 * e + t; y = ACC + 16 + 4 * e + t
            a("v_add_f32_dpp v%d, v%d, v%d row_ror:8 row_mask:0xf bank_mask:0xf" % (x, y, x))
    for e in range(4):
        for t in range(4):
            x = ACC + 4 * e + t
            a("v_min_u32 v%d, -2, v%d" % (x, x))
    a("s_waitcnt lgkmcnt(0)")
    a("v_readfirstlane_b32 s63, v%d" % H1)
    a("s_lshl_b32 s59, s20, 3")
    a("s_cbranch_execz L_pubdone")
    a("s_and_b32 exec_lo, s90, 0x00ff00ff")
    a("s_and_b32 exec_hi, s91, 0x00ff00ff")
    a("s_cmp_eq_u32 s63, 2")
    a("s_cbranch_scc1 L_pubfast")
    for e in range(4):
        a("buffer_store_dwordx4 v[%d:%d], v9, s[40:43], s53 offen offset:%d sc1" % (ACC + 4 * e, ACC + 3 + 4 * e, e * 256))
    a("s_mov_b64 exec, s[90:91]")
    a("s_branch L_slow")
    a.label("L_pubfast")
    for e in range(4):
        a("buffer_store_dwordx4 v[%d:%d], v9, s[40:43], s53 offen offset:%d %s" % (ACC + 4 * e, ACC + 3 + 4 * e, e * 256, o["cst"]))
    a("s_mov_b64 exec, s[90:91]")
    a.label("L_pubdone")
    stamp(2)
    C = RING
    a("s_and_b32 s57, s90, 0xff")
    a("s_mov_b32 s62, %d" % SPIN_GLB)
    if o["cdelay"]:
        lab = a.newlabel("Lcd")
        a("s_cbranch_execz %s" % lab)
        a("s_sleep %d" % o["cdelay"])
        a.label(lab)
    def issue_pending(fl=None):
        fl = o["cld"] if fl is None else fl
        for p in range(8):
            lab = a.newlabel("Lc")
            a("s_bitcmp1_b32 s57, %d" % p)
            a("s_cbranch_scc0 %s" % lab)
            a("s_mov_b32 s58, %d" % (p * 6144))
            for i in range(2):
                r = C + 4 * (p * 2 + i)
                a("buffer_load_dwordx4 v[%d:%d], v3, s[40:43], s58 offen offset:%d %s" % (r, r + 3, i * 1024, fl))
            a.label(lab)
    def check_pending():
        for p in range(8):
            lab = a.newlabel("Lk")
            r = C + 8 * p
            a("s_bitcmp1_b32 s57, %d" % p)
            a("s_cbranch_scc0 %s" % lab)
            a("v_max3_u32 v8, v%d, v%d, v%d" % (r, r + 1, r + 2))
            a("v_max3_u32 v8, v8, v%d, v%d" % (r + 3, r + 4))
            a("v_max3_u32 v8, v8, v%d, v%d" % (r + 5, r + 6))
            a("v_max_u32 v8, v8, v%d" % (r + 7))
            a("v_cmp_eq_u32 vcc, -1, v8")
            a("s_cbranch_vccnz %s" % lab)
            a("s_bitset0_b32 s57, %d" % p)
            a.label(lab)
    if o["probe"]:
        a("s_and_b32 s56, s90, 0xff")
        a("s_lshl_b32 s55, s21, 2")
        a("s_add_u32 s55, s55, 13")
        a("s_mov_b32 s54, 30")
        a.label("L_probe")
        a("s_cmp_eq_u32 s56, 0")
        a("s_cbranch_scc1 L_probedone")
        a("s_and_b32 s58, s55, 31")
        a("s_lshl_b32 s58, s58, 6")
        a("s_lshl_b32 s93, s52, 11")
        a("s_add_u32 s58, s58, s93")
        a("s_add_u32 s82, s40, s58")
        a("s_addc_u32 s83, s41, 0")
        for p in range(8):
            a("s_load_dword s%d, s[82:83], %d" % (4 + p, p * 6144))
        a("s_add_u32 s55, s55, 1")
        a("s_waitcnt lgkmcnt(0)")
        for p in range(8):
            lab = a.newlabel("Lp")
            a("s_bitcmp1_b32 s56, %d" % p)
            a("s_cbranch_scc0 %s" % lab)
            a("s_cmp_eq_u32 s%d, -1" % (4 + p))
            a("s_cbranch_scc1 %s" % lab)
            a("s_bitset0_b32 s56, %d" % p)
            a("s_mov_b32 s58, %d" % (p * 6144))
            for i in range(2):
                r = C + 4 * (p * 2 + i)
                a("buffer_load_dwordx4 v[%d:%d], v3, s[40:43], s58 offen offset:%d %s" % (r, r + 3, i * 1024, o["cld"]))
            a.label(lab)
        if o["psl"]:
            a("s_sleep %d" % o["psl"])
        a("s_sub_u32 s54, s54, 1")
        a("s_cbranch_scc0 L_probe")
        a.label("L_probedone")
        a("s_mov_b32 s57, s56")
        a("s_and_b32 s56, s90, 0xff")
        issue_pending()
        a("s_mov_b32 s57, s56")
        a("s_branch L_collect1")
        a.label("L_collect")
        issue_pending()
        a.label("L_collect1")
        a("s_waitcnt vmcnt(0)")
        if stamps:
            lab = a.newlabel("Lfa")
            a("s_cmp_eq_u32 s62, %d" % SPIN_GLB)
            a("s_cbranch_scc0 %s" % lab)
            stamp(7)
            a.label(lab)
        check_pending()
        a("s_cmp_eq_u32 s57, 0")
        a("s_cbranch_scc1 L_collected")
        a("s_sub_u32 s62, s62, 1")
        a("s_cbranch_scc1 L_collected")
        a("s_branch L_collect")
    elif not o["pipe"]:
        if o["cld1"] is not None:
            issue_pending(o["cld1"])
            a("s_branch L_collect1")
        a.label("L_collect")
        issue_pending()
        if o["unpace"]:
            lab = a.newlabel("Lun")
            a("s_cmp_eq_u32 s62, %d" % (SPIN_GLB - 1))
            a("s_cbranch_scc0 %s" % lab)
            lds_signal(F_UNP)
            a.label(lab)
        a.label("L_collect1")
        a("s_waitcnt vmcnt(0)")
        if stamps:
            lab = a.newlabel("Lfa")
            a("s_cmp_eq_u32 s62, %d" % SPIN_GLB)
            a("s_cbranch_scc0 %s" % lab)
            stamp(7)
            a.label(lab)
        check_pending()
        a("s_cmp_eq_u32 s57, 0")
        a("s_cbranch_scc1 L_collected0")
        a("s_sub_u32 s62, s62, 1")
        a("s_cbranch_scc1 L_collected")
        if o["psleep"]:
            a("s_sleep %d" % o["psleep"])
        a("s_branch L_collect")
    else:
        a.label("L_collect")
        issue_pending()
        a("s_cmp_eq_u32 s62, %d" % SPIN_GLB)
        a("s_cbranch_scc0 L_nowait")
        a("s_waitcnt vmcnt(0)")
        a("s_branch L_chk")
        a.label("L_nowait")
        a("s_sleep %d" % o["pipe"])
        a.label("L_chk")
        check_pending()
        a("s_cmp_eq_u32 s57, 0")
        a("s_cbranch_scc1 L_collected")
        a("s_sub_u32 s62, s62, 1")
        a("s_cbranch_scc0 L_collect")
    if not o["probe"] and not o["pipe"]:
        a("s_branch L_collect")
        a.label("L_collected0")
        if o["unpace"]:
            a("s_cmp_eq_u32 s62, %d" % SPIN_GLB)
            a("s_cbranch_scc0 L_collected")
            lds_signal(F_UNP)
    a.label("L_collected")
    stamp(3)
    S = BR
    for m in range(2):
        for i in range(2):
            for t in range(4):
                q = [C + 4 * (2 * (4 * m + k) + i) + t for k in range(4)]
                d = S + 8 * m + 4 * i + t
                a("v_add_f32 v%d, v%d, v%d" % (d, q[0], q[1]))
                a("v_add_f32 v%d, v%d, v%d" % (d + 16, q[2], q[3]))
                a("v_add_f32 v%d, v%d, v%d" % (d, d, d + 16))
    a("v_bfe_u32 v6, v0, 3, 1")
    a("v_and_b32 v7, 7, v0")
    a("v_lshrrev_b32 v8, 4, v0")
    a("v_mul_u32_u24 v9, %d, v6" % (4 * KP_STRIDE))
    a("v_lshl_add_u32 v9, v7, 4, v9")
    a("v_lshl_add_u32 v9, v8, 1, v9")
    a("s_lshl_b32 s58, s52, 7")
    a("s_add_u32 s58, s58, %d" % L_KP)
    a("v_add_u32 v9, s58, v9")
    a("v_lshl_add_u32 v10, v7, 3, v8")
    a("v_lshlrev_b32 v10, 4, v10")
    a("v_lshl_add_u32 v10, v6, 3, v10")
    a("s_lshl_b32 s58, s52, 10")
    a("s_add_u32 s58, s58, %d" % L_VP)
    a("v_add_u32 v10, s58, v10")
    P = ACC + 16
    for i in range(2):
        b = S + 4 * i
        a("v_cvt_pk_bf16_f32 v%d, v%d, v%d" % (P + 2 * i, b, b + 1))
        a("v_cvt_pk_bf16_f32 v%d, v%d, v%d" % (P + 1 + 2 * i, b + 2, b + 3))
        b = S + 8 + 4 * i
        a("v_cvt_pk_bf16_f32 v%d, v%d, v%d" % (P + 4 + 2 * i, b, b + 1))
        a("v_cvt_pk_bf16_f32 v%d, v%d, v%d" % (P + 5 + 2 * i, b + 2, b + 3))
    for i in range(2):
        a("ds_write_b16 v9, v%d offset:%d" % (P + 2 * i, 0 * KP_STRIDE + 8 * i))
        a("ds_write_b16_d16_hi v9, v%d offset:%d" % (P + 2 * i, 1 * KP_STRIDE + 8 * i))
        a("ds_write_b16 v9, v%d offset:%d" % (P + 1 + 2 * i, 2 * KP_STRIDE + 8 * i))
        a("ds_write_b16_d16_hi v9, v%d offset:%d" % (P + 1 + 2 * i, 3 * KP_STRIDE + 8 * i))
        a("ds_write_b64 v10, v[%d:%d] offset:%d" % (P + 4 + 2 * i, P + 5 + 2 * i, 64 * i))
    a("s_waitcnt lgkmcnt(0)")
    lds_signal(F_READY)
    amppt("ready")
    stamp(4)
    if dry:
        a("s_cbranch_execz L_dryret1")
    a("s_cmp_eq_u32 s63, 2")
    a("s_cbranch_scc0 L_kvend")
    if not o["diag"]:
        pubflag()
    a.label("L_kvend")
    if stamps:
        a("s_waitcnt lgkmcnt(0)")
        a("s_mov_b32 s74, %s" % ("s80" if o["stampE"] else "s78"))
        a("s_sub_u32 s79, %d, s62" % SPIN_GLB)
    a("s_branch L_fin")
    a.label("L_slow")
    pubflag()
    a("s_mov_b32 s62, %d" % SPIN_GLB)
    a("s_mov_b64 exec, 1")
    a.label("L_slowpoll")
    a("v_mov_b32 v6, 0")
    a("v_mov_b32 v7, 0")
    a("buffer_atomic_or_x2 v[6:7], off, s[44:47], s59 sc0 sc1")
    a("s_waitcnt vmcnt(0)")
    a("v_and_b32 v6, v6, v7")
    a("v_and_b32 v6, 0x40404040, v6")
    a("s_nop 0")
    a("v_readfirstlane_b32 s58, v6")
    a("s_cmp_eq_u32 s58, 0x40404040")
    a("s_cbranch_scc1 L_slowgo")
    a("s_sub_u32 s62, s62, 1")
    a("s_cbranch_scc1 L_slowgo")
    a("s_sleep 32")
    a("s_branch L_slowpoll")
    a.label("L_slowgo")
    a("s_mov_b64 exec, -1")
    if o["unpace"]:
        lds_signal(F_UNP)
    for p in range(8):
        a("s_mov_b32 s58, %d" % (p * 6144))
        for i in range(2):
            r = C + 4 * (p * 2 + i)
            a("buffer_load_dwordx4 v[%d:%d], v3, s[40:43], s58 offen offset:%d sc1" % (r, r + 3, i * 1024))
    a("s_waitcnt vmcnt(0)")
    a("s_branch L_collected")

    a.label("L_qwave")
    a("s_barrier")
    for n in range(6):
        a("v_add_u32 v110, %d, v0" % (64 * n))
        a("v_mul_u32_u24 v111, 2731, v110")
        a("v_lshrrev_b32 v111, 17, v111")
        a("v_and_b32 v111, 7, v111")
        a("v_lshlrev_b32 v111, 4, v111")
        a("v_lshlrev_b32 v110, 4, v110")
        a("v_xor_b32 v%d, v110, v111" % (140 + n))
    a("s_sub_u32 s55, s3, %d" % NKV)
    a("s_mul_i32 s56, s55, 12288")
    if o["dbgmode"] == 1:
        a("s_cmp_eq_u32 s3, %d" % (NKV + 1))
        a("s_cbranch_scc0 L_fin")
    a("s_cmp_eq_u32 s3, %d" % (NKV + 0))
    a("s_cbranch_scc1 L_aux")
    if o["edirect"] or not o["eself"]:
        a("s_cmp_eq_u32 s3, %d" % (NKV + 1))
        a("s_cbranch_scc1 L_estage")
    if o["touch"]:
        lab = a.newlabel("Lnt")
        a("s_cmp_eq_u32 s3, %d" % (NKV + 4))
        a("s_cbranch_scc0 %s" % lab)
        a("v_mul_u32_u24 v12, 98300, v0")
        a("s_mov_b64 exec, 3")
        a("buffer_load_dword v13, v12, s[32:35], 0 offen")
        a("buffer_load_dword v14, v12, s[36:39], 0 offen")
        a("s_mov_b64 exec, -1")
        a("s_waitcnt vmcnt(0)")
        a.label(lab)
    if dry:
        a("s_cmp_eq_u32 s3, %d" % (NKV + 2))
        a("s_cbranch_scc1 L_dry1")
        a("s_cmp_eq_u32 s3, %d" % (NKV + 3))
        a("s_cbranch_scc1 L_dry2")
    a("s_branch L_qmain")
    if dry:
        a.label("L_dry1")
        a("s_mov_b64 s[90:91], 0")
        a("s_mov_b64 exec, 0")
        a("s_branch L_kvpost")
        a.label("L_dryret1")
        a("s_mov_b64 s[90:91], -1")
        a("s_mov_b64 exec, -1")
        a("s_branch L_qmain")
        a.label("L_dry2")
        a("s_mov_b64 s[90:91], 0")
        a("s_mov_b64 exec, 0")
        a("s_branch L_phase2")
        a.label("L_dryret2")
        a("s_mov_b64 s[90:91], -1")
        a("s_mov_b64 exec, -1")
        a("s_branch L_qmain")

    a.label("L_estage")
    a("v_and_b32 v3, 7, v0")
    a("v_lshrrev_b32 v4, 3, v0")
    a("v_lshlrev_b32 v2, 12, v3")
    a("v_lshl_add_u32 v2, v4, 4, v2")
    a("s_lshl_b32 s58, s23, 10")
    for k in range(8):
        a("s_mov_b32 m0, %d" % (L_E + k * 1024))
        a("s_nop 0")
        a("buffer_load_dwordx4 v2, s[28:31], s58 offen lds")
        if k < 7:
            a("s_add_u32 s58, s58, 128")
    a("s_waitcnt vmcnt(0)")
    lds_signal(F_E)
    a("s_branch L_qmain")

    a.label("L_aux")
    for _ in range(o["auxdelay"] // 127):
        a("s_sleep 127")
    if o["auxdelay"] % 127:
        a("s_sleep %d" % (o["auxdelay"] % 127))
    a("v_lshlrev_b32 v1, 4, v0")
    for r in range(12, 16):
        a("v_mov_b32 v%d, -1" % r)
    a("s_mov_b32 s58, s53")
    for n in range(6):
        if n == 4:
            a("s_add_u32 s58, s58, 4096")
        if not o["noclear"]:
            a("buffer_store_dwordx4 v[12:15], v1, s[40:43], s58 offen offset:%d" % ((n % 4) * 1024))
    a("s_getreg_b32 s57, hwreg(HW_REG_XCC_ID)")
    a("s_and_b32 s57, s57, 7")
    a("s_or_b32 s57, s57, 0x80")
    a("v_mov_b32 v2, s57")
    a("s_lshl_b32 s59, s20, 3")
    a("s_add_u32 s58, s59, s21")
    a("s_mul_i32 s57, s57, 0x01010101")
    a("s_waitcnt vmcnt(0)")
    if o["diag"]:
        a("s_branch L_auxfast")
    a("s_mov_b64 exec, 1")
    a("buffer_store_byte v2, off, s[44:47], s58")
    a("s_mov_b32 s62, %d" % o["auxpolls"])
    a.label("L_auxpoll")
    a("s_sleep %d" % o["auxsleep"])
    a("buffer_load_dwordx2 v[4:5], off, s[44:47], s59 sc1")
    a("s_waitcnt vmcnt(0)")
    a("v_readfirstlane_b32 s60, v4")
    a("v_readfirstlane_b32 s61, v5")
    a("s_and_b32 s60, s60, 0xbfbfbfbf")
    a("s_and_b32 s61, s61, 0xbfbfbfbf")
    a("s_cmp_eq_u32 s60, s57")
    a("s_cselect_b32 s60, s61, 0")
    a("s_cmp_eq_u32 s60, s57")
    a("s_cbranch_scc1 L_auxfast")
    a("s_sub_u32 s62, s62, 1")
    a("s_cbranch_scc0 L_auxpoll")
    a("s_branch L_auxdone")
    a.label("L_auxfast")
    if fast:
        a("s_mov_b64 exec, -1")
        lds_signal(F_MODE, 2)
    a.label("L_auxdone")
    a("s_mov_b64 exec, -1")
    stamp(3)

    a.label("L_qmain")
    if o["dbgmode"] in (1, 2):
        a("s_branch L_fin")
    if o["ramp"]:
        a("s_sub_u32 s57, s3, %d" % NKV)
        a("s_mul_i32 s57, s57, %d" % (3 * D // 2))
        a("s_lshr_b32 s57, s57, 3")
        a("s_add_u32 s57, s57, 1")
        lds_poll(F_TRIG, "s57", "T", sleep=o["tsleep"])
    else:
        lds_poll(F_TRIG, 1, "T", sleep=o["tsleep"])
    stamp(1)
    def q_dma(k):
        t, n = divmod(k, 6)
        a("s_add_u32 m0, s56, %d" % (L_Q + t * 6144 + n * 1024))
        if t == 1 and n == 0:
            a("s_add_u32 s57, s56, 6144")
        else:
            a("s_nop 0")
        a("buffer_load_dwordx4 v%d, s[32:35], %s offen %s lds" % (140 + n, "s56" if t == 0 else "s57", ld))
    flag_off, flag_val, k_first = (F_UNP, 3, qdepth - 1) if o["unpace"] else (F_READY, 3, 5 + qdepth)
    for k in range(12):
        if k >= qdepth:
            a("s_waitcnt vmcnt(%d)" % (qdepth - 1))
        q_dma(k)
        if o["early"] and k >= k_first and k < 11:
            a("ds_read_b32 v%d, v%d offset:%d" % (H1, H0, flag_off - F_TRIG))
            a("s_waitcnt lgkmcnt(0)")
            a("v_readfirstlane_b32 s63, v%d" % H1)
            a("s_cmp_ge_u32 s63, %d" % flag_val)
            a("s_cbranch_scc1 L_rest%d" % (k + 1))
    if o["early"]:
        a("s_branch L_allissued")
        for k in range(k_first + 1, 12):
            a.label("L_rest%d" % k)
            q_dma(k)
        a.label("L_allissued")
    if o["qiss"]:
        lds_signal(F_QISS)
    amppt("qiss")
    stamp(2)
    if o["dbgmode"] == 3:
        a("s_branch L_fin")

    a.label("L_phase2")
    a("v_and_b32 v138, 15, v0")
    a("v_lshrrev_b32 v139, 4, v0")
    a("v_lshrrev_b32 v132, 1, v138")
    a("v_xor_b32 v132, v132, v139")
    a("v_lshlrev_b32 v132, 4, v132")
    a("v_mul_u32_u24 v133, 384, v138")
    a("v_add_u32 v132, v132, v133")
    a("v_add_u32 v132, s56, v132")
    a("v_xor_b32 v133, 64, v132")
    a("v_and_b32 v134, 7, v0")
    a("v_mul_u32_u24 v134, %d, v134" % KP_STRIDE)
    a("v_lshl_add_u32 v134, v139, 4, v134")
    a("v_add_u32 v134, %d, v134" % L_KP)
    a("v_lshrrev_b32 v146, 2, v138")
    a("v_and_b32 v147, 3, v138")
    a("v_lshl_add_u32 v135, v146, 3, v147")
    a("v_lshlrev_b32 v135, 4, v135")
    a("v_and_b32 v147, 1, v139")
    a("v_lshl_add_u32 v135, v147, 3, v135")
    a("v_add_u32 v135, %d, v135" % L_VP)
    a("v_lshlrev_b32 v136, 4, v0")
    a("v_cmp_gt_u32 vcc, 32, v0")
    a("v_mov_b32 v137, 0")
    a("s_nop 0")
    a("v_cndmask_b32_e64 v137, v137, 1.0, vcc")
    a("s_waitcnt vmcnt(6)")
    for m in range(6):
        a("ds_read_b128 v[%d:%d], v%d offset:%d" % (52 + 4 * m, 55 + 4 * m, 132 + (m & 1), (m >> 1) * 128))
    lds_poll(F_READY, 3, "R", dryskip=True)
    stamp(4)
    for m in range(6):
        a("ds_read_b128 v[%d:%d], v134 offset:%d" % (4 + 4 * m, 7 + 4 * m, m * 64))
    for T in range(12):
        U, b = divmod(T, 2)
        a("ds_read_b64 v[%d:%d], v135 offset:%d" % (28 + 2 * T, 29 + 2 * T, (32 * U + 4 * b) * 16))
    a("s_mov_b32 s55, 0")
    a("s_waitcnt lgkmcnt(12)")
    a("s_branch L_tile1")
    a.label("L_tile")
    a("s_waitcnt vmcnt(6)")
    for m in range(6):
        a("ds_read_b128 v[%d:%d], v%d offset:%d" % (52 + 4 * m, 55 + 4 * m, 132 + (m & 1), (m >> 1) * 128))
    a("s_waitcnt lgkmcnt(0)")
    a.label("L_tile1")
    for m in range(6):
        a("v_mfma_f32_16x16x32_bf16 v[76:79], v[%d:%d], v[%d:%d], %s" % (4 + 4 * m, 7 + 4 * m, 52 + 4 * m, 55 + 4 * m, "0" if m == 0 else "v[76:79]"))
    a("s_add_u32 s58, s56, 4096")
    a("s_nop 6")
    Z = 76
    def rnd():
        a("v_cvt_pk_bf16_f32 v80, v76, v77")
        a("v_cvt_pk_bf16_f32 v81, v78, v79")
        a("v_lshlrev_b32 v76, 16, v80")
        a("v_and_b32 v77, 0xffff0000, v80")
        a("v_lshlrev_b32 v78, 16, v81")
        a("v_and_b32 v79, 0xffff0000, v81")
    if o["round_emul"]:
        rnd()
    for t in range(4):
        a("v_mul_f32 v%d, s50, v%d" % (Z + t, Z + t))
    if o["round_emul"]:
        rnd()
    a("v_max3_f32 v82, v76, v77, v78")
    a("v_max_f32 v82, v82, v79")
    a("v_mov_b32 v83, v82")
    a("s_nop 1")
    a("v_permlane16_swap_b32 v82, v83")
    a("s_nop 1")
    a("v_max_f32 v82, v82, v83")
    a("v_mul_f32 v82, s51, v82")
    for t in range(4):
        a("v_fma_f32 v%d, v%d, s51, -v82" % (Z + t, Z + t))
    for t in range(4):
        a("v_exp_f32 v%d, v%d" % (Z + t, Z + t))
    a("s_nop 0")
    a("v_add_f32 v82, v76, v77")
    a("v_add_f32 v83, v78, v79")
    a("v_add_f32 v82, v82, v83")
    a("v_mov_b32 v83, v82")
    a("s_nop 1")
    a("v_permlane16_swap_b32 v82, v83")
    a("s_nop 1")
    a("v_add_f32 v82, v82, v83")
    a("v_rcp_f32 v82, v82")
    a("s_nop 0")
    a("v_mul_f32 v82, v82, v137")
    for t in range(4):
        a("v_mul_f32 v%d, v%d, v82" % (Z + t, Z + t))
    a("v_cvt_pk_bf16_f32 v80, v76, v77")
    a("v_cvt_pk_bf16_f32 v81, v78, v79")
    a("s_waitcnt lgkmcnt(0)")
    a("s_nop 0")
    DD = 52
    for T in range(12):
        a("v_mfma_f32_16x16x16_bf16 v[%d:%d], v[%d:%d], v[80:81], 0" % (84 + 4 * T, 87 + 4 * T, 28 + 2 * T, 29 + 2 * T))
    def dreg(T):
        return 84 + 4 * T
    for U in range(6):
        pk = dreg(2 * U)
        if U == 0:
            a("s_nop 1")
        da, db = dreg(2 * U), dreg(2 * U + 1)
        a("v_cvt_pk_bf16_f32 v%d, v%d, v%d" % (pk, da, da + 1))
        a("v_cvt_pk_bf16_f32 v%d, v%d, v%d" % (pk + 1, da + 2, da + 3))
        a("v_cvt_pk_bf16_f32 v%d, v%d, v%d" % (pk + 2, db, db + 1))
        a("v_cvt_pk_bf16_f32 v%d, v%d, v%d" % (pk + 3, db + 2, db + 3))
        a("ds_write_b128 v%d, v[%d:%d] offset:%d" % (132 + (U & 1), pk, pk + 3, (U >> 1) * 128))
    a("s_waitcnt lgkmcnt(0)")
    if o["qiss"]:
        lab = a.newlabel("Lqi")
        a("s_cmp_lg_u32 s55, 0")
        a("s_cbranch_scc1 %s" % lab)
        lds_poll(F_QISS, 8, "I", dryskip=True)
        if o["hold"]:
            a("s_add_u32 s98, s98, %d" % o["hold"])
            a.label("L_hold")
            a("s_memrealtime s[84:85]")
            a("s_waitcnt lgkmcnt(0)")
            a("s_sub_u32 s87, s98, s84")
            a("s_cmp_gt_i32 s87, 0")
            a("s_cbranch_scc0 L_holdend")
            a("s_sleep 2")
            a("s_branch L_hold")
            a.label("L_holdend")
        a.label(lab)
    for n in range(6):
        a("v_add_u32 v%d, s56, v%d" % (84 + n, 140 + n))
    for n in range(6):
        a("ds_read_b128 v[%d:%d], v%d" % (52 + 4 * n, 55 + 4 * n, 84 + n))
    for n in range(6):
        a("s_waitcnt lgkmcnt(%d)" % (5 - n))
        so, imm = ("s56", n * 1024) if n < 4 else ("s58", (n - 4) * 1024)
        lab = a.newlabel("Lst")
        if dry:
            a("s_cbranch_execz %s" % lab)
        a("buffer_store_dwordx4 v[%d:%d], v136, s[36:39], %s offen offset:%d %s" % (52 + 4 * n, 55 + 4 * n, so, imm, st))
        if dry:
            a.label(lab)
    if dry:
        a("s_cbranch_execz L_dryret2")
    a("s_add_u32 s56, s56, 6144")
    a("v_add_u32 v132, 6144, v132")
    a("v_add_u32 v133, 6144, v133")
    a("s_add_u32 s55, s55, 1")
    a("s_cmp_lt_u32 s55, 2")
    a("s_cbranch_scc1 L_tile")
    stamp(5)
    a.label("L_fin")
    if o["amp"]:
        a("s_waitcnt vmcnt(0)")
        a("s_memrealtime s[84:85]")
        a("s_waitcnt lgkmcnt(0)")
        a("s_sub_u32 s86, %s, s94" % ("s84" if o["ampat"] is None else "s96"))
        a("s_mul_i32 s86, s86, %d" % o["amp"])
        a("s_add_u32 s86, s86, s84")
        a.label("L_amp")
        a("s_sleep 8")
        a("s_memrealtime s[84:85]")
        a("s_waitcnt lgkmcnt(0)")
        a("s_sub_u32 s87, s86, s84")
        a("s_cmp_gt_i32 s87, 0")
        a("s_cbranch_scc1 L_amp")
    if stamps:
        a("s_waitcnt vmcnt(0)")
        stamp(6)
        a("s_getreg_b32 s78, hwreg(HW_REG_XCC_ID)")
        a("s_cmp_lt_u32 s3, %d" % NKV)
        a("s_cselect_b32 s79, s79, 0")
        a("s_lshl_b32 s79, s79, 8")
        a("s_or_b32 s78, s78, s79")
        a("s_waitcnt lgkmcnt(0)")
        a("s_lshl_b32 s58, s2, 9")
        a("s_lshl_b32 s59, s3, 5")
        a("s_add_u32 s58, s58, s59")
        a("s_add_u32 s58, s58, %d" % STAMP_OFF)
        a("s_mov_b32 s40, s18"); a("s_mov_b32 s41, s19"); a("s_mov_b32 s42, 0x1000000"); a("s_mov_b32 s43, 0x20000")
        for i in range(7):
            a("v_mov_b32 v%d, s%d" % (4 + i, 64 + 2 * i))
        a("v_mov_b32 v11, s78")
        a("s_mov_b64 exec, 1")
        if stamps != "dbg":
            a("buffer_store_dwordx4 v[4:7], off, s[40:43], s58")
            a("buffer_store_dwordx4 v[8:11], off, s[40:43], s58 offset:16")
        else:
            a("v_mov_b32 v12, %d" % (L_FLAG + 16))
            a("v_not_b32 v13, v4"); a("ds_max_u32 v12, v13 offset:0")
            a("ds_max_u32 v12, v10 offset:4")
            a("s_cmp_lt_u32 s3, %d" % NKV)
            a("s_cbranch_scc0 L_dq")
            a("ds_max_u32 v12, v5 offset:8")
            a("ds_max_u32 v12, v7 offset:12")
            a("s_branch L_dq2")
            a.label("L_dq")
            a("ds_max_u32 v12, v8 offset:16")
            a("ds_max_u32 v12, v6 offset:20")
            a("ds_max_u32 v12, v9 offset:28")
            a.label("L_dq2")
            a("ds_max_u32 v12, v4 offset:24")
            a("s_waitcnt lgkmcnt(0)")
            a("v_mov_b32 v15, 1")
            a("v_mov_b32 v17, %d" % (L_FLAG + F_FIN))
            a("ds_add_rtn_u32 v16, v17, v15")
            a("s_waitcnt lgkmcnt(0)")
            a("v_readfirstlane_b32 s59, v16")
            a("s_cmp_lg_u32 s59, %d" % (NW - 1))
            a("s_cbranch_scc1 L_end")
            a("s_mov_b64 exec, 0xff")
            a("v_lshlrev_b32 v18, 2, v0")
            a("v_add_u32 v19, %d, v18" % (L_FLAG + 16))
            a("ds_read_b32 v20, v19")
            a("s_waitcnt lgkmcnt(0)")
            a("buffer_atomic_umax v20, v18, s[44:47], 0 offen sc1")
    a.label("L_end")
    a("s_endpgm")
    return wrap(["; @launch grid=(256,1,1) block=(%d,1,1) lds=%d" % (NW * 64, LDS_BYTES)], [(KN, a.text(), NVGPR, 102)])

def parse_kv(args):
    kw = {}
    for x in args:
        k, v = x.split("=", 1)
        if v in ("True", "False", "None"):
            v = eval(v)
        else:
            try: v = int(v)
            except ValueError: pass
        kw[k] = v
    return kw

if __name__ == "__main__":
    out = sys.argv[1]
    open(out, "w").write(gen(**parse_kv(sys.argv[2:])))
```

```python
import sys
from asmlib import *

L_Q = 0
L_E = 98304
L_KP = L_E + 8192
KP_STRIDE = 400
L_VP = L_KP + 8 * KP_STRIDE
L_FLAG = L_VP + 3072
LDS_BYTES = L_FLAG + 64
F_TRIG, F_READY, F_MODE, F_FIN, F_STAMP, F_E, F_JOIN, F_QISS, F_UNP = 0, 4, 8, 12, 16, 48, 52, 56, 60
STAMP_OFF = 8 << 20
SPIN_LDS = 1 << 22
SPIN_GLB = 1 << 16
NKV = 3
NQ = 8
NW = NKV + NQ
RING = 12
BR = 76
ACC = 108
AOP = 140
H0, H1 = 148, 149
NVGPR = 152

DEF = dict(ld="nt", st="nt", stamps=None, qdepth=3, depth=8, trigp=None, fast=True, dry=False, xmap="xcd",
           round_emul=True, prio=True, rot=True, tsleep=1, auxsleep=6, auxpolls=6, psleep=0, pipe=0, kvonly=False, cld="nt", cst="", touch=False, cld1=None, dbgmode=0, ramp=True, rampoff=0, cdelay=0, early=True, qiss=True, noclear=False, idle=0, stampE=False, eself=True, diag=False, amp=0, ampat=None, probe=False, psl=0, hold=0, edirect=True, auxdelay=70, burst=None, unpace=False, yieldx=0, ykv=2, yq=1, ybit=None)

def gen(**kw):
    o = dict(DEF); o.update(kw)
    globals().update({"_o": o})
    ld, st, stamps, qdepth, D = o["ld"], o["st"], o["stamps"], o["qdepth"], o["depth"]
    dry, fast = o["dry"], o["fast"]
    assert D % 2 == 0 and 8 <= D <= 14
    assert D == 8 or not o["edirect"]
    trigp = o["trigp"] if o["trigp"] is not None else (62 - D) // 2 + 1
    a = Asm()
    def stamp(i):
        if stamps:
            a("s_memrealtime s[%d:%d]" % (64 + 2 * i, 65 + 2 * i))
    def amppt(name):
        if o["amp"] and o["ampat"] == name:
            a("s_memrealtime s[96:97]")
    def lds_poll(off, val, name, sleep=1, dryskip=False):
        lab = a.newlabel("Lp" + name); done = a.newlabel("Ld" + name)
        if dryskip:
            a("s_cbranch_execz %s" % done)
        a("s_mov_b32 s62, %d" % SPIN_LDS)
        a("v_mov_b32 v%d, %d" % (H0, L_FLAG + off))
        a.label(lab)
        a("ds_read_b32 v%d, v%d" % (H1, H0))
        a("s_waitcnt lgkmcnt(0)")
        a("v_readfirstlane_b32 s63, v%d" % H1)
        a("s_sub_u32 s62, s62, 1")
        a("s_cbranch_scc1 %s" % done)
        a("s_cmp_ge_u32 s63, %s" % val)
        a("s_cbranch_scc1 %s" % done)
        a("s_sleep %d" % sleep)
        a("s_branch %s" % lab)
        a.label(done)
    def lds_signal(off, val=1):
        a("v_mov_b32 v%d, %d" % (H0, L_FLAG + off))
        a("v_mov_b32 v%d, %d" % (H1, val))
        a("s_and_b32 exec_lo, s90, 1")
        a("s_mov_b32 exec_hi, 0")
        a("ds_add_u32 v%d, v%d" % (H0, H1))
        a("s_mov_b64 exec, s[90:91]")
    def pubflag():
        lab = a.newlabel("Lpf")
        a("s_waitcnt vmcnt(0)")
        a("v_mov_b32 v%d, %d" % (H0, L_FLAG + F_JOIN))
        a("v_mov_b32 v%d, 1" % H1)
        a("s_mov_b64 exec, 1")
        a("ds_add_rtn_u32 v%d, v%d, v%d" % (H1, H0, H1))
        a("s_waitcnt lgkmcnt(0)")
        a("v_readfirstlane_b32 s58, v%d" % H1)
        a("s_cmp_eq_u32 s58, 2")
        a("s_cbranch_scc0 %s" % lab)
        a("s_getreg_b32 s58, hwreg(HW_REG_XCC_ID)")
        a("s_and_b32 s58, s58, 7")
        a("s_or_b32 s58, s58, 0xc0")
        a("v_mov_b32 v%d, s58" % H1)
        a("s_add_u32 s58, s59, s21")
        a("buffer_store_byte v%d, off, s[44:47], s58 sc1" % H1)
        a.label(lab)
        a("s_mov_b64 exec, -1")
    def kbase(vdst, sks):
        a("s_add_u32 s93, %s, s92" % sks)
        a("s_and_b32 s93, s93, 7")
        a("s_mul_i32 s93, s93, 24576")
        a("s_cmp_ge_u32 %s, 8" % sks)
        a("s_cselect_b32 s93, 0x1000000, s93")
        a("v_add_u32 v%d, s93, v5" % vdst)

    stamp(0)
    if o["hold"]:
        a("s_memrealtime s[98:99]")
    if o["amp"]:
        a("s_memrealtime s[94:95]")
        a("s_memrealtime s[96:97]")
    a("s_cmp_ge_u32 s2, 256")
    a("s_cbranch_scc1 L_end")
    a("s_load_dwordx16 s[4:19], s[0:1], 0")
    a("v_lshrrev_b32 v1, 6, v0")
    a("v_and_b32 v0, 63, v0")
    a("v_readfirstlane_b32 s3, v1")
    if o["xmap"] == "xcd":
        a("s_lshr_b32 s20, s2, 6")
        a("s_lshl_b32 s20, s20, 3")
        a("s_and_b32 s21, s2, 7")
        a("s_add_u32 s20, s20, s21")
        a("s_lshr_b32 s21, s2, 3")
        a("s_and_b32 s21, s21, 7")
    else:
        a("s_lshr_b32 s20, s2, 3")
        a("s_and_b32 s21, s2, 7")
    a("s_and_b32 s22, s21, 1")
    a("s_lshr_b32 s23, s21, 1")
    a("v_and_b32 v3, 7, v0")
    a("v_lshrrev_b32 v4, 3, v0")
    a("v_mul_u32_u24 v1, 3072, v4")
    a("v_lshl_add_u32 v1, v3, 4, v1")
    a("s_lshl_b32 s52, s3, 7")
    a("v_add_u32 v5, s52, v1")
    if o["rot"]:
        a("s_lshr_b32 s92, s2, 3")
        a("s_add_u32 s92, s92, s2")
        a("s_and_b32 s92, s92, 7")
    else:
        a("s_mov_b32 s92, 0")
    a("s_mul_i32 s93, s92, 24576")
    a("v_add_u32 v6, s93, v5")
    a("s_add_u32 s93, s92, 1")
    a("s_and_b32 s93, s93, 7")
    a("s_mul_i32 s93, s93, 24576")
    a("v_add_u32 v7, s93, v5")
    a("s_mul_i32 s58, s20, 786432")
    a("s_mul_i32 s59, s23, 196608")
    a("s_add_u32 s59, s59, s58")
    a("s_mov_b32 s26, 196608")
    a("s_mov_b32 s27, 0x20000")
    a("s_mov_b64 s[90:91], -1")
    if o["yieldx"]:
        a("s_getreg_b32 s88, hwreg(HW_REG_XCC_ID)")
        a("s_and_b32 s88, s88, 7")
        a("s_lshr_b32 s88, %d, s88" % o["yieldx"])
        a("s_and_b32 s88, s88, 1")
        if o["ybit"] is not None:
            a("s_lshr_b32 s88, s20, %d" % o["ybit"])
            a("s_and_b32 s88, s88, 1")
    amppt("prekarg")
    a("s_waitcnt lgkmcnt(0)")
    amppt("karg")
    a("s_cmp_eq_u32 s22, 0")
    a("s_cselect_b32 s24, s6, s8")
    a("s_cselect_b32 s25, s7, s9")
    a("s_cselect_b32 s28, s10, s12")
    a("s_cselect_b32 s29, s11, s13")
    a("s_add_u32 s24, s24, s59")
    a("s_addc_u32 s25, s25, 0")
    a("s_cmp_ge_u32 s3, %d" % NKV)
    a("s_cbranch_scc1 L_notkv0")
    if o["eself"] and not o["edirect"]:
        a("s_mov_b32 s30, 32768")
        a("s_mov_b32 s31, 0x20000")
        a("v_lshlrev_b32 v2, 12, v3")
        a("v_lshl_add_u32 v2, v4, 4, v2")
        a("s_lshl_b32 s58, s23, 10")
        for k in range(8):
            a("s_mov_b32 m0, %d" % (L_E + k * 1024))
            a("s_nop 0")
            a("buffer_load_dwordx4 v2, s[28:31], s58 offen lds")
            if k < 7:
                a("s_add_u32 s58, s58, 128")
        a("s_mul_i32 s58, s20, 786432")
    def xload(slot, vb, j):
        r = RING + 4 * slot
        a("buffer_load_dwordx4 v[%d:%d], v%d, s[24:27], 0 offen offset:%d %s" % (r, r + 3, vb, j * 384, ld))
    B = o["burst"] or D
    assert D <= B <= 16 and B % 2 == 0
    for n in range(D):
        xload(n, 6 + n // 8, n % 8)
    if o["edirect"]:
        a("s_mov_b32 s30, 32768")
        a("s_mov_b32 s31, 0x20000")
        a("v_lshlrev_b32 v2, 12, v3")
        a("v_lshl_add_u32 v2, v4, 4, v2")
        for h in range(2):
            a("s_add_u32 s93, s92, %d" % h)
            a("s_and_b32 s93, s93, 7")
            a("s_lshl_b32 s93, s93, 7")
            a("s_lshl_b32 s55, s23, 10")
            a("s_add_u32 s93, s93, s55")
            a("buffer_load_dwordx4 v[%d:%d], v2, s[28:31], s93 offen" % (AOP + 4 * h, AOP + 4 * h + 3))
    for n in range(D, B):
        xload(n, 6 + n // 8, n % 8)
    amppt("issued0")
    a.label("L_notkv0")
    a("s_mov_b32 s30, 32768")
    a("s_mov_b32 s31, 0x20000")
    a("s_mul_i32 s59, s21, 98304")
    a("s_add_u32 s58, s58, s59")
    a("s_add_u32 s32, s4, s58")
    a("s_addc_u32 s33, s5, 0")
    a("s_mov_b32 s34, 98304")
    a("s_mov_b32 s35, 0x20000")
    a("s_add_u32 s36, s14, s58")
    a("s_addc_u32 s37, s15, 0")
    a("s_mov_b32 s38, 98304")
    a("s_mov_b32 s39, 0x20000")
    a("s_mul_i32 s58, s20, 49152")
    a("s_add_u32 s40, s18, s58")
    a("s_addc_u32 s41, s19, 0")
    a("s_mov_b32 s42, 49152")
    a("s_mov_b32 s43, 0x20000")
    a("s_mov_b32 s44, s16")
    a("s_mov_b32 s45, s17")
    a("s_mov_b32 s46, 256")
    a("s_mov_b32 s47, 0x20000")
    a("s_mov_b32 s48, 0x05040100")
    a("s_mov_b32 s49, 0x07060302")
    a("s_mov_b32 s50, 0x3d93cd3a")
    a("s_mov_b32 s51, 0x3fb8aa3b")
    a("s_lshl_b32 s53, s22, 2")
    a("s_add_u32 s53, s53, s23")
    a("s_mul_i32 s53, s53, 6144")
    a("s_cmp_lg_u32 s3, %d" % (NW - 1))
    a("s_cbranch_scc1 L_noinit")
    a("v_lshlrev_b32 v110, 2, v0")
    a("v_add_u32 v110, %d, v110" % L_FLAG)
    a("v_mov_b32 v111, 0")
    a("s_mov_b64 exec, 0xffff")
    a("ds_write_b32 v110, v111")
    a("s_mov_b64 exec, -1")
    a("s_waitcnt lgkmcnt(0)")
    a.label("L_noinit")
    a("s_cmp_ge_u32 s3, %d" % NKV)
    a("s_cbranch_scc1 L_qwave")

    for r in range(ACC, ACC + 32):
        a("v_mov_b32 v%d, 0" % r)
    a("v_lshlrev_b32 v11, 4, v0")
    a("v_add_u32 v11, %d, v11" % L_E)
    a("s_mov_b32 s54, 0")
    if o["prio"]:
        a("s_setprio 2")
    a("s_barrier")
    a.label("L_kvloop")
    q0 = D // 8
    qs = sorted(set((2 * i + D) // 8 for i in range(8)) | set((2 * i + 1 + D) // 8 for i in range(8)))
    a("s_lshl_b32 s55, s54, 1")
    for k, q in enumerate(qs):
        a("s_add_u32 s56, s55, %d" % q)
        kbase(6 + k, "s56")
    for i in range(8):
        a("s_waitcnt vmcnt(%d)" % (D - 2))
        if o["yieldx"]:
            laby = a.newlabel("Ly")
            a("s_cmp_eq_u32 s88, 0")
            a("s_cbranch_scc1 %s" % laby)
            a("s_waitcnt vmcnt(%d)" % (D - 2 - o["ykv"]))
            a.label(laby)
        labb = None
        if 2 * i + D < B:
            labb = a.newlabel("Lbu")
            a("s_cmp_eq_u32 s54, 0")
            a("s_cbranch_scc1 %s" % labb)
        for u in range(2):
            n = 2 * i + u + D
            xload(n % 16, 6 + qs.index(n // 8), n % 8)
        if labb:
            a.label(labb)
        P_last_iter = 24 + i
        if o["ramp"]:
            first = 32 - D // 2 - o["rampoff"]
            for itx in (2, 3):
                Pn = 8 * itx + i
                if first <= Pn < first + D // 2:
                    lab = a.newlabel("Lnt")
                    a("s_cmp_lg_u32 s54, %d" % itx)
                    a("s_cbranch_scc1 %s" % lab)
                    lds_signal(F_TRIG)
                    a.label(lab)
        elif i == trigp % 8:
            lab = a.newlabel("Lnt")
            a("s_cmp_lg_u32 s54, %d" % (trigp // 8))
            a("s_cbranch_scc1 %s" % lab)
            lds_signal(F_TRIG)
            a.label(lab)
        jj = i % 4
        if jj == 2:
            h = i // 4
            labs = a.newlabel("Lsk")
            if o["edirect"]:
                a("s_cmp_eq_u32 s54, 0")
                a("s_cbranch_scc1 %s" % labs)
                if h == 0:
                    lab = a.newlabel("Lne")
                    a("s_cmp_lg_u32 s54, 1")
                    a("s_cbranch_scc1 %s" % lab)
                    lds_poll(F_E, 1, "E")
                    a.label(lab)
            elif h == 0:
                lab = a.newlabel("Lne")
                a("s_cmp_lg_u32 s54, 0")
                a("s_cbranch_scc1 %s" % lab)
                if not o["eself"]:
                    lds_poll(F_E, 1, "E")
                amppt("first")
                if o["stampE"]:
                    a("s_memrealtime s[80:81]")
                a.label(lab)
            a("s_add_u32 s93, s55, s92")
            if h:
                a("s_add_u32 s93, s93, 1")
            a("s_and_b32 s93, s93, 7")
            a("s_lshl_b32 s93, s93, 10")
            a("v_add_u32 v10, s93, v11")
            a("ds_read_b128 v[%d:%d], v10" % (AOP + 4 * h, AOP + 4 * h + 3))
            a.label(labs)
        r0 = RING + 8 * i; r1 = r0 + 4
        for m in range(4):
            a("v_perm_b32 v%d, v%d, v%d, s48" % (BR + 4 * (2 * m) + jj, r1 + m, r0 + m))
            a("v_perm_b32 v%d, v%d, v%d, s49" % (BR + 4 * (2 * m + 1) + jj, r1 + m, r0 + m))
        if jj == 3:
            h = i // 4
            a("s_waitcnt lgkmcnt(0)")
            a("s_nop 0")
            for e in range(8):
                a("v_mfma_f32_16x16x32_bf16 v[%d:%d], v[%d:%d], v[%d:%d], v[%d:%d]" % (ACC + 4 * e, ACC + 3 + 4 * e, AOP + 4 * h, AOP + 4 * h + 3, BR + 4 * e, BR + 3 + 4 * e, ACC + 4 * e, ACC + 3 + 4 * e))
    a("s_add_u32 s54, s54, 1")
    a("s_cmp_lt_u32 s54, 4")
    a("s_cbranch_scc1 L_kvloop")
    stamp(1)
    amppt("kvend")
    if o["dbgmode"] in (1, 2, 3):
        a("s_branch L_fin")
    a.label("L_kvpost")
    a("s_and_b32 s52, s3, 3")
    a("v_lshrrev_b32 v9, 5, v0")
    a("v_lshlrev_b32 v9, 10, v9")
    a("v_bfe_u32 v8, v0, 4, 1")
    a("v_lshl_add_u32 v9, v8, 7, v9")
    a("v_and_b32 v8, 7, v0")
    a("v_lshl_add_u32 v9, v8, 4, v9")
    a("s_lshl_b32 s58, s52, 11")
    a("v_add_u32 v9, s58, v9")
    a("v_lshlrev_b32 v3, 4, v0")
    a("v_add_u32 v3, s58, v3")
    a("v_mov_b32 v%d, %d" % (H0, L_FLAG))
    a("ds_read_b32 v%d, v%d offset:%d" % (H1, H0, F_MODE))
    for e in range(4):
        for t in range(4):
            a("v_permlane32_swap_b32 v%d, v%d" % (ACC + 4 * e + t, ACC + 16 + 4 * e + t))
    for e in range(4):
        for t in range(4):
            x = ACC + 4 * e + t; y = ACC + 16 + 4 * e + t
            a("v_add_f32_dpp v%d, v%d, v%d row_ror:8 row_mask:0xf bank_mask:0xf" % (x, y, x))
    for e in range(4):
        for t in range(4):
            x = ACC + 4 * e + t
            a("v_min_u32 v%d, -2, v%d" % (x, x))
    a("s_waitcnt lgkmcnt(0)")
    a("v_readfirstlane_b32 s63, v%d" % H1)
    a("s_lshl_b32 s59, s20, 3")
    a("s_cbranch_execz L_pubdone")
    a("s_and_b32 exec_lo, s90, 0x00ff00ff")
    a("s_and_b32 exec_hi, s91, 0x00ff00ff")
    a("s_cmp_eq_u32 s63, 2")
    a("s_cbranch_scc1 L_pubfast")
    for e in range(4):
        a("buffer_store_dwordx4 v[%d:%d], v9, s[40:43], s53 offen offset:%d sc1" % (ACC + 4 * e, ACC + 3 + 4 * e, e * 256))
    a("s_mov_b64 exec, s[90:91]")
    a("s_branch L_slow")
    a.label("L_pubfast")
    for e in range(4):
        a("buffer_store_dwordx4 v[%d:%d], v9, s[40:43], s53 offen offset:%d %s" % (ACC + 4 * e, ACC + 3 + 4 * e, e * 256, o["cst"]))
    a("s_mov_b64 exec, s[90:91]")
    a.label("L_pubdone")
    stamp(2)
    C = RING
    a("s_and_b32 s57, s90, 0xff")
    a("s_mov_b32 s62, %d" % SPIN_GLB)
    if o["cdelay"]:
        lab = a.newlabel("Lcd")
        a("s_cbranch_execz %s" % lab)
        a("s_sleep %d" % o["cdelay"])
        a.label(lab)
    def issue_pending(fl=None):
        fl = o["cld"] if fl is None else fl
        for p in range(8):
            lab = a.newlabel("Lc")
            a("s_bitcmp1_b32 s57, %d" % p)
            a("s_cbranch_scc0 %s" % lab)
            a("s_mov_b32 s58, %d" % (p * 6144))
            for i in range(2):
                r = C + 4 * (p * 2 + i)
                a("buffer_load_dwordx4 v[%d:%d], v3, s[40:43], s58 offen offset:%d %s" % (r, r + 3, i * 1024, fl))
            a.label(lab)
    def check_pending():
        for p in range(8):
            lab = a.newlabel("Lk")
            r = C + 8 * p
            a("s_bitcmp1_b32 s57, %d" % p)
            a("s_cbranch_scc0 %s" % lab)
            a("v_max3_u32 v8, v%d, v%d, v%d" % (r, r + 1, r + 2))
            a("v_max3_u32 v8, v8, v%d, v%d" % (r + 3, r + 4))
            a("v_max3_u32 v8, v8, v%d, v%d" % (r + 5, r + 6))
            a("v_max_u32 v8, v8, v%d" % (r + 7))
            a("v_cmp_eq_u32 vcc, -1, v8")
            a("s_cbranch_vccnz %s" % lab)
            a("s_bitset0_b32 s57, %d" % p)
            a.label(lab)
    if o["probe"]:
        a("s_and_b32 s56, s90, 0xff")
        a("s_lshl_b32 s55, s21, 2")
        a("s_add_u32 s55, s55, 13")
        a("s_mov_b32 s54, 30")
        a.label("L_probe")
        a("s_cmp_eq_u32 s56, 0")
        a("s_cbranch_scc1 L_probedone")
        a("s_and_b32 s58, s55, 31")
        a("s_lshl_b32 s58, s58, 6")
        a("s_lshl_b32 s93, s52, 11")
        a("s_add_u32 s58, s58, s93")
        a("s_add_u32 s82, s40, s58")
        a("s_addc_u32 s83, s41, 0")
        for p in range(8):
            a("s_load_dword s%d, s[82:83], %d" % (4 + p, p * 6144))
        a("s_add_u32 s55, s55, 1")
        a("s_waitcnt lgkmcnt(0)")
        for p in range(8):
            lab = a.newlabel("Lp")
            a("s_bitcmp1_b32 s56, %d" % p)
            a("s_cbranch_scc0 %s" % lab)
            a("s_cmp_eq_u32 s%d, -1" % (4 + p))
            a("s_cbranch_scc1 %s" % lab)
            a("s_bitset0_b32 s56, %d" % p)
            a("s_mov_b32 s58, %d" % (p * 6144))
            for i in range(2):
                r = C + 4 * (p * 2 + i)
                a("buffer_load_dwordx4 v[%d:%d], v3, s[40:43], s58 offen offset:%d %s" % (r, r + 3, i * 1024, o["cld"]))
            a.label(lab)
        if o["psl"]:
            a("s_sleep %d" % o["psl"])
        a("s_sub_u32 s54, s54, 1")
        a("s_cbranch_scc0 L_probe")
        a.label("L_probedone")
        a("s_mov_b32 s57, s56")
        a("s_and_b32 s56, s90, 0xff")
        issue_pending()
        a("s_mov_b32 s57, s56")
        a("s_branch L_collect1")
        a.label("L_collect")
        issue_pending()
        a.label("L_collect1")
        a("s_waitcnt vmcnt(0)")
        if stamps:
            lab = a.newlabel("Lfa")
            a("s_cmp_eq_u32 s62, %d" % SPIN_GLB)
            a("s_cbranch_scc0 %s" % lab)
            stamp(7)
            a.label(lab)
        check_pending()
        a("s_cmp_eq_u32 s57, 0")
        a("s_cbranch_scc1 L_collected")
        a("s_sub_u32 s62, s62, 1")
        a("s_cbranch_scc1 L_collected")
        a("s_branch L_collect")
    elif not o["pipe"]:
        if o["cld1"] is not None:
            issue_pending(o["cld1"])
            a("s_branch L_collect1")
        a.label("L_collect")
        issue_pending()
        if o["unpace"]:
            lab = a.newlabel("Lun")
            a("s_cmp_eq_u32 s62, %d" % (SPIN_GLB - 1))
            a("s_cbranch_scc0 %s" % lab)
            lds_signal(F_UNP)
            a.label(lab)
        a.label("L_collect1")
        a("s_waitcnt vmcnt(0)")
        if stamps:
            lab = a.newlabel("Lfa")
            a("s_cmp_eq_u32 s62, %d" % SPIN_GLB)
            a("s_cbranch_scc0 %s" % lab)
            stamp(7)
            a.label(lab)
        check_pending()
        a("s_cmp_eq_u32 s57, 0")
        a("s_cbranch_scc1 L_collected0")
        a("s_sub_u32 s62, s62, 1")
        a("s_cbranch_scc1 L_collected")
        if o["psleep"]:
            a("s_sleep %d" % o["psleep"])
        a("s_branch L_collect")
    else:
        a.label("L_collect")
        issue_pending()
        a("s_cmp_eq_u32 s62, %d" % SPIN_GLB)
        a("s_cbranch_scc0 L_nowait")
        a("s_waitcnt vmcnt(0)")
        a("s_branch L_chk")
        a.label("L_nowait")
        a("s_sleep %d" % o["pipe"])
        a.label("L_chk")
        check_pending()
        a("s_cmp_eq_u32 s57, 0")
        a("s_cbranch_scc1 L_collected")
        a("s_sub_u32 s62, s62, 1")
        a("s_cbranch_scc0 L_collect")
    if not o["probe"] and not o["pipe"]:
        a("s_branch L_collect")
        a.label("L_collected0")
        if o["unpace"]:
            a("s_cmp_eq_u32 s62, %d" % SPIN_GLB)
            a("s_cbranch_scc0 L_collected")
            lds_signal(F_UNP)
    a.label("L_collected")
    stamp(3)
    S = BR
    for m in range(2):
        for i in range(2):
            for t in range(4):
                q = [C + 4 * (2 * (4 * m + k) + i) + t for k in range(4)]
                d = S + 8 * m + 4 * i + t
                a("v_add_f32 v%d, v%d, v%d" % (d, q[0], q[1]))
                a("v_add_f32 v%d, v%d, v%d" % (d + 16, q[2], q[3]))
                a("v_add_f32 v%d, v%d, v%d" % (d, d, d + 16))
    a("v_bfe_u32 v6, v0, 3, 1")
    a("v_and_b32 v7, 7, v0")
    a("v_lshrrev_b32 v8, 4, v0")
    a("v_mul_u32_u24 v9, %d, v6" % (4 * KP_STRIDE))
    a("v_lshl_add_u32 v9, v7, 4, v9")
    a("v_lshl_add_u32 v9, v8, 1, v9")
    a("s_lshl_b32 s58, s52, 7")
    a("s_add_u32 s58, s58, %d" % L_KP)
    a("v_add_u32 v9, s58, v9")
    a("v_lshl_add_u32 v10, v7, 3, v8")
    a("v_lshlrev_b32 v10, 4, v10")
    a("v_lshl_add_u32 v10, v6, 3, v10")
    a("s_lshl_b32 s58, s52, 10")
    a("s_add_u32 s58, s58, %d" % L_VP)
    a("v_add_u32 v10, s58, v10")
    P = ACC + 16
    for i in range(2):
        b = S + 4 * i
        a("v_cvt_pk_bf16_f32 v%d, v%d, v%d" % (P + 2 * i, b, b + 1))
        a("v_cvt_pk_bf16_f32 v%d, v%d, v%d" % (P + 1 + 2 * i, b + 2, b + 3))
        b = S + 8 + 4 * i
        a("v_cvt_pk_bf16_f32 v%d, v%d, v%d" % (P + 4 + 2 * i, b, b + 1))
        a("v_cvt_pk_bf16_f32 v%d, v%d, v%d" % (P + 5 + 2 * i, b + 2, b + 3))
    for i in range(2):
        a("ds_write_b16 v9, v%d offset:%d" % (P + 2 * i, 0 * KP_STRIDE + 8 * i))
        a("ds_write_b16_d16_hi v9, v%d offset:%d" % (P + 2 * i, 1 * KP_STRIDE + 8 * i))
        a("ds_write_b16 v9, v%d offset:%d" % (P + 1 + 2 * i, 2 * KP_STRIDE + 8 * i))
        a("ds_write_b16_d16_hi v9, v%d offset:%d" % (P + 1 + 2 * i, 3 * KP_STRIDE + 8 * i))
        a("ds_write_b64 v10, v[%d:%d] offset:%d" % (P + 4 + 2 * i, P + 5 + 2 * i, 64 * i))
    a("s_waitcnt lgkmcnt(0)")
    lds_signal(F_READY)
    amppt("ready")
    stamp(4)
    if dry:
        a("s_cbranch_execz L_dryret1")
    a("s_cmp_eq_u32 s63, 2")
    a("s_cbranch_scc0 L_kvend")
    if not o["diag"]:
        pubflag()
    a.label("L_kvend")
    if stamps:
        a("s_waitcnt lgkmcnt(0)")
        a("s_mov_b32 s74, %s" % ("s80" if o["stampE"] else "s78"))
        a("s_sub_u32 s79, %d, s62" % SPIN_GLB)
    a("s_branch L_fin")
    a.label("L_slow")
    pubflag()
    a("s_mov_b32 s62, %d" % SPIN_GLB)
    a("s_mov_b64 exec, 1")
    a.label("L_slowpoll")
    a("v_mov_b32 v6, 0")
    a("v_mov_b32 v7, 0")
    a("buffer_atomic_or_x2 v[6:7], off, s[44:47], s59 sc0 sc1")
    a("s_waitcnt vmcnt(0)")
    a("v_and_b32 v6, v6, v7")
    a("v_and_b32 v6, 0x40404040, v6")
    a("s_nop 0")
    a("v_readfirstlane_b32 s58, v6")
    a("s_cmp_eq_u32 s58, 0x40404040")
    a("s_cbranch_scc1 L_slowgo")
    a("s_sub_u32 s62, s62, 1")
    a("s_cbranch_scc1 L_slowgo")
    a("s_sleep 32")
    a("s_branch L_slowpoll")
    a.label("L_slowgo")
    a("s_mov_b64 exec, -1")
    if o["unpace"]:
        lds_signal(F_UNP)
    for p in range(8):
        a("s_mov_b32 s58, %d" % (p * 6144))
        for i in range(2):
            r = C + 4 * (p * 2 + i)
            a("buffer_load_dwordx4 v[%d:%d], v3, s[40:43], s58 offen offset:%d sc1" % (r, r + 3, i * 1024))
    a("s_waitcnt vmcnt(0)")
    a("s_branch L_collected")

    a.label("L_qwave")
    a("s_barrier")
    for n in range(6):
        a("v_add_u32 v110, %d, v0" % (64 * n))
        a("v_mul_u32_u24 v111, 2731, v110")
        a("v_lshrrev_b32 v111, 17, v111")
        a("v_and_b32 v111, 7, v111")
        a("v_lshlrev_b32 v111, 4, v111")
        a("v_lshlrev_b32 v110, 4, v110")
        a("v_xor_b32 v%d, v110, v111" % (140 + n))
    a("s_sub_u32 s55, s3, %d" % NKV)
    a("s_mul_i32 s56, s55, 12288")
    if o["dbgmode"] == 1:
        a("s_cmp_eq_u32 s3, %d" % (NKV + 1))
        a("s_cbranch_scc0 L_fin")
    a("s_cmp_eq_u32 s3, %d" % (NKV + 0))
    a("s_cbranch_scc1 L_aux")
    if o["edirect"] or not o["eself"]:
        a("s_cmp_eq_u32 s3, %d" % (NKV + 1))
        a("s_cbranch_scc1 L_estage")
    if o["touch"]:
        lab = a.newlabel("Lnt")
        a("s_cmp_eq_u32 s3, %d" % (NKV + 4))
        a("s_cbranch_scc0 %s" % lab)
        a("v_mul_u32_u24 v12, 98300, v0")
        a("s_mov_b64 exec, 3")
        a("buffer_load_dword v13, v12, s[32:35], 0 offen")
        a("buffer_load_dword v14, v12, s[36:39], 0 offen")
        a("s_mov_b64 exec, -1")
        a("s_waitcnt vmcnt(0)")
        a.label(lab)
    if dry:
        a("s_cmp_eq_u32 s3, %d" % (NKV + 2))
        a("s_cbranch_scc1 L_dry1")
        a("s_cmp_eq_u32 s3, %d" % (NKV + 3))
        a("s_cbranch_scc1 L_dry2")
    a("s_branch L_qmain")
    if dry:
        a.label("L_dry1")
        a("s_mov_b64 s[90:91], 0")
        a("s_mov_b64 exec, 0")
        a("s_branch L_kvpost")
        a.label("L_dryret1")
        a("s_mov_b64 s[90:91], -1")
        a("s_mov_b64 exec, -1")
        a("s_branch L_qmain")
        a.label("L_dry2")
        a("s_mov_b64 s[90:91], 0")
        a("s_mov_b64 exec, 0")
        a("s_branch L_phase2")
        a.label("L_dryret2")
        a("s_mov_b64 s[90:91], -1")
        a("s_mov_b64 exec, -1")
        a("s_branch L_qmain")

    a.label("L_estage")
    a("v_and_b32 v3, 7, v0")
    a("v_lshrrev_b32 v4, 3, v0")
    a("v_lshlrev_b32 v2, 12, v3")
    a("v_lshl_add_u32 v2, v4, 4, v2")
    a("s_lshl_b32 s58, s23, 10")
    for k in range(8):
        a("s_mov_b32 m0, %d" % (L_E + k * 1024))
        a("s_nop 0")
        a("buffer_load_dwordx4 v2, s[28:31], s58 offen lds")
        if k < 7:
            a("s_add_u32 s58, s58, 128")
    a("s_waitcnt vmcnt(0)")
    lds_signal(F_E)
    a("s_branch L_qmain")

    a.label("L_aux")
    for _ in range(o["auxdelay"] // 127):
        a("s_sleep 127")
    if o["auxdelay"] % 127:
        a("s_sleep %d" % (o["auxdelay"] % 127))
    a("v_lshlrev_b32 v1, 4, v0")
    for r in range(12, 16):
        a("v_mov_b32 v%d, -1" % r)
    a("s_mov_b32 s58, s53")
    for n in range(6):
        if n == 4:
            a("s_add_u32 s58, s58, 4096")
        if not o["noclear"]:
            a("buffer_store_dwordx4 v[12:15], v1, s[40:43], s58 offen offset:%d" % ((n % 4) * 1024))
    a("s_getreg_b32 s57, hwreg(HW_REG_XCC_ID)")
    a("s_and_b32 s57, s57, 7")
    a("s_or_b32 s57, s57, 0x80")
    a("v_mov_b32 v2, s57")
    a("s_lshl_b32 s59, s20, 3")
    a("s_add_u32 s58, s59, s21")
    a("s_mul_i32 s57, s57, 0x01010101")
    a("s_waitcnt vmcnt(0)")
    if o["diag"]:
        a("s_branch L_auxfast")
    a("s_mov_b64 exec, 1")
    a("buffer_store_byte v2, off, s[44:47], s58")
    a("s_mov_b32 s62, %d" % o["auxpolls"])
    a.label("L_auxpoll")
    a("s_sleep %d" % o["auxsleep"])
    a("buffer_load_dwordx2 v[4:5], off, s[44:47], s59 sc1")
    a("s_waitcnt vmcnt(0)")
    a("v_readfirstlane_b32 s60, v4")
    a("v_readfirstlane_b32 s61, v5")
    a("s_and_b32 s60, s60, 0xbfbfbfbf")
    a("s_and_b32 s61, s61, 0xbfbfbfbf")
    a("s_cmp_eq_u32 s60, s57")
    a("s_cselect_b32 s60, s61, 0")
    a("s_cmp_eq_u32 s60, s57")
    a("s_cbranch_scc1 L_auxfast")
    a("s_sub_u32 s62, s62, 1")
    a("s_cbranch_scc0 L_auxpoll")
    a("s_branch L_auxdone")
    a.label("L_auxfast")
    if fast:
        a("s_mov_b64 exec, -1")
        lds_signal(F_MODE, 2)
    a.label("L_auxdone")
    a("s_mov_b64 exec, -1")
    stamp(3)

    a.label("L_qmain")
    if o["dbgmode"] in (1, 2):
        a("s_branch L_fin")
    if o["ramp"]:
        a("s_sub_u32 s57, s3, %d" % NKV)
        a("s_mul_i32 s57, s57, %d" % (3 * D // 2))
        a("s_lshr_b32 s57, s57, 3")
        a("s_add_u32 s57, s57, 1")
        lds_poll(F_TRIG, "s57", "T", sleep=o["tsleep"])
    else:
        lds_poll(F_TRIG, 1, "T", sleep=o["tsleep"])
    stamp(1)
    def q_dma(k):
        t, n = divmod(k, 6)
        a("s_add_u32 m0, s56, %d" % (L_Q + t * 6144 + n * 1024))
        if t == 1 and n == 0:
            a("s_add_u32 s57, s56, 6144")
        else:
            a("s_nop 0")
        a("buffer_load_dwordx4 v%d, s[32:35], %s offen %s lds" % (140 + n, "s56" if t == 0 else "s57", ld))
    flag_off, flag_val, k_first = (F_UNP, 3, qdepth - 1) if o["unpace"] else (F_READY, 3, 5 + qdepth)
    for k in range(12):
        if k >= qdepth:
            a("s_waitcnt vmcnt(%d)" % (qdepth - 1))
        if o["yieldx"] and o["yq"] and k >= qdepth - o["yq"]:
            laby = a.newlabel("Ly")
            a("s_cmp_eq_u32 s88, 0")
            a("s_cbranch_scc1 %s" % laby)
            a("s_waitcnt vmcnt(%d)" % (qdepth - 1 - o["yq"]))
            a.label(laby)
        q_dma(k)
        if o["early"] and k >= k_first and k < 11:
            a("ds_read_b32 v%d, v%d offset:%d" % (H1, H0, flag_off - F_TRIG))
            a("s_waitcnt lgkmcnt(0)")
            a("v_readfirstlane_b32 s63, v%d" % H1)
            a("s_cmp_ge_u32 s63, %d" % flag_val)
            a("s_cbranch_scc1 L_rest%d" % (k + 1))
    if o["early"]:
        a("s_branch L_allissued")
        for k in range(k_first + 1, 12):
            a.label("L_rest%d" % k)
            q_dma(k)
        a.label("L_allissued")
    if o["qiss"]:
        lds_signal(F_QISS)
    amppt("qiss")
    stamp(2)
    if o["dbgmode"] == 3:
        a("s_branch L_fin")

    a.label("L_phase2")
    a("v_and_b32 v138, 15, v0")
    a("v_lshrrev_b32 v139, 4, v0")
    a("v_lshrrev_b32 v132, 1, v138")
    a("v_xor_b32 v132, v132, v139")
    a("v_lshlrev_b32 v132, 4, v132")
    a("v_mul_u32_u24 v133, 384, v138")
    a("v_add_u32 v132, v132, v133")
    a("v_add_u32 v132, s56, v132")
    a("v_xor_b32 v133, 64, v132")
    a("v_and_b32 v134, 7, v0")
    a("v_mul_u32_u24 v134, %d, v134" % KP_STRIDE)
    a("v_lshl_add_u32 v134, v139, 4, v134")
    a("v_add_u32 v134, %d, v134" % L_KP)
    a("v_lshrrev_b32 v146, 2, v138")
    a("v_and_b32 v147, 3, v138")
    a("v_lshl_add_u32 v135, v146, 3, v147")
    a("v_lshlrev_b32 v135, 4, v135")
    a("v_and_b32 v147, 1, v139")
    a("v_lshl_add_u32 v135, v147, 3, v135")
    a("v_add_u32 v135, %d, v135" % L_VP)
    a("v_lshlrev_b32 v136, 4, v0")
    a("v_cmp_gt_u32 vcc, 32, v0")
    a("v_mov_b32 v137, 0")
    a("s_nop 0")
    a("v_cndmask_b32_e64 v137, v137, 1.0, vcc")
    a("s_waitcnt vmcnt(6)")
    for m in range(6):
        a("ds_read_b128 v[%d:%d], v%d offset:%d" % (52 + 4 * m, 55 + 4 * m, 132 + (m & 1), (m >> 1) * 128))
    lds_poll(F_READY, 3, "R", dryskip=True)
    stamp(4)
    for m in range(6):
        a("ds_read_b128 v[%d:%d], v134 offset:%d" % (4 + 4 * m, 7 + 4 * m, m * 64))
    for T in range(12):
        U, b = divmod(T, 2)
        a("ds_read_b64 v[%d:%d], v135 offset:%d" % (28 + 2 * T, 29 + 2 * T, (32 * U + 4 * b) * 16))
    a("s_mov_b32 s55, 0")
    a("s_waitcnt lgkmcnt(12)")
    a("s_branch L_tile1")
    a.label("L_tile")
    a("s_waitcnt vmcnt(6)")
    for m in range(6):
        a("ds_read_b128 v[%d:%d], v%d offset:%d" % (52 + 4 * m, 55 + 4 * m, 132 + (m & 1), (m >> 1) * 128))
    a("s_waitcnt lgkmcnt(0)")
    a.label("L_tile1")
    for m in range(6):
        a("v_mfma_f32_16x16x32_bf16 v[76:79], v[%d:%d], v[%d:%d], %s" % (4 + 4 * m, 7 + 4 * m, 52 + 4 * m, 55 + 4 * m, "0" if m == 0 else "v[76:79]"))
    a("s_add_u32 s58, s56, 4096")
    a("s_nop 6")
    Z = 76
    def rnd():
        a("v_cvt_pk_bf16_f32 v80, v76, v77")
        a("v_cvt_pk_bf16_f32 v81, v78, v79")
        a("v_lshlrev_b32 v76, 16, v80")
        a("v_and_b32 v77, 0xffff0000, v80")
        a("v_lshlrev_b32 v78, 16, v81")
        a("v_and_b32 v79, 0xffff0000, v81")
    if o["round_emul"]:
        rnd()
    for t in range(4):
        a("v_mul_f32 v%d, s50, v%d" % (Z + t, Z + t))
    if o["round_emul"]:
        rnd()
    a("v_max3_f32 v82, v76, v77, v78")
    a("v_max_f32 v82, v82, v79")
    a("v_mov_b32 v83, v82")
    a("s_nop 1")
    a("v_permlane16_swap_b32 v82, v83")
    a("s_nop 1")
    a("v_max_f32 v82, v82, v83")
    a("v_mul_f32 v82, s51, v82")
    for t in range(4):
        a("v_fma_f32 v%d, v%d, s51, -v82" % (Z + t, Z + t))
    for t in range(4):
        a("v_exp_f32 v%d, v%d" % (Z + t, Z + t))
    a("s_nop 0")
    a("v_add_f32 v82, v76, v77")
    a("v_add_f32 v83, v78, v79")
    a("v_add_f32 v82, v82, v83")
    a("v_mov_b32 v83, v82")
    a("s_nop 1")
    a("v_permlane16_swap_b32 v82, v83")
    a("s_nop 1")
    a("v_add_f32 v82, v82, v83")
    a("v_rcp_f32 v82, v82")
    a("s_nop 0")
    a("v_mul_f32 v82, v82, v137")
    for t in range(4):
        a("v_mul_f32 v%d, v%d, v82" % (Z + t, Z + t))
    a("v_cvt_pk_bf16_f32 v80, v76, v77")
    a("v_cvt_pk_bf16_f32 v81, v78, v79")
    a("s_waitcnt lgkmcnt(0)")
    a("s_nop 0")
    DD = 52
    for T in range(12):
        a("v_mfma_f32_16x16x16_bf16 v[%d:%d], v[%d:%d], v[80:81], 0" % (84 + 4 * T, 87 + 4 * T, 28 + 2 * T, 29 + 2 * T))
    def dreg(T):
        return 84 + 4 * T
    for U in range(6):
        pk = dreg(2 * U)
        if U == 0:
            a("s_nop 1")
        da, db = dreg(2 * U), dreg(2 * U + 1)
        a("v_cvt_pk_bf16_f32 v%d, v%d, v%d" % (pk, da, da + 1))
        a("v_cvt_pk_bf16_f32 v%d, v%d, v%d" % (pk + 1, da + 2, da + 3))
        a("v_cvt_pk_bf16_f32 v%d, v%d, v%d" % (pk + 2, db, db + 1))
        a("v_cvt_pk_bf16_f32 v%d, v%d, v%d" % (pk + 3, db + 2, db + 3))
        a("ds_write_b128 v%d, v[%d:%d] offset:%d" % (132 + (U & 1), pk, pk + 3, (U >> 1) * 128))
    a("s_waitcnt lgkmcnt(0)")
    if o["qiss"]:
        lab = a.newlabel("Lqi")
        a("s_cmp_lg_u32 s55, 0")
        a("s_cbranch_scc1 %s" % lab)
        lds_poll(F_QISS, 8, "I", dryskip=True)
        if o["hold"]:
            a("s_add_u32 s98, s98, %d" % o["hold"])
            a.label("L_hold")
            a("s_memrealtime s[84:85]")
            a("s_waitcnt lgkmcnt(0)")
            a("s_sub_u32 s87, s98, s84")
            a("s_cmp_gt_i32 s87, 0")
            a("s_cbranch_scc0 L_holdend")
            a("s_sleep 2")
            a("s_branch L_hold")
            a.label("L_holdend")
        a.label(lab)
    for n in range(6):
        a("v_add_u32 v%d, s56, v%d" % (84 + n, 140 + n))
    for n in range(6):
        a("ds_read_b128 v[%d:%d], v%d" % (52 + 4 * n, 55 + 4 * n, 84 + n))
    for n in range(6):
        a("s_waitcnt lgkmcnt(%d)" % (5 - n))
        so, imm = ("s56", n * 1024) if n < 4 else ("s58", (n - 4) * 1024)
        lab = a.newlabel("Lst")
        if dry:
            a("s_cbranch_execz %s" % lab)
        a("buffer_store_dwordx4 v[%d:%d], v136, s[36:39], %s offen offset:%d %s" % (52 + 4 * n, 55 + 4 * n, so, imm, st))
        if dry:
            a.label(lab)
    if dry:
        a("s_cbranch_execz L_dryret2")
    a("s_add_u32 s56, s56, 6144")
    a("v_add_u32 v132, 6144, v132")
    a("v_add_u32 v133, 6144, v133")
    a("s_add_u32 s55, s55, 1")
    a("s_cmp_lt_u32 s55, 2")
    a("s_cbranch_scc1 L_tile")
    stamp(5)
    a.label("L_fin")
    if o["amp"]:
        a("s_waitcnt vmcnt(0)")
        a("s_memrealtime s[84:85]")
        a("s_waitcnt lgkmcnt(0)")
        a("s_sub_u32 s86, %s, s94" % ("s84" if o["ampat"] is None else "s96"))
        a("s_mul_i32 s86, s86, %d" % o["amp"])
        a("s_add_u32 s86, s86, s84")
        a.label("L_amp")
        a("s_sleep 8")
        a("s_memrealtime s[84:85]")
        a("s_waitcnt lgkmcnt(0)")
        a("s_sub_u32 s87, s86, s84")
        a("s_cmp_gt_i32 s87, 0")
        a("s_cbranch_scc1 L_amp")
    if stamps:
        a("s_waitcnt vmcnt(0)")
        stamp(6)
        a("s_getreg_b32 s78, hwreg(HW_REG_XCC_ID)")
        a("s_cmp_lt_u32 s3, %d" % NKV)
        a("s_cselect_b32 s79, s79, 0")
        a("s_lshl_b32 s79, s79, 8")
        a("s_or_b32 s78, s78, s79")
        a("s_waitcnt lgkmcnt(0)")
        a("s_lshl_b32 s58, s2, 9")
        a("s_lshl_b32 s59, s3, 5")
        a("s_add_u32 s58, s58, s59")
        a("s_add_u32 s58, s58, %d" % STAMP_OFF)
        a("s_mov_b32 s40, s18"); a("s_mov_b32 s41, s19"); a("s_mov_b32 s42, 0x1000000"); a("s_mov_b32 s43, 0x20000")
        for i in range(7):
            a("v_mov_b32 v%d, s%d" % (4 + i, 64 + 2 * i))
        a("v_mov_b32 v11, s78")
        a("s_mov_b64 exec, 1")
        if stamps != "dbg":
            a("buffer_store_dwordx4 v[4:7], off, s[40:43], s58")
            a("buffer_store_dwordx4 v[8:11], off, s[40:43], s58 offset:16")
        else:
            a("v_mov_b32 v12, %d" % (L_FLAG + 16))
            a("v_not_b32 v13, v4"); a("ds_max_u32 v12, v13 offset:0")
            a("ds_max_u32 v12, v10 offset:4")
            a("s_cmp_lt_u32 s3, %d" % NKV)
            a("s_cbranch_scc0 L_dq")
            a("ds_max_u32 v12, v5 offset:8")
            a("ds_max_u32 v12, v7 offset:12")
            a("s_branch L_dq2")
            a.label("L_dq")
            a("ds_max_u32 v12, v8 offset:16")
            a("ds_max_u32 v12, v6 offset:20")
            a("ds_max_u32 v12, v9 offset:28")
            a.label("L_dq2")
            a("ds_max_u32 v12, v4 offset:24")
            a("s_waitcnt lgkmcnt(0)")
            a("v_mov_b32 v15, 1")
            a("v_mov_b32 v17, %d" % (L_FLAG + F_FIN))
            a("ds_add_rtn_u32 v16, v17, v15")
            a("s_waitcnt lgkmcnt(0)")
            a("v_readfirstlane_b32 s59, v16")
            a("s_cmp_lg_u32 s59, %d" % (NW - 1))
            a("s_cbranch_scc1 L_end")
            a("s_mov_b64 exec, 0xff")
            a("v_lshlrev_b32 v18, 2, v0")
            a("v_add_u32 v19, %d, v18" % (L_FLAG + 16))
            a("ds_read_b32 v20, v19")
            a("s_waitcnt lgkmcnt(0)")
            a("buffer_atomic_umax v20, v18, s[44:47], 0 offen sc1")
    a.label("L_end")
    a("s_endpgm")
    return wrap(["; @launch grid=(256,1,1) block=(%d,1,1) lds=%d" % (NW * 64, LDS_BYTES)], [(KN, a.text(), NVGPR, 102)])

def parse_kv(args):
    kw = {}
    for x in args:
        k, v = x.split("=", 1)
        if v in ("True", "False", "None"):
            v = eval(v)
        else:
            try: v = int(v)
            except ValueError: pass
        kw[k] = v
    return kw

if __name__ == "__main__":
    out = sys.argv[1]
    open(out, "w").write(gen(**parse_kv(sys.argv[2:])))
```

```python
import sys
from asmlib import *

L_Q = 0
L_E = 98304
L_KP = L_E + 8192
KP_STRIDE = 400
L_VP = L_KP + 8 * KP_STRIDE
L_FLAG = L_VP + 3072
LDS_BYTES = L_FLAG + 64
F_TRIG, F_READY, F_MODE, F_E, F_QISS = 0, 4, 8, 12, 16
STAMP_OFF = 8 << 20
SPIN_LDS = 1 << 22
SPIN_GLB = 1 << 16
NKV, NQ = 3, 8
NW = NKV + NQ
RING, BR, ACC, AOP = 12, 76, 108, 140
H0, H1 = 148, 149
NVGPR = 152
D = 8

DEF = dict(ld="nt", st="nt", cld="nt", stamps=None, qdepth=3, fast=True, xmap="xcd", round_emul=True,
           auxdelay=70, auxsleep=6, auxpolls=6, pipe=0, amp=0, ampat=None, comments=True)

def gen(**kw):
    o = dict(DEF); o.update(kw)
    ld, st, stamps, qdepth, fast = o["ld"], o["st"], o["stamps"], o["qdepth"], o["fast"]
    a = Asm()
    def cm(t):
        if o["comments"]:
            a.raw("    ; " + t)
    def stamp(i):
        if stamps:
            a("s_memrealtime s[%d:%d]" % (64 + 2 * i, 65 + 2 * i))
    def amppt(name):
        if o["amp"] and o["ampat"] == name:
            a("s_memrealtime s[96:97]")
    def lds_poll(off, val, name, sleep=1):
        lab = a.newlabel("Lp" + name); done = a.newlabel("Ld" + name)
        a("s_mov_b32 s62, %d" % SPIN_LDS)
        a("v_mov_b32 v%d, %d" % (H0, L_FLAG + off))
        a.label(lab)
        a("ds_read_b32 v%d, v%d" % (H1, H0))
        a("s_waitcnt lgkmcnt(0)")
        a("v_readfirstlane_b32 s63, v%d" % H1)
        a("s_sub_u32 s62, s62, 1")
        a("s_cbranch_scc1 %s" % done)
        a("s_cmp_ge_u32 s63, %s" % val)
        a("s_cbranch_scc1 %s" % done)
        a("s_sleep %d" % sleep)
        a("s_branch %s" % lab)
        a.label(done)
    def lds_signal(off, val=1):
        a("v_mov_b32 v%d, %d" % (H0, L_FLAG + off))
        a("v_mov_b32 v%d, %d" % (H1, val))
        a("s_mov_b64 exec, 1")
        a("ds_add_u32 v%d, v%d" % (H0, H1))
        a("s_mov_b64 exec, -1")
    def kbase(vdst, sks):
        a("s_add_u32 s93, %s, s92" % sks)
        a("s_and_b32 s93, s93, 7")
        a("s_mul_i32 s93, s93, 24576")
        a("s_cmp_ge_u32 %s, 8" % sks)
        a("s_cselect_b32 s93, 0x1000000, s93")
        a("v_add_u32 v%d, s93, v5" % vdst)

    stamp(0)
    if o["amp"]:
        a("s_memrealtime s[94:95]")
        a("s_memrealtime s[96:97]")
    cm("workgroups past the 256 that carry data leave at once")
    a("s_cmp_ge_u32 s2, 256")
    a("s_cbranch_scc1 L_end")
    a("s_load_dwordx16 s[4:19], s[0:1], 0")
    a("v_lshrrev_b32 v1, 6, v0")
    a("v_and_b32 v0, 63, v0")
    a("v_readfirstlane_b32 s3, v1")
    cm("head = (wg>>6)*8 + (wg&7), j = (wg>>3)&7 : the 8 workgroups of a head normally share an XCD (speed only)")
    if o["xmap"] == "xcd":
        a("s_lshr_b32 s20, s2, 6")
        a("s_lshl_b32 s20, s20, 3")
        a("s_and_b32 s21, s2, 7")
        a("s_add_u32 s20, s20, s21")
        a("s_lshr_b32 s21, s2, 3")
        a("s_and_b32 s21, s21, 7")
    else:
        a("s_lshr_b32 s20, s2, 3")
        a("s_and_b32 s21, s2, 7")
    cm("phase 1 role: mat = j&1 (K or V), quarter = j>>1 (512 rows); phase 2 role: query rows [256j, 256j+256)")
    a("s_and_b32 s22, s21, 1")
    a("s_lshr_b32 s23, s21, 1")
    a("v_and_b32 v3, 7, v0")
    a("v_lshrrev_b32 v4, 3, v0")
    a("v_mul_u32_u24 v1, 3072, v4")
    a("v_lshl_add_u32 v1, v3, 4, v1")
    a("s_lshl_b32 s52, s3, 7")
    a("v_add_u32 v5, s52, v1")
    a("s_lshr_b32 s92, s2, 3")
    a("s_add_u32 s92, s92, s2")
    a("s_and_b32 s92, s92, 7")
    a("s_mul_i32 s93, s92, 24576")
    a("v_add_u32 v6, s93, v5")
    a("s_mul_i32 s58, s20, 786432")
    a("s_mul_i32 s59, s23, 196608")
    a("s_add_u32 s59, s59, s58")
    a("s_mov_b32 s26, 196608")
    a("s_mov_b32 s27, 0x20000")
    a("s_cmp_eq_u32 s22, 0")
    a("s_waitcnt lgkmcnt(0)")
    a("s_cselect_b32 s24, s6, s8")
    a("s_cselect_b32 s25, s7, s9")
    a("s_cselect_b32 s28, s10, s12")
    a("s_cselect_b32 s29, s11, s13")
    a("s_add_u32 s24, s24, s59")
    a("s_addc_u32 s25, s25, 0")
    a("s_cmp_ge_u32 s3, %d" % NKV)
    a("s_cbranch_scc1 L_notkv0")
    def xload(slot, vb, j):
        r = RING + 4 * slot
        a("buffer_load_dwordx4 v[%d:%d], v%d, s[24:27], 0 offen offset:%d %s" % (r, r + 3, vb, j * 384, ld))
    cm("K/V waves: first 8 row loads, then the projection rows of the first two 64-row steps")
    for n in range(D):
        xload(n, 6, n)
    a("s_mov_b32 s30, 32768")
    a("s_mov_b32 s31, 0x20000")
    a("v_lshlrev_b32 v2, 12, v3")
    a("v_lshl_add_u32 v2, v4, 4, v2")
    a("s_lshl_b32 s55, s23, 10")
    for h in range(2):
        a("s_add_u32 s93, s92, %d" % h)
        a("s_and_b32 s93, s93, 7")
        a("s_lshl_b32 s93, s93, 7")
        a("s_add_u32 s93, s93, s55")
        a("buffer_load_dwordx4 v[%d:%d], v2, s[28:31], s93 offen" % (AOP + 4 * h, AOP + 4 * h + 3))
    amppt("issued0")
    a.label("L_notkv0")
    a("s_mov_b32 s30, 32768")
    a("s_mov_b32 s31, 0x20000")
    a("s_mul_i32 s59, s21, 98304")
    a("s_add_u32 s58, s58, s59")
    a("s_add_u32 s32, s4, s58")
    a("s_addc_u32 s33, s5, 0")
    a("s_mov_b32 s34, 98304")
    a("s_mov_b32 s35, 0x20000")
    a("s_add_u32 s36, s14, s58")
    a("s_addc_u32 s37, s15, 0")
    a("s_mov_b32 s38, 98304")
    a("s_mov_b32 s39, 0x20000")
    a("s_mul_i32 s58, s20, 49152")
    a("s_add_u32 s40, s18, s58")
    a("s_addc_u32 s41, s19, 0")
    a("s_mov_b32 s42, 49152")
    a("s_mov_b32 s43, 0x20000")
    a("s_mov_b32 s44, s16")
    a("s_mov_b32 s45, s17")
    a("s_mov_b32 s46, 256")
    a("s_mov_b32 s47, 0x20000")
    a("s_mov_b32 s48, 0x05040100")
    a("s_mov_b32 s49, 0x07060302")
    a("s_mov_b32 s50, 0x3d93cd3a")
    a("s_mov_b32 s51, 0x3fb8aa3b")
    a("s_lshl_b32 s53, s22, 2")
    a("s_add_u32 s53, s53, s23")
    a("s_mul_i32 s53, s53, 6144")
    a("s_cmp_lg_u32 s3, %d" % (NW - 1))
    a("s_cbranch_scc1 L_noinit")
    a("v_lshlrev_b32 v110, 2, v0")
    a("v_add_u32 v110, %d, v110" % L_FLAG)
    a("v_mov_b32 v111, 0")
    a("s_mov_b64 exec, 0xffff")
    a("ds_write_b32 v110, v111")
    a("s_mov_b64 exec, -1")
    a("s_waitcnt lgkmcnt(0)")
    a.label("L_noinit")
    a("s_cmp_ge_u32 s3, %d" % NKV)
    a("s_cbranch_scc1 L_qwave")

    cm("---- K/V wave tau = wave id: 128-byte column third tau of 512 rows, 8 steps of 64 rows ----")
    for r in range(ACC, ACC + 32):
        a("v_mov_b32 v%d, 0" % r)
    a("v_lshlrev_b32 v11, 4, v0")
    a("v_add_u32 v11, %d, v11" % L_E)
    a("s_mov_b32 s54, 0")
    a("s_setprio 2")
    a("s_barrier")
    a.label("L_kvloop")
    qs = [1, 2]
    a("s_lshl_b32 s55, s54, 1")
    for k, q in enumerate(qs):
        a("s_add_u32 s56, s55, %d" % q)
        kbase(6 + k, "s56")
    for i in range(8):
        a("s_waitcnt vmcnt(%d)" % (D - 2))
        for u in range(2):
            n = 2 * i + u + D
            xload(n % 16, 6 + qs.index(n // 8), n % 8)
        if i >= 4:
            lab = a.newlabel("Lnt")
            a("s_cmp_lg_u32 s54, 3")
            a("s_cbranch_scc1 %s" % lab)
            lds_signal(F_TRIG)
            a.label(lab)
        jj = i % 4
        if jj == 2:
            h = i // 4
            labs = a.newlabel("Lsk")
            a("s_cmp_eq_u32 s54, 0")
            a("s_cbranch_scc1 %s" % labs)
            if h == 0:
                lab = a.newlabel("Lne")
                a("s_cmp_lg_u32 s54, 1")
                a("s_cbranch_scc1 %s" % lab)
                lds_poll(F_E, 1, "E")
                a.label(lab)
            a("s_add_u32 s93, s55, s92")
            if h:
                a("s_add_u32 s93, s93, 1")
            a("s_and_b32 s93, s93, 7")
            a("s_lshl_b32 s93, s93, 10")
            a("v_add_u32 v10, s93, v11")
            a("ds_read_b128 v[%d:%d], v10" % (AOP + 4 * h, AOP + 4 * h + 3))
            a.label(labs)
        r0 = RING + 8 * i; r1 = r0 + 4
        for m in range(4):
            a("v_perm_b32 v%d, v%d, v%d, s48" % (BR + 4 * (2 * m) + jj, r1 + m, r0 + m))
            a("v_perm_b32 v%d, v%d, v%d, s49" % (BR + 4 * (2 * m + 1) + jj, r1 + m, r0 + m))
        if jj == 3:
            h = i // 4
            a("s_waitcnt lgkmcnt(0)")
            a("s_nop 0")
            for e in range(8):
                a("v_mfma_f32_16x16x32_bf16 v[%d:%d], v[%d:%d], v[%d:%d], v[%d:%d]" % (ACC + 4 * e, ACC + 3 + 4 * e, AOP + 4 * h, AOP + 4 * h + 3, BR + 4 * e, BR + 3 + 4 * e, ACC + 4 * e, ACC + 3 + 4 * e))
    a("s_add_u32 s54, s54, 1")
    a("s_cmp_lt_u32 s54, 4")
    a("s_cbranch_scc1 L_kvloop")
    stamp(1)
    amppt("kvend")
    cm("---- add the two row-parity halves, publish the partial (never the word 0xffffffff, which marks 'not yet written') ----")
    a("s_mov_b32 s52, s3")
    a("v_lshrrev_b32 v9, 5, v0")
    a("v_lshlrev_b32 v9, 10, v9")
    a("v_bfe_u32 v8, v0, 4, 1")
    a("v_lshl_add_u32 v9, v8, 7, v9")
    a("v_and_b32 v8, 7, v0")
    a("v_lshl_add_u32 v9, v8, 4, v9")
    a("s_lshl_b32 s58, s52, 11")
    a("v_add_u32 v9, s58, v9")
    a("v_lshlrev_b32 v3, 4, v0")
    a("v_add_u32 v3, s58, v3")
    a("v_mov_b32 v%d, %d" % (H0, L_FLAG))
    a("ds_read_b32 v%d, v%d offset:%d" % (H1, H0, F_MODE))
    for e in range(4):
        for t in range(4):
            a("v_permlane32_swap_b32 v%d, v%d" % (ACC + 4 * e + t, ACC + 16 + 4 * e + t))
    for e in range(4):
        for t in range(4):
            x = ACC + 4 * e + t; y = ACC + 16 + 4 * e + t
            a("v_add_f32_dpp v%d, v%d, v%d row_ror:8 row_mask:0xf bank_mask:0xf" % (x, y, x))
    for e in range(4):
        for t in range(4):
            x = ACC + 4 * e + t
            a("v_min_u32 v%d, -2, v%d" % (x, x))
    a("s_waitcnt lgkmcnt(0)")
    a("v_readfirstlane_b32 s63, v%d" % H1)
    a("s_cmp_lg_u32 s63, 0")
    a("s_cbranch_scc1 L_modeok")
    lds_poll(F_MODE, 1, "M")
    a.label("L_modeok")
    a("s_mov_b32 s61, s63")
    a("s_mov_b32 exec_lo, 0x00ff00ff")
    a("s_mov_b32 exec_hi, 0x00ff00ff")
    a("s_cmp_eq_u32 s61, 2")
    a("s_cbranch_scc1 L_pubfast")
    for e in range(4):
        a("buffer_store_dwordx4 v[%d:%d], v9, s[40:43], s53 offen offset:%d sc1" % (ACC + 4 * e, ACC + 3 + 4 * e, e * 256))
    a("s_branch L_pubdone")
    a.label("L_pubfast")
    for e in range(4):
        a("buffer_store_dwordx4 v[%d:%d], v9, s[40:43], s53 offen offset:%d" % (ACC + 4 * e, ACC + 3 + 4 * e, e * 256))
    a.label("L_pubdone")
    a("s_mov_b64 exec, -1")
    stamp(2)
    cm("---- collect the 8 partials of this column third; a producer is taken once none of its words is 0xffffffff ----")
    C = RING
    a("s_mov_b32 s57, 0xff")
    a("s_mov_b32 s62, %d" % SPIN_GLB)
    def issue_pending(fl):
        for p in range(8):
            lab = a.newlabel("Lc")
            a("s_bitcmp1_b32 s57, %d" % p)
            a("s_cbranch_scc0 %s" % lab)
            a("s_mov_b32 s58, %d" % (p * 6144))
            for i in range(2):
                r = C + 4 * (p * 2 + i)
                a("buffer_load_dwordx4 v[%d:%d], v3, s[40:43], s58 offen offset:%d %s" % (r, r + 3, i * 1024, fl))
            a.label(lab)
    a.label("L_collect")
    a("s_cmp_eq_u32 s61, 2")
    a("s_cbranch_scc0 L_colslow")
    issue_pending(o["cld"])
    a("s_branch L_colwait")
    a.label("L_colslow")
    issue_pending("sc1")
    a.label("L_colwait")
    a("v_bfe_u32 v6, v0, 3, 1")
    a("v_and_b32 v7, 7, v0")
    a("v_lshrrev_b32 v2, 4, v0")
    a("v_mul_u32_u24 v140, %d, v6" % (4 * KP_STRIDE))
    a("v_lshl_add_u32 v140, v7, 4, v140")
    a("v_lshl_add_u32 v140, v2, 1, v140")
    a("s_lshl_b32 s58, s52, 7")
    a("s_add_u32 s58, s58, %d" % L_KP)
    a("v_add_u32 v140, s58, v140")
    a("v_lshl_add_u32 v141, v7, 3, v2")
    a("v_lshlrev_b32 v141, 4, v141")
    a("v_lshl_add_u32 v141, v6, 3, v141")
    a("s_lshl_b32 s58, s52, 10")
    a("s_add_u32 s58, s58, %d" % L_VP)
    a("v_add_u32 v141, s58, v141")
    if o["pipe"]:
        a("s_cmp_eq_u32 s62, %d" % SPIN_GLB)
        a("s_cbranch_scc1 L_colw0")
        a("s_cmp_eq_u32 s61, 2")
        a("s_cbranch_scc0 L_colw0")
        a("s_sleep %d" % o["pipe"])
        a("s_branch L_colchk")
        a.label("L_colw0")
    a("s_waitcnt vmcnt(0)")
    a.label("L_colchk")
    if stamps:
        lab = a.newlabel("Lfa")
        a("s_cmp_eq_u32 s62, %d" % SPIN_GLB)
        a("s_cbranch_scc0 %s" % lab)
        stamp(7)
        a.label(lab)
    for p in range(8):
        lab = a.newlabel("Lk")
        r = C + 8 * p
        a("s_bitcmp1_b32 s57, %d" % p)
        a("s_cbranch_scc0 %s" % lab)
        a("v_max3_u32 v8, v%d, v%d, v%d" % (r, r + 1, r + 2))
        a("v_max3_u32 v8, v8, v%d, v%d" % (r + 3, r + 4))
        a("v_max3_u32 v8, v8, v%d, v%d" % (r + 5, r + 6))
        a("v_max_u32 v8, v8, v%d" % (r + 7))
        a("v_cmp_eq_u32 vcc, -1, v8")
        a("s_cbranch_vccnz %s" % lab)
        a("s_bitset0_b32 s57, %d" % p)
        a.label(lab)
    a("s_cmp_eq_u32 s57, 0")
    a("s_cbranch_scc1 L_collected")
    a("s_sub_u32 s62, s62, 1")
    a("s_cbranch_scc0 L_collect")
    a.label("L_collected")
    stamp(3)
    S = BR
    for m in range(2):
        for i in range(2):
            for t in range(0, 4, 2):
                q = [C + 4 * (2 * (4 * m + k) + i) + t for k in range(4)]
                d = S + 8 * m + 4 * i + t
                a("v_pk_add_f32 v[%d:%d], v[%d:%d], v[%d:%d]" % (d, d + 1, q[0], q[0] + 1, q[1], q[1] + 1))
                a("v_pk_add_f32 v[%d:%d], v[%d:%d], v[%d:%d]" % (d + 16, d + 17, q[2], q[2] + 1, q[3], q[3] + 1))
    for m in range(2):
        for i in range(2):
            for t in range(0, 4, 2):
                d = S + 8 * m + 4 * i + t
                a("v_pk_add_f32 v[%d:%d], v[%d:%d], v[%d:%d]" % (d, d + 1, d, d + 1, d + 16, d + 17))
    P = ACC + 16
    for i in range(2):
        b = S + 4 * i
        a("v_cvt_pk_bf16_f32 v%d, v%d, v%d" % (P + 2 * i, b, b + 1))
        a("v_cvt_pk_bf16_f32 v%d, v%d, v%d" % (P + 1 + 2 * i, b + 2, b + 3))
    for i in range(2):
        a("ds_write_b16 v140, v%d offset:%d" % (P + 2 * i, 0 * KP_STRIDE + 8 * i))
        a("ds_write_b16_d16_hi v140, v%d offset:%d" % (P + 2 * i, 1 * KP_STRIDE + 8 * i))
        a("ds_write_b16 v140, v%d offset:%d" % (P + 1 + 2 * i, 2 * KP_STRIDE + 8 * i))
        a("ds_write_b16_d16_hi v140, v%d offset:%d" % (P + 1 + 2 * i, 3 * KP_STRIDE + 8 * i))
    for i in range(2):
        b = S + 8 + 4 * i
        a("v_cvt_pk_bf16_f32 v%d, v%d, v%d" % (P + 4 + 2 * i, b, b + 1))
        a("v_cvt_pk_bf16_f32 v%d, v%d, v%d" % (P + 5 + 2 * i, b + 2, b + 3))
    for i in range(2):
        a("ds_write_b64 v141, v[%d:%d] offset:%d" % (P + 4 + 2 * i, P + 5 + 2 * i, 64 * i))
    a("s_waitcnt lgkmcnt(0)")
    lds_signal(F_READY)
    amppt("ready")
    stamp(4)
    if stamps:
        a("s_waitcnt lgkmcnt(0)")
        a("s_mov_b32 s74, s78")
        a("s_sub_u32 s79, %d, s62" % SPIN_GLB)
    a("s_branch L_fin")

    a.label("L_qwave")
    a("s_barrier")
    cm("LDS-DMA lane offsets: 16-byte chunks are XOR-swizzled inside each 128-byte line (conflict-free fragment reads)")
    for n in range(6):
        a("v_add_u32 v110, %d, v0" % (64 * n))
        a("v_mul_u32_u24 v111, 2731, v110")
        a("v_lshrrev_b32 v111, 17, v111")
        a("v_and_b32 v111, 7, v111")
        a("v_lshlrev_b32 v111, 4, v111")
        a("v_lshlrev_b32 v110, 4, v110")
        a("v_xor_b32 v%d, v110, v111" % (140 + n))
    a("s_sub_u32 s55, s3, %d" % NKV)
    a("s_mul_i32 s56, s55, 12288")
    a("s_cmp_eq_u32 s3, %d" % (NKV + 0))
    a("s_cbranch_scc1 L_aux")
    a("s_cmp_eq_u32 s3, %d" % (NKV + 1))
    a("s_cbranch_scc0 L_qmain")
    cm("stage the projection rows of this workgroup's 512 K/V rows in LDS, in MFMA A-operand order")
    a("v_and_b32 v3, 7, v0")
    a("v_lshrrev_b32 v4, 3, v0")
    a("v_lshlrev_b32 v2, 12, v3")
    a("v_lshl_add_u32 v2, v4, 4, v2")
    a("s_lshl_b32 s58, s23, 10")
    for k in range(8):
        a("s_mov_b32 m0, %d" % (L_E + k * 1024))
        a("s_nop 0")
        a("buffer_load_dwordx4 v2, s[28:31], s58 offen lds")
        if k < 7:
            a("s_add_u32 s58, s58, 128")
    a("s_waitcnt vmcnt(0)")
    lds_signal(F_E)
    a("s_branch L_qmain")

    a.label("L_aux")
    cm("mark the own partial slot 'not yet written', then find out how the slot can be handed to the other 7 workgroups")
    for _ in range(o["auxdelay"] // 127):
        a("s_sleep 127")
    if o["auxdelay"] % 127:
        a("s_sleep %d" % (o["auxdelay"] % 127))
    a("v_lshlrev_b32 v1, 4, v0")
    for r in range(12, 16):
        a("v_mov_b32 v%d, -1" % r)
    def clear(fl):
        a("s_mov_b32 s58, s53")
        for n in range(6):
            if n == 4:
                a("s_add_u32 s58, s58, 4096")
            a("buffer_store_dwordx4 v[12:15], v1, s[40:43], s58 offen offset:%d %s" % ((n % 4) * 1024, fl))
        a("s_waitcnt vmcnt(0)")
    clear("")
    a("s_getreg_b32 s57, hwreg(HW_REG_XCC_ID)")
    a("s_and_b32 s57, s57, 7")
    a("s_or_b32 s57, s57, 0x80")
    a("v_mov_b32 v2, s57")
    a("s_lshl_b32 s59, s20, 3")
    a("s_add_u32 s58, s59, s21")
    a("s_mul_i32 s57, s57, 0x01010101")
    a("s_mov_b64 exec, 1")
    a("buffer_store_byte v2, off, s[44:47], s58")
    a("s_mov_b32 s62, %d" % o["auxpolls"])
    a.label("L_auxpoll")
    a("s_sleep %d" % o["auxsleep"])
    a("buffer_load_dwordx2 v[4:5], off, s[44:47], s59 sc1")
    a("s_waitcnt vmcnt(0)")
    for k in range(2):
        a("v_and_b32 v%d, 0xbfbfbfbf, v%d" % (4 + k, 4 + k))
        a("v_xor_b32 v%d, s57, v%d" % (4 + k, 4 + k))
    a("v_or_b32 v4, v4, v5")
    a("s_nop 0")
    a("v_readfirstlane_b32 s60, v4")
    a("s_cmp_eq_u32 s60, 0")
    a("s_cbranch_scc1 L_auxfast")
    a("s_sub_u32 s62, s62, 1")
    a("s_cbranch_scc0 L_auxpoll")
    cm("no proof that all 8 workgroups run on this XCD: clear again write-through and wait for the others at device scope")
    a.label("L_auxslow")
    a("s_mov_b64 exec, -1")
    clear("sc1")
    a("s_add_u32 s58, s59, s21")
    a("s_or_b32 s60, s57, 0x40")
    a("v_mov_b32 v2, s60")
    a("s_mov_b64 exec, 1")
    a("buffer_store_byte v2, off, s[44:47], s58 sc1")
    a("s_mov_b32 s62, %d" % SPIN_GLB)
    a.label("L_slowpoll")
    a("buffer_load_dwordx2 v[4:5], off, s[44:47], s59 sc1")
    a("v_mov_b32 v8, 0")
    a("v_mov_b32 v9, 0")
    a("buffer_atomic_or_x2 v[8:9], off, s[44:47], s59 sc0 sc1")
    a("s_waitcnt vmcnt(0)")
    a("v_mov_b32 v12, 0")
    for k in range(2):
        a("v_and_b32 v13, 0xbfbfbfbf, v%d" % (4 + k))
        a("v_xor_b32 v13, s57, v13")
        a("v_and_b32 v14, 0x7f7f7f7f, v13")
        a("v_add_u32 v14, 0x7f7f7f7f, v14")
        a("v_or_b32 v14, v14, v13")
        a("v_not_b32 v14, v14")
        a("v_lshrrev_b32 v14, 1, v14")
        a("v_or_b32 v14, v14, v%d" % (8 + k))
        a("v_and_b32 v14, 0x40404040, v14")
        a("v_xor_b32 v14, 0x40404040, v14")
        a("v_or_b32 v12, v12, v14")
    a("s_nop 0")
    a("v_readfirstlane_b32 s60, v12")
    a("s_cmp_eq_u32 s60, 0")
    a("s_cbranch_scc1 L_slowok")
    a("s_sub_u32 s62, s62, 1")
    a("s_cbranch_scc1 L_slowok")
    a("s_sleep 32")
    a("s_branch L_slowpoll")
    a.label("L_slowok")
    a("s_mov_b64 exec, -1")
    lds_signal(F_MODE, 1)
    a("s_branch L_auxdone")
    a.label("L_auxfast")
    if not fast:
        a("s_branch L_auxslow")
    a("s_mov_b64 exec, -1")
    lds_signal(F_MODE, 2)
    a.label("L_auxdone")
    stamp(3)

    a.label("L_qmain")
    cm("---- Q wave: two 16-row tiles, loaded as the K/V stream drains ----")
    a("s_sub_u32 s57, s3, %d" % NKV)
    a("s_mul_i32 s57, s57, %d" % (3 * D // 2))
    a("s_lshr_b32 s57, s57, 3")
    a("s_add_u32 s57, s57, 1")
    lds_poll(F_TRIG, "s57", "T")
    stamp(1)
    def q_dma(k):
        t, n = divmod(k, 6)
        a("s_add_u32 m0, s56, %d" % (L_Q + t * 6144 + n * 1024))
        if t == 1 and n == 0:
            a("s_add_u32 s57, s56, 6144")
        else:
            a("s_nop 0")
        a("buffer_load_dwordx4 v%d, s[32:35], %s offen %s lds" % (140 + n, "s56" if t == 0 else "s57", ld))
    a("s_add_u32 s57, s56, 6144")
    for k in range(12):
        if k >= qdepth:
            a("s_waitcnt vmcnt(%d)" % (qdepth - 1))
        q_dma(k)
        if k >= 5 + qdepth and k < 11:
            a("ds_read_b32 v%d, v%d offset:%d" % (H1, H0, F_READY - F_TRIG))
            a("s_waitcnt lgkmcnt(0)")
            a("v_readfirstlane_b32 s63, v%d" % H1)
            a("s_cmp_ge_u32 s63, 3")
            a("s_cbranch_scc1 L_rest%d" % (k + 1))
    a("s_branch L_allissued")
    for k in range(6 + qdepth, 12):
        a.label("L_rest%d" % k)
        q_dma(k)
    a.label("L_allissued")
    lds_signal(F_QISS)
    amppt("qiss")
    stamp(2)

    a("v_and_b32 v138, 15, v0")
    a("v_lshrrev_b32 v139, 4, v0")
    a("v_lshrrev_b32 v132, 1, v138")
    a("v_xor_b32 v132, v132, v139")
    a("v_lshlrev_b32 v132, 4, v132")
    a("v_mul_u32_u24 v133, 384, v138")
    a("v_add_u32 v132, v132, v133")
    a("v_add_u32 v132, s56, v132")
    a("v_xor_b32 v133, 64, v132")
    a("v_and_b32 v134, 7, v0")
    a("v_mul_u32_u24 v134, %d, v134" % KP_STRIDE)
    a("v_lshl_add_u32 v134, v139, 4, v134")
    a("v_add_u32 v134, %d, v134" % L_KP)
    a("v_lshrrev_b32 v146, 2, v138")
    a("v_and_b32 v147, 3, v138")
    a("v_lshl_add_u32 v135, v146, 3, v147")
    a("v_lshlrev_b32 v135, 4, v135")
    a("v_and_b32 v147, 1, v139")
    a("v_lshl_add_u32 v135, v147, 3, v135")
    a("v_add_u32 v135, %d, v135" % L_VP)
    a("v_lshlrev_b32 v136, 4, v0")
    a("v_cmp_gt_u32 vcc, 32, v0")
    a("v_mov_b32 v137, 0")
    a("s_nop 0")
    a("v_cndmask_b32_e64 v137, v137, 1.0, vcc")
    a("s_waitcnt vmcnt(6)")
    for m in range(6):
        a("ds_read_b128 v[%d:%d], v%d offset:%d" % (52 + 4 * m, 55 + 4 * m, 132 + (m & 1), (m >> 1) * 128))
    lds_poll(F_READY, 3, "R")
    stamp(4)
    for m in range(6):
        a("ds_read_b128 v[%d:%d], v134 offset:%d" % (4 + 4 * m, 7 + 4 * m, m * 64))
    for T in range(12):
        U, b = divmod(T, 2)
        a("ds_read_b64 v[%d:%d], v135 offset:%d" % (28 + 2 * T, 29 + 2 * T, (32 * U + 4 * b) * 16))
    a("s_mov_b32 s55, 0")
    a("s_waitcnt lgkmcnt(12)")
    a("s_branch L_tile1")
    a.label("L_tile")
    a("s_waitcnt vmcnt(6)")
    for m in range(6):
        a("ds_read_b128 v[%d:%d], v%d offset:%d" % (52 + 4 * m, 55 + 4 * m, 132 + (m & 1), (m >> 1) * 128))
    a("s_waitcnt lgkmcnt(0)")
    a.label("L_tile1")
    cm("scores^T = kp . Q^T (rows r replicated twice), softmax over the 8 projected keys")
    for m in range(6):
        a("v_mfma_f32_16x16x32_bf16 v[76:79], v[%d:%d], v[%d:%d], %s" % (4 + 4 * m, 7 + 4 * m, 52 + 4 * m, 55 + 4 * m, "0" if m == 0 else "v[76:79]"))
    a("s_add_u32 s58, s56, 4096")
    a("s_nop 6")
    Z = 76
    def rnd():
        a("v_cvt_pk_bf16_f32 v80, v76, v77")
        a("v_cvt_pk_bf16_f32 v81, v78, v79")
        a("v_lshlrev_b32 v76, 16, v80")
        a("v_and_b32 v77, 0xffff0000, v80")
        a("v_lshlrev_b32 v78, 16, v81")
        a("v_and_b32 v79, 0xffff0000, v81")
    if o["round_emul"]:
        rnd()
    for t in range(4):
        a("v_mul_f32 v%d, s50, v%d" % (Z + t, Z + t))
    if o["round_emul"]:
        rnd()
    a("v_max3_f32 v82, v76, v77, v78")
    a("v_max_f32 v82, v82, v79")
    a("v_mov_b32 v83, v82")
    a("s_nop 1")
    a("v_permlane16_swap_b32 v82, v83")
    a("s_nop 1")
    a("v_max_f32 v82, v82, v83")
    a("v_mul_f32 v82, s51, v82")
    for t in range(4):
        a("v_fma_f32 v%d, v%d, s51, -v82" % (Z + t, Z + t))
    for t in range(4):
        a("v_exp_f32 v%d, v%d" % (Z + t, Z + t))
    a("s_nop 0")
    a("v_add_f32 v82, v76, v77")
    a("v_add_f32 v83, v78, v79")
    a("v_add_f32 v82, v82, v83")
    a("v_mov_b32 v83, v82")
    a("s_nop 1")
    a("v_permlane16_swap_b32 v82, v83")
    a("s_nop 1")
    a("v_add_f32 v82, v82, v83")
    a("v_rcp_f32 v82, v82")
    a("s_nop 0")
    a("v_mul_f32 v82, v82, v137")
    for t in range(4):
        a("v_mul_f32 v%d, v%d, v82" % (Z + t, Z + t))
    a("v_cvt_pk_bf16_f32 v80, v76, v77")
    a("v_cvt_pk_bf16_f32 v81, v78, v79")
    a("s_waitcnt lgkmcnt(0)")
    a("s_nop 0")
    cm("out^T = vp^T . p^T, packed to bf16, turned row-major through the tile's LDS space")
    for T in range(12):
        a("v_mfma_f32_16x16x16_bf16 v[%d:%d], v[%d:%d], v[80:81], 0" % (84 + 4 * T, 87 + 4 * T, 28 + 2 * T, 29 + 2 * T))
    for U in range(6):
        da, db = 84 + 8 * U, 88 + 8 * U
        if U == 0:
            a("s_nop 1")
        a("v_cvt_pk_bf16_f32 v%d, v%d, v%d" % (da, da, da + 1))
        a("v_cvt_pk_bf16_f32 v%d, v%d, v%d" % (da + 1, da + 2, da + 3))
        a("v_cvt_pk_bf16_f32 v%d, v%d, v%d" % (da + 2, db, db + 1))
        a("v_cvt_pk_bf16_f32 v%d, v%d, v%d" % (da + 3, db + 2, db + 3))
        a("ds_write_b128 v%d, v[%d:%d] offset:%d" % (132 + (U & 1), da, da + 3, (U >> 1) * 128))
    a("s_waitcnt lgkmcnt(0)")
    lab = a.newlabel("Lqi")
    a("s_cmp_lg_u32 s55, 0")
    a("s_cbranch_scc1 %s" % lab)
    lds_poll(F_QISS, 8, "I")
    a.label(lab)
    for n in range(6):
        a("v_add_u32 v%d, s56, v%d" % (84 + n, 140 + n))
    for n in range(6):
        a("ds_read_b128 v[%d:%d], v%d" % (52 + 4 * n, 55 + 4 * n, 84 + n))
    for n in range(6):
        a("s_waitcnt lgkmcnt(%d)" % (5 - n))
        so, imm = ("s56", n * 1024) if n < 4 else ("s58", (n - 4) * 1024)
        a("buffer_store_dwordx4 v[%d:%d], v136, s[36:39], %s offen offset:%d %s" % (52 + 4 * n, 55 + 4 * n, so, imm, st))
    a("s_add_u32 s56, s56, 6144")
    a("v_add_u32 v132, 6144, v132")
    a("v_add_u32 v133, 6144, v133")
    a("s_add_u32 s55, s55, 1")
    a("s_cmp_lt_u32 s55, 2")
    a("s_cbranch_scc1 L_tile")
    stamp(5)
    a.label("L_fin")
    if o["amp"]:
        a("s_waitcnt vmcnt(0)")
        a("s_memrealtime s[84:85]")
        a("s_waitcnt lgkmcnt(0)")
        a("s_sub_u32 s86, %s, s94" % ("s84" if o["ampat"] is None else "s96"))
        a("s_mul_i32 s86, s86, %d" % o["amp"])
        a("s_add_u32 s86, s86, s84")
        a.label("L_amp")
        a("s_sleep 8")
        a("s_memrealtime s[84:85]")
        a("s_waitcnt lgkmcnt(0)")
        a("s_sub_u32 s87, s86, s84")
        a("s_cmp_gt_i32 s87, 0")
        a("s_cbranch_scc1 L_amp")
    if stamps:
        a("s_waitcnt vmcnt(0)")
        stamp(6)
        a("s_getreg_b32 s78, hwreg(HW_REG_XCC_ID)")
        a("s_cmp_lt_u32 s3, %d" % NKV)
        a("s_cselect_b32 s79, s79, 0")
        a("s_lshl_b32 s79, s79, 8")
        a("s_or_b32 s78, s78, s79")
        a("s_waitcnt lgkmcnt(0)")
        a("s_lshl_b32 s58, s2, 9")
        a("s_lshl_b32 s59, s3, 5")
        a("s_add_u32 s58, s58, s59")
        a("s_add_u32 s58, s58, %d" % STAMP_OFF)
        a("s_mov_b32 s40, s18"); a("s_mov_b32 s41, s19"); a("s_mov_b32 s42, 0x1000000"); a("s_mov_b32 s43, 0x20000")
        for i in range(7):
            a("v_mov_b32 v%d, s%d" % (4 + i, 64 + 2 * i))
        a("v_mov_b32 v11, s78")
        a("s_mov_b64 exec, 1")
        a("buffer_store_dwordx4 v[4:7], off, s[40:43], s58")
        a("buffer_store_dwordx4 v[8:11], off, s[40:43], s58 offset:16")
    a.label("L_end")
    a("s_endpgm")
    nsg = 102 if (o["amp"] or stamps) else 94
    return wrap(["; @launch grid=(256,1,1) block=(%d,1,1) lds=%d" % (NW * 64, LDS_BYTES)], [(KN, a.text(), NVGPR, nsg)])

def parse_kv(args):
    kw = {}
    for x in args:
        k, v = x.split("=", 1)
        if v in ("True", "False", "None"):
            v = eval(v)
        else:
            try: v = int(v)
            except ValueError: pass
        kw[k] = v
    return kw

if __name__ == "__main__":
    open(sys.argv[1], "w").write(gen(**parse_kv(sys.argv[2:])))
```

```python
import sys
from asmlib import *

L_Q = 0
L_E = 98304
L_KP = L_E + 8192
KP_STRIDE = 400
L_VP = L_KP + 8 * KP_STRIDE
L_FLAG = L_VP + 3072
LDS_BYTES = L_FLAG + 64
F_TRIG, F_READY, F_MODE, F_E, F_QISS, F_GO = 0, 4, 8, 12, 16, 20
STAMP_OFF = 8 << 20
SPIN_LDS = 1 << 22
SPIN_GLB = 1 << 16
NKV, NQ = 3, 8
NW = NKV + NQ
RING, BR, ACC, AOP = 12, 76, 108, 140
H0, H1 = 148, 149
NVGPR = 152
D = 8

DEF = dict(ld="nt", st="nt", cld="nt", stamps=None, qdepth=3, fast=True, xmap="xcd", round_emul=True,
           auxdelay=0, goat=3, auxsleep=6, auxpolls=6, pipe=0, amp=0, ampat=None, comments=True)

def gen(**kw):
    o = dict(DEF); o.update(kw)
    ld, st, stamps, qdepth, fast = o["ld"], o["st"], o["stamps"], o["qdepth"], o["fast"]
    a = Asm()
    def cm(t):
        if o["comments"]:
            a.raw("    ; " + t)
    def stamp(i):
        if stamps:
            a("s_memrealtime s[%d:%d]" % (64 + 2 * i, 65 + 2 * i))
    def amppt(name):
        if o["amp"] and o["ampat"] == name:
            a("s_memrealtime s[96:97]")
    def lds_poll(off, val, name, sleep=1):
        lab = a.newlabel("Lp" + name); done = a.newlabel("Ld" + name)
        a("s_mov_b32 s62, %d" % SPIN_LDS)
        a("v_mov_b32 v%d, %d" % (H0, L_FLAG + off))
        a.label(lab)
        a("ds_read_b32 v%d, v%d" % (H1, H0))
        a("s_waitcnt lgkmcnt(0)")
        a("v_readfirstlane_b32 s63, v%d" % H1)
        a("s_sub_u32 s62, s62, 1")
        a("s_cbranch_scc1 %s" % done)
        a("s_cmp_ge_u32 s63, %s" % val)
        a("s_cbranch_scc1 %s" % done)
        a("s_sleep %d" % sleep)
        a("s_branch %s" % lab)
        a.label(done)
    def lds_signal(off, val=1):
        a("v_mov_b32 v%d, %d" % (H0, L_FLAG + off))
        a("v_mov_b32 v%d, %d" % (H1, val))
        a("s_mov_b64 exec, 1")
        a("ds_add_u32 v%d, v%d" % (H0, H1))
        a("s_mov_b64 exec, -1")
    def kbase(vdst, sks):
        a("s_add_u32 s93, %s, s92" % sks)
        a("s_and_b32 s93, s93, 7")
        a("s_mul_i32 s93, s93, 24576")
        a("s_cmp_ge_u32 %s, 8" % sks)
        a("s_cselect_b32 s93, 0x1000000, s93")
        a("v_add_u32 v%d, s93, v5" % vdst)

    stamp(0)
    if o["amp"]:
        a("s_memrealtime s[94:95]")
        a("s_memrealtime s[96:97]")
    cm("workgroups past the 256 that carry data leave at once")
    a("s_cmp_ge_u32 s2, 256")
    a("s_cbranch_scc1 L_end")
    a("s_load_dwordx16 s[4:19], s[0:1], 0")
    a("v_lshrrev_b32 v1, 6, v0")
    a("v_and_b32 v0, 63, v0")
    a("v_readfirstlane_b32 s3, v1")
    cm("head = (wg>>6)*8 + (wg&7), j = (wg>>3)&7 : the 8 workgroups of a head normally share an XCD (speed only)")
    if o["xmap"] == "xcd":
        a("s_lshr_b32 s20, s2, 6")
        a("s_lshl_b32 s20, s20, 3")
        a("s_and_b32 s21, s2, 7")
        a("s_add_u32 s20, s20, s21")
        a("s_lshr_b32 s21, s2, 3")
        a("s_and_b32 s21, s21, 7")
    else:
        a("s_lshr_b32 s20, s2, 3")
        a("s_and_b32 s21, s2, 7")
    cm("phase 1 role: mat = j&1 (K or V), quarter = j>>1 (512 rows); phase 2 role: query rows [256j, 256j+256)")
    a("s_and_b32 s22, s21, 1")
    a("s_lshr_b32 s23, s21, 1")
    a("v_and_b32 v3, 7, v0")
    a("v_lshrrev_b32 v4, 3, v0")
    a("v_mul_u32_u24 v1, 3072, v4")
    a("v_lshl_add_u32 v1, v3, 4, v1")
    a("s_lshl_b32 s52, s3, 7")
    a("v_add_u32 v5, s52, v1")
    a("s_lshr_b32 s92, s2, 3")
    a("s_add_u32 s92, s92, s2")
    a("s_and_b32 s92, s92, 7")
    a("s_mul_i32 s93, s92, 24576")
    a("v_add_u32 v6, s93, v5")
    a("s_mul_i32 s58, s20, 786432")
    a("s_mul_i32 s59, s23, 196608")
    a("s_add_u32 s59, s59, s58")
    a("s_mov_b32 s26, 196608")
    a("s_mov_b32 s27, 0x20000")
    a("s_cmp_eq_u32 s22, 0")
    a("s_waitcnt lgkmcnt(0)")
    a("s_cselect_b32 s24, s6, s8")
    a("s_cselect_b32 s25, s7, s9")
    a("s_cselect_b32 s28, s10, s12")
    a("s_cselect_b32 s29, s11, s13")
    a("s_add_u32 s24, s24, s59")
    a("s_addc_u32 s25, s25, 0")
    a("s_cmp_ge_u32 s3, %d" % NKV)
    a("s_cbranch_scc1 L_notkv0")
    def xload(slot, vb, j):
        r = RING + 4 * slot
        a("buffer_load_dwordx4 v[%d:%d], v%d, s[24:27], 0 offen offset:%d %s" % (r, r + 3, vb, j * 384, ld))
    cm("K/V waves: first 8 row loads, then the projection rows of the first two 64-row steps")
    for n in range(D):
        xload(n, 6, n)
    a("s_mov_b32 s30, 32768")
    a("s_mov_b32 s31, 0x20000")
    a("v_lshlrev_b32 v2, 12, v3")
    a("v_lshl_add_u32 v2, v4, 4, v2")
    a("s_lshl_b32 s55, s23, 10")
    for h in range(2):
        a("s_add_u32 s93, s92, %d" % h)
        a("s_and_b32 s93, s93, 7")
        a("s_lshl_b32 s93, s93, 7")
        a("s_add_u32 s93, s93, s55")
        a("buffer_load_dwordx4 v[%d:%d], v2, s[28:31], s93 offen" % (AOP + 4 * h, AOP + 4 * h + 3))
    amppt("issued0")
    a.label("L_notkv0")
    a("s_mov_b32 s30, 32768")
    a("s_mov_b32 s31, 0x20000")
    a("s_mul_i32 s59, s21, 98304")
    a("s_add_u32 s58, s58, s59")
    a("s_add_u32 s32, s4, s58")
    a("s_addc_u32 s33, s5, 0")
    a("s_mov_b32 s34, 98304")
    a("s_mov_b32 s35, 0x20000")
    a("s_add_u32 s36, s14, s58")
    a("s_addc_u32 s37, s15, 0")
    a("s_mov_b32 s38, 98304")
    a("s_mov_b32 s39, 0x20000")
    a("s_mul_i32 s58, s20, 49152")
    a("s_add_u32 s40, s18, s58")
    a("s_addc_u32 s41, s19, 0")
    a("s_mov_b32 s42, 49152")
    a("s_mov_b32 s43, 0x20000")
    a("s_mov_b32 s44, s16")
    a("s_mov_b32 s45, s17")
    a("s_mov_b32 s46, 256")
    a("s_mov_b32 s47, 0x20000")
    a("s_mov_b32 s48, 0x05040100")
    a("s_mov_b32 s49, 0x07060302")
    a("s_mov_b32 s50, 0x3d93cd3a")
    a("s_mov_b32 s51, 0x3fb8aa3b")
    a("s_lshl_b32 s53, s22, 2")
    a("s_add_u32 s53, s53, s23")
    a("s_mul_i32 s53, s53, 6144")
    a("s_cmp_lg_u32 s3, %d" % (NW - 1))
    a("s_cbranch_scc1 L_noinit")
    a("v_lshlrev_b32 v110, 2, v0")
    a("v_add_u32 v110, %d, v110" % L_FLAG)
    a("v_mov_b32 v111, 0")
    a("s_mov_b64 exec, 0xffff")
    a("ds_write_b32 v110, v111")
    a("s_mov_b64 exec, -1")
    a("s_waitcnt lgkmcnt(0)")
    a.label("L_noinit")
    a("s_cmp_ge_u32 s3, %d" % NKV)
    a("s_cbranch_scc1 L_qwave")

    cm("---- K/V wave tau = wave id: 128-byte column third tau of 512 rows, 8 steps of 64 rows ----")
    for r in range(ACC, ACC + 32):
        a("v_mov_b32 v%d, 0" % r)
    a("v_lshlrev_b32 v11, 4, v0")
    a("v_add_u32 v11, %d, v11" % L_E)
    a("s_mov_b32 s54, 0")
    a("s_setprio 2")
    a("s_barrier")
    a.label("L_kvloop")
    qs = [1, 2]
    a("s_lshl_b32 s55, s54, 1")
    for k, q in enumerate(qs):
        a("s_add_u32 s56, s55, %d" % q)
        kbase(6 + k, "s56")
    for i in range(8):
        a("s_waitcnt vmcnt(%d)" % (D - 2))
        for u in range(2):
            n = 2 * i + u + D
            xload(n % 16, 6 + qs.index(n // 8), n % 8)
        if i >= 4:
            lab = a.newlabel("Lnt")
            a("s_cmp_lg_u32 s54, 3")
            a("s_cbranch_scc1 %s" % lab)
            lds_signal(F_TRIG)
            a.label(lab)
        jj = i % 4
        if jj == 2:
            h = i // 4
            labs = a.newlabel("Lsk")
            a("s_cmp_eq_u32 s54, 0")
            a("s_cbranch_scc1 %s" % labs)
            if h == 0:
                lab = a.newlabel("Lne")
                a("s_cmp_lg_u32 s54, 1")
                a("s_cbranch_scc1 %s" % lab)
                lds_poll(F_E, 1, "E")
                a.label(lab)
            a("s_add_u32 s93, s55, s92")
            if h:
                a("s_add_u32 s93, s93, 1")
            a("s_and_b32 s93, s93, 7")
            a("s_lshl_b32 s93, s93, 10")
            a("v_add_u32 v10, s93, v11")
            a("ds_read_b128 v[%d:%d], v10" % (AOP + 4 * h, AOP + 4 * h + 3))
            a.label(labs)
        r0 = RING + 8 * i; r1 = r0 + 4
        for m in range(4):
            a("v_perm_b32 v%d, v%d, v%d, s48" % (BR + 4 * (2 * m) + jj, r1 + m, r0 + m))
            a("v_perm_b32 v%d, v%d, v%d, s49" % (BR + 4 * (2 * m + 1) + jj, r1 + m, r0 + m))
        if jj == 3:
            h = i // 4
            a("s_waitcnt lgkmcnt(0)")
            a("s_nop 0")
            for e in range(8):
                a("v_mfma_f32_16x16x32_bf16 v[%d:%d], v[%d:%d], v[%d:%d], v[%d:%d]" % (ACC + 4 * e, ACC + 3 + 4 * e, AOP + 4 * h, AOP + 4 * h + 3, BR + 4 * e, BR + 3 + 4 * e, ACC + 4 * e, ACC + 3 + 4 * e))
        if o["goat"] is not None and i == o["goat"]:
            lab = a.newlabel("Lgo")
            a("s_cmp_lg_u32 s54, 0")
            a("s_cbranch_scc1 %s" % lab)
            lds_signal(F_GO)
            a.label(lab)
    a("s_add_u32 s54, s54, 1")
    a("s_cmp_lt_u32 s54, 4")
    a("s_cbranch_scc1 L_kvloop")
    stamp(1)
    amppt("kvend")
    cm("---- add the two row-parity halves, publish the partial (never the word 0xffffffff, which marks 'not yet written') ----")
    a("s_mov_b32 s52, s3")
    a("v_lshrrev_b32 v9, 5, v0")
    a("v_lshlrev_b32 v9, 10, v9")
    a("v_bfe_u32 v8, v0, 4, 1")
    a("v_lshl_add_u32 v9, v8, 7, v9")
    a("v_and_b32 v8, 7, v0")
    a("v_lshl_add_u32 v9, v8, 4, v9")
    a("s_lshl_b32 s58, s52, 11")
    a("v_add_u32 v9, s58, v9")
    a("v_lshlrev_b32 v3, 4, v0")
    a("v_add_u32 v3, s58, v3")
    a("v_mov_b32 v%d, %d" % (H0, L_FLAG))
    a("ds_read_b32 v%d, v%d offset:%d" % (H1, H0, F_MODE))
    for e in range(4):
        for t in range(4):
            a("v_permlane32_swap_b32 v%d, v%d" % (ACC + 4 * e + t, ACC + 16 + 4 * e + t))
    for e in range(4):
        for t in range(4):
            x = ACC + 4 * e + t; y = ACC + 16 + 4 * e + t
            a("v_add_f32_dpp v%d, v%d, v%d row_ror:8 row_mask:0xf bank_mask:0xf" % (x, y, x))
    for e in range(4):
        for t in range(4):
            x = ACC + 4 * e + t
            a("v_min_u32 v%d, -2, v%d" % (x, x))
    a("s_waitcnt lgkmcnt(0)")
    a("v_readfirstlane_b32 s63, v%d" % H1)
    a("s_cmp_lg_u32 s63, 0")
    a("s_cbranch_scc1 L_modeok")
    lds_poll(F_MODE, 1, "M")
    a.label("L_modeok")
    a("s_mov_b32 s61, s63")
    a("s_mov_b32 exec_lo, 0x00ff00ff")
    a("s_mov_b32 exec_hi, 0x00ff00ff")
    a("s_cmp_eq_u32 s61, 2")
    a("s_cbranch_scc1 L_pubfast")
    for e in range(4):
        a("buffer_store_dwordx4 v[%d:%d], v9, s[40:43], s53 offen offset:%d sc1" % (ACC + 4 * e, ACC + 3 + 4 * e, e * 256))
    a("s_branch L_pubdone")
    a.label("L_pubfast")
    for e in range(4):
        a("buffer_store_dwordx4 v[%d:%d], v9, s[40:43], s53 offen offset:%d" % (ACC + 4 * e, ACC + 3 + 4 * e, e * 256))
    a.label("L_pubdone")
    a("s_mov_b64 exec, -1")
    stamp(2)
    cm("---- collect the 8 partials of this column third; a producer is taken once none of its words is 0xffffffff ----")
    C = RING
    a("s_mov_b32 s57, 0xff")
    a("s_mov_b32 s62, %d" % SPIN_GLB)
    def issue_pending(fl):
        for p in range(8):
            lab = a.newlabel("Lc")
            a("s_bitcmp1_b32 s57, %d" % p)
            a("s_cbranch_scc0 %s" % lab)
            a("s_mov_b32 s58, %d" % (p * 6144))
            for i in range(2):
                r = C + 4 * (p * 2 + i)
                a("buffer_load_dwordx4 v[%d:%d], v3, s[40:43], s58 offen offset:%d %s" % (r, r + 3, i * 1024, fl))
            a.label(lab)
    a.label("L_collect")
    a("s_cmp_eq_u32 s61, 2")
    a("s_cbranch_scc0 L_colslow")
    issue_pending(o["cld"])
    a("s_branch L_colwait")
    a.label("L_colslow")
    issue_pending("sc1")
    a.label("L_colwait")
    a("v_bfe_u32 v6, v0, 3, 1")
    a("v_and_b32 v7, 7, v0")
    a("v_lshrrev_b32 v2, 4, v0")
    a("v_mul_u32_u24 v140, %d, v6" % (4 * KP_STRIDE))
    a("v_lshl_add_u32 v140, v7, 4, v140")
    a("v_lshl_add_u32 v140, v2, 1, v140")
    a("s_lshl_b32 s58, s52, 7")
    a("s_add_u32 s58, s58, %d" % L_KP)
    a("v_add_u32 v140, s58, v140")
    a("v_lshl_add_u32 v141, v7, 3, v2")
    a("v_lshlrev_b32 v141, 4, v141")
    a("v_lshl_add_u32 v141, v6, 3, v141")
    a("s_lshl_b32 s58, s52, 10")
    a("s_add_u32 s58, s58, %d" % L_VP)
    a("v_add_u32 v141, s58, v141")
    if o["pipe"]:
        a("s_cmp_eq_u32 s62, %d" % SPIN_GLB)
        a("s_cbranch_scc1 L_colw0")
        a("s_cmp_eq_u32 s61, 2")
        a("s_cbranch_scc0 L_colw0")
        a("s_sleep %d" % o["pipe"])
        a("s_branch L_colchk")
        a.label("L_colw0")
    a("s_waitcnt vmcnt(0)")
    a.label("L_colchk")
    if stamps:
        lab = a.newlabel("Lfa")
        a("s_cmp_eq_u32 s62, %d" % SPIN_GLB)
        a("s_cbranch_scc0 %s" % lab)
        stamp(7)
        a.label(lab)
    for p in range(8):
        lab = a.newlabel("Lk")
        r = C + 8 * p
        a("s_bitcmp1_b32 s57, %d" % p)
        a("s_cbranch_scc0 %s" % lab)
        a("v_max3_u32 v8, v%d, v%d, v%d" % (r, r + 1, r + 2))
        a("v_max3_u32 v8, v8, v%d, v%d" % (r + 3, r + 4))
        a("v_max3_u32 v8, v8, v%d, v%d" % (r + 5, r + 6))
        a("v_max_u32 v8, v8, v%d" % (r + 7))
        a("v_cmp_eq_u32 vcc, -1, v8")
        a("s_cbranch_vccnz %s" % lab)
        a("s_bitset0_b32 s57, %d" % p)
        a.label(lab)
    a("s_cmp_eq_u32 s57, 0")
    a("s_cbranch_scc1 L_collected")
    a("s_sub_u32 s62, s62, 1")
    a("s_cbranch_scc0 L_collect")
    a.label("L_collected")
    stamp(3)
    S = BR
    for m in range(2):
        for i in range(2):
            for t in range(0, 4, 2):
                q = [C + 4 * (2 * (4 * m + k) + i) + t for k in range(4)]
                d = S + 8 * m + 4 * i + t
                a("v_pk_add_f32 v[%d:%d], v[%d:%d], v[%d:%d]" % (d, d + 1, q[0], q[0] + 1, q[1], q[1] + 1))
                a("v_pk_add_f32 v[%d:%d], v[%d:%d], v[%d:%d]" % (d + 16, d + 17, q[2], q[2] + 1, q[3], q[3] + 1))
    for m in range(2):
        for i in range(2):
            for t in range(0, 4, 2):
                d = S + 8 * m + 4 * i + t
                a("v_pk_add_f32 v[%d:%d], v[%d:%d], v[%d:%d]" % (d, d + 1, d, d + 1, d + 16, d + 17))
    P = ACC + 16
    for i in range(2):
        b = S + 4 * i
        a("v_cvt_pk_bf16_f32 v%d, v%d, v%d" % (P + 2 * i, b, b + 1))
        a("v_cvt_pk_bf16_f32 v%d, v%d, v%d" % (P + 1 + 2 * i, b + 2, b + 3))
    for i in range(2):
        a("ds_write_b16 v140, v%d offset:%d" % (P + 2 * i, 0 * KP_STRIDE + 8 * i))
        a("ds_write_b16_d16_hi v140, v%d offset:%d" % (P + 2 * i, 1 * KP_STRIDE + 8 * i))
        a("ds_write_b16 v140, v%d offset:%d" % (P + 1 + 2 * i, 2 * KP_STRIDE + 8 * i))
        a("ds_write_b16_d16_hi v140, v%d offset:%d" % (P + 1 + 2 * i, 3 * KP_STRIDE + 8 * i))
    for i in range(2):
        b = S + 8 + 4 * i
        a("v_cvt_pk_bf16_f32 v%d, v%d, v%d" % (P + 4 + 2 * i, b, b + 1))
        a("v_cvt_pk_bf16_f32 v%d, v%d, v%d" % (P + 5 + 2 * i, b + 2, b + 3))
    for i in range(2):
        a("ds_write_b64 v141, v[%d:%d] offset:%d" % (P + 4 + 2 * i, P + 5 + 2 * i, 64 * i))
    a("s_waitcnt lgkmcnt(0)")
    lds_signal(F_READY)
    amppt("ready")
    stamp(4)
    if stamps:
        a("s_waitcnt lgkmcnt(0)")
        a("s_mov_b32 s74, s78")
        a("s_sub_u32 s79, %d, s62" % SPIN_GLB)
    a("s_branch L_fin")

    a.label("L_qwave")
    a("s_barrier")
    cm("LDS-DMA lane offsets: 16-byte chunks are XOR-swizzled inside each 128-byte line (conflict-free fragment reads)")
    for n in range(6):
        a("v_add_u32 v110, %d, v0" % (64 * n))
        a("v_mul_u32_u24 v111, 2731, v110")
        a("v_lshrrev_b32 v111, 17, v111")
        a("v_and_b32 v111, 7, v111")
        a("v_lshlrev_b32 v111, 4, v111")
        a("v_lshlrev_b32 v110, 4, v110")
        a("v_xor_b32 v%d, v110, v111" % (140 + n))
    a("s_sub_u32 s55, s3, %d" % NKV)
    a("s_mul_i32 s56, s55, 12288")
    a("s_cmp_eq_u32 s3, %d" % (NKV + 0))
    a("s_cbranch_scc1 L_aux")
    a("s_cmp_eq_u32 s3, %d" % (NKV + 1))
    a("s_cbranch_scc0 L_qmain")
    cm("stage the projection rows of this workgroup's 512 K/V rows in LDS, in MFMA A-operand order")
    a("v_and_b32 v3, 7, v0")
    a("v_lshrrev_b32 v4, 3, v0")
    a("v_lshlrev_b32 v2, 12, v3")
    a("v_lshl_add_u32 v2, v4, 4, v2")
    a("s_lshl_b32 s58, s23, 10")
    for k in range(8):
        a("s_mov_b32 m0, %d" % (L_E + k * 1024))
        a("s_nop 0")
        a("buffer_load_dwordx4 v2, s[28:31], s58 offen lds")
        if k < 7:
            a("s_add_u32 s58, s58, 128")
    a("s_waitcnt vmcnt(0)")
    lds_signal(F_E)
    a("s_branch L_qmain")

    a.label("L_aux")
    cm("mark the own partial slot 'not yet written', then find out how the slot can be handed to the other 7 workgroups")
    if o["goat"] is not None:
        cm("(starts once the K/V stream is flowing, so that these stores do not sit in front of the first cold loads)")
        lds_poll(F_GO, 1, "G", sleep=4)
    for _ in range(o["auxdelay"] // 127):
        a("s_sleep 127")
    if o["auxdelay"] % 127:
        a("s_sleep %d" % (o["auxdelay"] % 127))
    a("v_lshlrev_b32 v1, 4, v0")
    for r in range(12, 16):
        a("v_mov_b32 v%d, -1" % r)
    def clear(fl):
        a("s_mov_b32 s58, s53")
        for n in range(6):
            if n == 4:
                a("s_add_u32 s58, s58, 4096")
            a("buffer_store_dwordx4 v[12:15], v1, s[40:43], s58 offen offset:%d %s" % ((n % 4) * 1024, fl))
        a("s_waitcnt vmcnt(0)")
    clear("")
    a("s_getreg_b32 s57, hwreg(HW_REG_XCC_ID)")
    a("s_and_b32 s57, s57, 7")
    a("s_or_b32 s57, s57, 0x80")
    a("v_mov_b32 v2, s57")
    a("s_lshl_b32 s59, s20, 3")
    a("s_add_u32 s58, s59, s21")
    a("s_mul_i32 s57, s57, 0x01010101")
    a("s_mov_b64 exec, 1")
    a("buffer_store_byte v2, off, s[44:47], s58")
    a("s_mov_b32 s62, %d" % o["auxpolls"])
    a.label("L_auxpoll")
    a("s_sleep %d" % o["auxsleep"])
    a("buffer_load_dwordx2 v[4:5], off, s[44:47], s59 sc1")
    a("s_waitcnt vmcnt(0)")
    for k in range(2):
        a("v_and_b32 v%d, 0xbfbfbfbf, v%d" % (4 + k, 4 + k))
        a("v_xor_b32 v%d, s57, v%d" % (4 + k, 4 + k))
    a("v_or_b32 v4, v4, v5")
    a("s_nop 0")
    a("v_readfirstlane_b32 s60, v4")
    a("s_cmp_eq_u32 s60, 0")
    a("s_cbranch_scc1 L_auxfast")
    a("s_sub_u32 s62, s62, 1")
    a("s_cbranch_scc0 L_auxpoll")
    cm("no proof that all 8 workgroups run on this XCD: clear again write-through and wait for the others at device scope")
    a.label("L_auxslow")
    a("s_mov_b64 exec, -1")
    clear("sc1")
    a("s_add_u32 s58, s59, s21")
    a("s_or_b32 s60, s57, 0x40")
    a("v_mov_b32 v2, s60")
    a("s_mov_b64 exec, 1")
    a("buffer_store_byte v2, off, s[44:47], s58 sc1")
    a("s_mov_b32 s62, %d" % SPIN_GLB)
    a.label("L_slowpoll")
    a("buffer_load_dwordx2 v[4:5], off, s[44:47], s59 sc1")
    a("v_mov_b32 v8, 0")
    a("v_mov_b32 v9, 0")
    a("buffer_atomic_or_x2 v[8:9], off, s[44:47], s59 sc0 sc1")
    a("s_waitcnt vmcnt(0)")
    a("v_mov_b32 v12, 0")
    for k in range(2):
        a("v_and_b32 v13, 0xbfbfbfbf, v%d" % (4 + k))
        a("v_xor_b32 v13, s57, v13")
        a("v_and_b32 v14, 0x7f7f7f7f, v13")
        a("v_add_u32 v14, 0x7f7f7f7f, v14")
        a("v_or_b32 v14, v14, v13")
        a("v_not_b32 v14, v14")
        a("v_lshrrev_b32 v14, 1, v14")
        a("v_or_b32 v14, v14, v%d" % (8 + k))
        a("v_and_b32 v14, 0x40404040, v14")
        a("v_xor_b32 v14, 0x40404040, v14")
        a("v_or_b32 v12, v12, v14")
    a("s_nop 0")
    a("v_readfirstlane_b32 s60, v12")
    a("s_cmp_eq_u32 s60, 0")
    a("s_cbranch_scc1 L_slowok")
    a("s_sub_u32 s62, s62, 1")
    a("s_cbranch_scc1 L_slowok")
    a("s_sleep 32")
    a("s_branch L_slowpoll")
    a.label("L_slowok")
    a("s_mov_b64 exec, -1")
    lds_signal(F_MODE, 1)
    a("s_branch L_auxdone")
    a.label("L_auxfast")
    if not fast:
        a("s_branch L_auxslow")
    a("s_mov_b64 exec, -1")
    lds_signal(F_MODE, 2)
    a.label("L_auxdone")
    stamp(3)

    a.label("L_qmain")
    cm("---- Q wave: two 16-row tiles, loaded as the K/V stream drains ----")
    a("s_sub_u32 s57, s3, %d" % NKV)
    a("s_mul_i32 s57, s57, %d" % (3 * D // 2))
    a("s_lshr_b32 s57, s57, 3")
    a("s_add_u32 s57, s57, 1")
    lds_poll(F_TRIG, "s57", "T")
    stamp(1)
    def q_dma(k):
        t, n = divmod(k, 6)
        a("s_add_u32 m0, s56, %d" % (L_Q + t * 6144 + n * 1024))
        if t == 1 and n == 0:
            a("s_add_u32 s57, s56, 6144")
        else:
            a("s_nop 0")
        a("buffer_load_dwordx4 v%d, s[32:35], %s offen %s lds" % (140 + n, "s56" if t == 0 else "s57", ld))
    a("s_add_u32 s57, s56, 6144")
    for k in range(12):
        if k >= qdepth:
            a("s_waitcnt vmcnt(%d)" % (qdepth - 1))
        q_dma(k)
        if k >= 5 + qdepth and k < 11:
            a("ds_read_b32 v%d, v%d offset:%d" % (H1, H0, F_READY - F_TRIG))
            a("s_waitcnt lgkmcnt(0)")
            a("v_readfirstlane_b32 s63, v%d" % H1)
            a("s_cmp_ge_u32 s63, 3")
            a("s_cbranch_scc1 L_rest%d" % (k + 1))
    a("s_branch L_allissued")
    for k in range(6 + qdepth, 12):
        a.label("L_rest%d" % k)
        q_dma(k)
    a.label("L_allissued")
    lds_signal(F_QISS)
    amppt("qiss")
    stamp(2)

    a("v_and_b32 v138, 15, v0")
    a("v_lshrrev_b32 v139, 4, v0")
    a("v_lshrrev_b32 v132, 1, v138")
    a("v_xor_b32 v132, v132, v139")
    a("v_lshlrev_b32 v132, 4, v132")
    a("v_mul_u32_u24 v133, 384, v138")
    a("v_add_u32 v132, v132, v133")
    a("v_add_u32 v132, s56, v132")
    a("v_xor_b32 v133, 64, v132")
    a("v_and_b32 v134, 7, v0")
    a("v_mul_u32_u24 v134, %d, v134" % KP_STRIDE)
    a("v_lshl_add_u32 v134, v139, 4, v134")
    a("v_add_u32 v134, %d, v134" % L_KP)
    a("v_lshrrev_b32 v146, 2, v138")
    a("v_and_b32 v147, 3, v138")
    a("v_lshl_add_u32 v135, v146, 3, v147")
    a("v_lshlrev_b32 v135, 4, v135")
    a("v_and_b32 v147, 1, v139")
    a("v_lshl_add_u32 v135, v147, 3, v135")
    a("v_add_u32 v135, %d, v135" % L_VP)
    a("v_lshlrev_b32 v136, 4, v0")
    a("v_cmp_gt_u32 vcc, 32, v0")
    a("v_mov_b32 v137, 0")
    a("s_nop 0")
    a("v_cndmask_b32_e64 v137, v137, 1.0, vcc")
    a("s_waitcnt vmcnt(6)")
    for m in range(6):
        a("ds_read_b128 v[%d:%d], v%d offset:%d" % (52 + 4 * m, 55 + 4 * m, 132 + (m & 1), (m >> 1) * 128))
    lds_poll(F_READY, 3, "R")
    stamp(4)
    for m in range(6):
        a("ds_read_b128 v[%d:%d], v134 offset:%d" % (4 + 4 * m, 7 + 4 * m, m * 64))
    for T in range(12):
        U, b = divmod(T, 2)
        a("ds_read_b64 v[%d:%d], v135 offset:%d" % (28 + 2 * T, 29 + 2 * T, (32 * U + 4 * b) * 16))
    a("s_mov_b32 s55, 0")
    a("s_waitcnt lgkmcnt(12)")
    a("s_branch L_tile1")
    a.label("L_tile")
    a("s_waitcnt vmcnt(6)")
    for m in range(6):
        a("ds_read_b128 v[%d:%d], v%d offset:%d" % (52 + 4 * m, 55 + 4 * m, 132 + (m & 1), (m >> 1) * 128))
    a("s_waitcnt lgkmcnt(0)")
    a.label("L_tile1")
    cm("scores^T = kp . Q^T (rows r replicated twice), softmax over the 8 projected keys")
    for m in range(6):
        a("v_mfma_f32_16x16x32_bf16 v[76:79], v[%d:%d], v[%d:%d], %s" % (4 + 4 * m, 7 + 4 * m, 52 + 4 * m, 55 + 4 * m, "0" if m == 0 else "v[76:79]"))
    a("s_add_u32 s58, s56, 4096")
    a("s_nop 6")
    Z = 76
    def rnd():
        a("v_cvt_pk_bf16_f32 v80, v76, v77")
        a("v_cvt_pk_bf16_f32 v81, v78, v79")
        a("v_lshlrev_b32 v76, 16, v80")
        a("v_and_b32 v77, 0xffff0000, v80")
        a("v_lshlrev_b32 v78, 16, v81")
        a("v_and_b32 v79, 0xffff0000, v81")
    if o["round_emul"]:
        rnd()
    for t in range(4):
        a("v_mul_f32 v%d, s50, v%d" % (Z + t, Z + t))
    if o["round_emul"]:
        rnd()
    a("v_max3_f32 v82, v76, v77, v78")
    a("v_max_f32 v82, v82, v79")
    a("v_mov_b32 v83, v82")
    a("s_nop 1")
    a("v_permlane16_swap_b32 v82, v83")
    a("s_nop 1")
    a("v_max_f32 v82, v82, v83")
    a("v_mul_f32 v82, s51, v82")
    for t in range(4):
        a("v_fma_f32 v%d, v%d, s51, -v82" % (Z + t, Z + t))
    for t in range(4):
        a("v_exp_f32 v%d, v%d" % (Z + t, Z + t))
    a("s_nop 0")
    a("v_add_f32 v82, v76, v77")
    a("v_add_f32 v83, v78, v79")
    a("v_add_f32 v82, v82, v83")
    a("v_mov_b32 v83, v82")
    a("s_nop 1")
    a("v_permlane16_swap_b32 v82, v83")
    a("s_nop 1")
    a("v_add_f32 v82, v82, v83")
    a("v_rcp_f32 v82, v82")
    a("s_nop 0")
    a("v_mul_f32 v82, v82, v137")
    for t in range(4):
        a("v_mul_f32 v%d, v%d, v82" % (Z + t, Z + t))
    a("v_cvt_pk_bf16_f32 v80, v76, v77")
    a("v_cvt_pk_bf16_f32 v81, v78, v79")
    a("s_waitcnt lgkmcnt(0)")
    a("s_nop 0")
    cm("out^T = vp^T . p^T, packed to bf16, turned row-major through the tile's LDS space")
    for T in range(12):
        a("v_mfma_f32_16x16x16_bf16 v[%d:%d], v[%d:%d], v[80:81], 0" % (84 + 4 * T, 87 + 4 * T, 28 + 2 * T, 29 + 2 * T))
    for U in range(6):
        da, db = 84 + 8 * U, 88 + 8 * U
        if U == 0:
            a("s_nop 1")
        a("v_cvt_pk_bf16_f32 v%d, v%d, v%d" % (da, da, da + 1))
        a("v_cvt_pk_bf16_f32 v%d, v%d, v%d" % (da + 1, da + 2, da + 3))
        a("v_cvt_pk_bf16_f32 v%d, v%d, v%d" % (da + 2, db, db + 1))
        a("v_cvt_pk_bf16_f32 v%d, v%d, v%d" % (da + 3, db + 2, db + 3))
        a("ds_write_b128 v%d, v[%d:%d] offset:%d" % (132 + (U & 1), da, da + 3, (U >> 1) * 128))
    a("s_waitcnt lgkmcnt(0)")
    lab = a.newlabel("Lqi")
    a("s_cmp_lg_u32 s55, 0")
    a("s_cbranch_scc1 %s" % lab)
    lds_poll(F_QISS, 8, "I")
    a.label(lab)
    for n in range(6):
        a("v_add_u32 v%d, s56, v%d" % (84 + n, 140 + n))
    for n in range(6):
        a("ds_read_b128 v[%d:%d], v%d" % (52 + 4 * n, 55 + 4 * n, 84 + n))
    for n in range(6):
        a("s_waitcnt lgkmcnt(%d)" % (5 - n))
        so, imm = ("s56", n * 1024) if n < 4 else ("s58", (n - 4) * 1024)
        a("buffer_store_dwordx4 v[%d:%d], v136, s[36:39], %s offen offset:%d %s" % (52 + 4 * n, 55 + 4 * n, so, imm, st))
    a("s_add_u32 s56, s56, 6144")
    a("v_add_u32 v132, 6144, v132")
    a("v_add_u32 v133, 6144, v133")
    a("s_add_u32 s55, s55, 1")
    a("s_cmp_lt_u32 s55, 2")
    a("s_cbranch_scc1 L_tile")
    stamp(5)
    a.label("L_fin")
    if o["amp"]:
        a("s_waitcnt vmcnt(0)")
        a("s_memrealtime s[84:85]")
        a("s_waitcnt lgkmcnt(0)")
        a("s_sub_u32 s86, %s, s94" % ("s84" if o["ampat"] is None else "s96"))
        a("s_mul_i32 s86, s86, %d" % o["amp"])
        a("s_add_u32 s86, s86, s84")
        a.label("L_amp")
        a("s_sleep 8")
        a("s_memrealtime s[84:85]")
        a("s_waitcnt lgkmcnt(0)")
        a("s_sub_u32 s87, s86, s84")
        a("s_cmp_gt_i32 s87, 0")
        a("s_cbranch_scc1 L_amp")
    if stamps:
        a("s_waitcnt vmcnt(0)")
        stamp(6)
        a("s_getreg_b32 s78, hwreg(HW_REG_XCC_ID)")
        a("s_cmp_lt_u32 s3, %d" % NKV)
        a("s_cselect_b32 s79, s79, 0")
        a("s_lshl_b32 s79, s79, 8")
        a("s_or_b32 s78, s78, s79")
        a("s_waitcnt lgkmcnt(0)")
        a("s_lshl_b32 s58, s2, 9")
        a("s_lshl_b32 s59, s3, 5")
        a("s_add_u32 s58, s58, s59")
        a("s_add_u32 s58, s58, %d" % STAMP_OFF)
        a("s_mov_b32 s40, s18"); a("s_mov_b32 s41, s19"); a("s_mov_b32 s42, 0x1000000"); a("s_mov_b32 s43, 0x20000")
        for i in range(7):
            a("v_mov_b32 v%d, s%d" % (4 + i, 64 + 2 * i))
        a("v_mov_b32 v11, s78")
        a("s_mov_b64 exec, 1")
        a("buffer_store_dwordx4 v[4:7], off, s[40:43], s58")
        a("buffer_store_dwordx4 v[8:11], off, s[40:43], s58 offset:16")
    a.label("L_end")
    a("s_endpgm")
    nsg = 102 if (o["amp"] or stamps) else 94
    return wrap(["; @launch grid=(256,1,1) block=(%d,1,1) lds=%d" % (NW * 64, LDS_BYTES)], [(KN, a.text(), NVGPR, nsg)])

def parse_kv(args):
    kw = {}
    for x in args:
        k, v = x.split("=", 1)
        if v in ("True", "False", "None"):
            v = eval(v)
        else:
            try: v = int(v)
            except ValueError: pass
        kw[k] = v
    return kw

if __name__ == "__main__":
    open(sys.argv[1], "w").write(gen(**parse_kv(sys.argv[2:])))
```

```python
import sys
from asmlib import *

L_Q = 0
L_E = 98304
L_KP = L_E + 8192
KP_STRIDE = 400
L_VP = L_KP + 8 * KP_STRIDE
L_FLAG = L_VP + 3072
LDS_BYTES = L_FLAG + 64
F_TRIG, F_READY, F_MODE, F_E, F_QISS, F_GO, F_UNP = 0, 4, 8, 12, 16, 20, 24
STAMP_OFF = 8 << 20
SPIN_LDS = 1 << 22
SPIN_GLB = 1 << 16
NKV, NQ = 3, 8
NW = NKV + NQ
RING, BR, ACC, AOP = 12, 76, 108, 140
H0, H1 = 148, 149
NVGPR = 152
D = 8

DEF = dict(ld="nt", st="nt", cld="nt", stamps=None, qdepth=3, fast=True, xmap="xcd", round_emul=True,
           auxdelay=0, goat=7, auxld="sc1", auxsleep=6, auxpolls=6, pipe=0, stpace=None, qprio=None, unpace=False, cdelay=0, amp=0, ampat=None, comments=True)

def gen(**kw):
    o = dict(DEF); o.update(kw)
    ld, st, stamps, qdepth, fast = o["ld"], o["st"], o["stamps"], o["qdepth"], o["fast"]
    a = Asm()
    def cm(t):
        if o["comments"]:
            a.raw("    ; " + t)
    def stamp(i):
        if stamps:
            a("s_memrealtime s[%d:%d]" % (64 + 2 * i, 65 + 2 * i))
    def amppt(name):
        if o["amp"] and o["ampat"] == name:
            a("s_memrealtime s[96:97]")
    def lds_poll(off, val, name, sleep=1):
        lab = a.newlabel("Lp" + name); done = a.newlabel("Ld" + name)
        a("s_mov_b32 s62, %d" % SPIN_LDS)
        a("v_mov_b32 v%d, %d" % (H0, L_FLAG + off))
        a.label(lab)
        a("ds_read_b32 v%d, v%d" % (H1, H0))
        a("s_waitcnt lgkmcnt(0)")
        a("v_readfirstlane_b32 s63, v%d" % H1)
        a("s_sub_u32 s62, s62, 1")
        a("s_cbranch_scc1 %s" % done)
        a("s_cmp_ge_u32 s63, %s" % val)
        a("s_cbranch_scc1 %s" % done)
        a("s_sleep %d" % sleep)
        a("s_branch %s" % lab)
        a.label(done)
    def lds_signal(off, val=1):
        a("v_mov_b32 v%d, %d" % (H0, L_FLAG + off))
        a("v_mov_b32 v%d, %d" % (H1, val))
        a("s_mov_b64 exec, 1")
        a("ds_add_u32 v%d, v%d" % (H0, H1))
        a("s_mov_b64 exec, -1")
    def kbase(vdst, sks):
        a("s_add_u32 s93, %s, s92" % sks)
        a("s_and_b32 s93, s93, 7")
        a("s_mul_i32 s93, s93, 24576")
        a("s_cmp_ge_u32 %s, 8" % sks)
        a("s_cselect_b32 s93, 0x1000000, s93")
        a("v_add_u32 v%d, s93, v5" % vdst)

    stamp(0)
    if o["amp"]:
        a("s_memrealtime s[94:95]")
        a("s_memrealtime s[96:97]")
    cm("workgroups past the 256 that carry data leave at once")
    a("s_cmp_ge_u32 s2, 256")
    a("s_cbranch_scc1 L_end")
    a("s_load_dwordx16 s[4:19], s[0:1], 0")
    a("v_lshrrev_b32 v1, 6, v0")
    a("v_and_b32 v0, 63, v0")
    a("v_readfirstlane_b32 s3, v1")
    cm("head = (wg>>6)*8 + (wg&7), j = (wg>>3)&7 : the 8 workgroups of a head normally share an XCD (speed only)")
    if o["xmap"] == "xcd":
        a("s_lshr_b32 s20, s2, 6")
        a("s_lshl_b32 s20, s20, 3")
        a("s_and_b32 s21, s2, 7")
        a("s_add_u32 s20, s20, s21")
        a("s_lshr_b32 s21, s2, 3")
        a("s_and_b32 s21, s21, 7")
    else:
        a("s_lshr_b32 s20, s2, 3")
        a("s_and_b32 s21, s2, 7")
    cm("phase 1 role: mat = j&1 (K or V), quarter = j>>1 (512 rows); phase 2 role: query rows [256j, 256j+256)")
    a("s_and_b32 s22, s21, 1")
    a("s_lshr_b32 s23, s21, 1")
    a("v_and_b32 v3, 7, v0")
    a("v_lshrrev_b32 v4, 3, v0")
    a("v_mul_u32_u24 v1, 3072, v4")
    a("v_lshl_add_u32 v1, v3, 4, v1")
    a("s_lshl_b32 s52, s3, 7")
    a("v_add_u32 v5, s52, v1")
    a("s_lshr_b32 s92, s2, 3")
    a("s_add_u32 s92, s92, s2")
    a("s_and_b32 s92, s92, 7")
    a("s_mul_i32 s93, s92, 24576")
    a("v_add_u32 v6, s93, v5")
    a("s_mul_i32 s58, s20, 786432")
    a("s_mul_i32 s59, s23, 196608")
    a("s_add_u32 s59, s59, s58")
    a("s_mov_b32 s26, 196608")
    a("s_mov_b32 s27, 0x20000")
    a("s_cmp_eq_u32 s22, 0")
    a("s_waitcnt lgkmcnt(0)")
    a("s_cselect_b32 s24, s6, s8")
    a("s_cselect_b32 s25, s7, s9")
    a("s_cselect_b32 s28, s10, s12")
    a("s_cselect_b32 s29, s11, s13")
    a("s_add_u32 s24, s24, s59")
    a("s_addc_u32 s25, s25, 0")
    a("s_cmp_ge_u32 s3, %d" % NKV)
    a("s_cbranch_scc1 L_notkv0")
    def xload(slot, vb, j):
        r = RING + 4 * slot
        a("buffer_load_dwordx4 v[%d:%d], v%d, s[24:27], 0 offen offset:%d %s" % (r, r + 3, vb, j * 384, ld))
    cm("K/V waves: first 8 row loads, then the projection rows of the first two 64-row steps")
    for n in range(D):
        xload(n, 6, n)
    a("s_mov_b32 s30, 32768")
    a("s_mov_b32 s31, 0x20000")
    a("v_lshlrev_b32 v2, 12, v3")
    a("v_lshl_add_u32 v2, v4, 4, v2")
    a("s_lshl_b32 s55, s23, 10")
    for h in range(2):
        a("s_add_u32 s93, s92, %d" % h)
        a("s_and_b32 s93, s93, 7")
        a("s_lshl_b32 s93, s93, 7")
        a("s_add_u32 s93, s93, s55")
        a("buffer_load_dwordx4 v[%d:%d], v2, s[28:31], s93 offen" % (AOP + 4 * h, AOP + 4 * h + 3))
    amppt("issued0")
    a.label("L_notkv0")
    a("s_mov_b32 s30, 32768")
    a("s_mov_b32 s31, 0x20000")
    a("s_mul_i32 s59, s21, 98304")
    a("s_add_u32 s58, s58, s59")
    a("s_add_u32 s32, s4, s58")
    a("s_addc_u32 s33, s5, 0")
    a("s_mov_b32 s34, 98304")
    a("s_mov_b32 s35, 0x20000")
    a("s_add_u32 s36, s14, s58")
    a("s_addc_u32 s37, s15, 0")
    a("s_mov_b32 s38, 98304")
    a("s_mov_b32 s39, 0x20000")
    a("s_mul_i32 s58, s20, 49152")
    a("s_add_u32 s40, s18, s58")
    a("s_addc_u32 s41, s19, 0")
    a("s_mov_b32 s42, 49152")
    a("s_mov_b32 s43, 0x20000")
    a("s_mov_b32 s44, s16")
    a("s_mov_b32 s45, s17")
    a("s_mov_b32 s46, 256")
    a("s_mov_b32 s47, 0x20000")
    a("s_mov_b32 s48, 0x05040100")
    a("s_mov_b32 s49, 0x07060302")
    a("s_mov_b32 s50, 0x3d93cd3a")
    a("s_mov_b32 s51, 0x3fb8aa3b")
    a("s_lshl_b32 s53, s22, 2")
    a("s_add_u32 s53, s53, s23")
    a("s_mul_i32 s53, s53, 6144")
    a("s_cmp_lg_u32 s3, %d" % (NW - 1))
    a("s_cbranch_scc1 L_noinit")
    a("v_lshlrev_b32 v110, 2, v0")
    a("v_add_u32 v110, %d, v110" % L_FLAG)
    a("v_mov_b32 v111, 0")
    a("s_mov_b64 exec, 0xffff")
    a("ds_write_b32 v110, v111")
    a("s_mov_b64 exec, -1")
    a("s_waitcnt lgkmcnt(0)")
    a.label("L_noinit")
    a("s_cmp_ge_u32 s3, %d" % NKV)
    a("s_cbranch_scc1 L_qwave")

    cm("---- K/V wave tau = wave id: 128-byte column third tau of 512 rows, 8 steps of 64 rows ----")
    for r in range(ACC, ACC + 32):
        a("v_mov_b32 v%d, 0" % r)
    a("v_lshlrev_b32 v11, 4, v0")
    a("v_add_u32 v11, %d, v11" % L_E)
    a("s_mov_b32 s54, 0")
    a("s_setprio 2")
    a("s_barrier")
    a.label("L_kvloop")
    qs = [1, 2]
    a("s_lshl_b32 s55, s54, 1")
    for k, q in enumerate(qs):
        a("s_add_u32 s56, s55, %d" % q)
        kbase(6 + k, "s56")
    for i in range(8):
        a("s_waitcnt vmcnt(%d)" % (D - 2))
        for u in range(2):
            n = 2 * i + u + D
            xload(n % 16, 6 + qs.index(n // 8), n % 8)
        if i >= 4:
            lab = a.newlabel("Lnt")
            a("s_cmp_lg_u32 s54, 3")
            a("s_cbranch_scc1 %s" % lab)
            lds_signal(F_TRIG)
            a.label(lab)
        jj = i % 4
        if jj == 2:
            h = i // 4
            labs = a.newlabel("Lsk")
            a("s_cmp_eq_u32 s54, 0")
            a("s_cbranch_scc1 %s" % labs)
            if h == 0:
                lab = a.newlabel("Lne")
                a("s_cmp_lg_u32 s54, 1")
                a("s_cbranch_scc1 %s" % lab)
                lds_poll(F_E, 1, "E")
                a.label(lab)
            a("s_add_u32 s93, s55, s92")
            if h:
                a("s_add_u32 s93, s93, 1")
            a("s_and_b32 s93, s93, 7")
            a("s_lshl_b32 s93, s93, 10")
            a("v_add_u32 v10, s93, v11")
            a("ds_read_b128 v[%d:%d], v10" % (AOP + 4 * h, AOP + 4 * h + 3))
            a.label(labs)
        r0 = RING + 8 * i; r1 = r0 + 4
        for m in range(4):
            a("v_perm_b32 v%d, v%d, v%d, s48" % (BR + 4 * (2 * m) + jj, r1 + m, r0 + m))
            a("v_perm_b32 v%d, v%d, v%d, s49" % (BR + 4 * (2 * m + 1) + jj, r1 + m, r0 + m))
        if jj == 3:
            h = i // 4
            a("s_waitcnt lgkmcnt(0)")
            a("s_nop 0")
            for e in range(8):
                a("v_mfma_f32_16x16x32_bf16 v[%d:%d], v[%d:%d], v[%d:%d], v[%d:%d]" % (ACC + 4 * e, ACC + 3 + 4 * e, AOP + 4 * h, AOP + 4 * h + 3, BR + 4 * e, BR + 3 + 4 * e, ACC + 4 * e, ACC + 3 + 4 * e))
        if o["goat"] is not None and i == o["goat"]:
            lab = a.newlabel("Lgo")
            a("s_cmp_lg_u32 s54, 0")
            a("s_cbranch_scc1 %s" % lab)
            lds_signal(F_GO)
            a.label(lab)
    a("s_add_u32 s54, s54, 1")
    a("s_cmp_lt_u32 s54, 4")
    a("s_cbranch_scc1 L_kvloop")
    stamp(1)
    amppt("kvend")
    cm("---- add the two row-parity halves, publish the partial (never the word 0xffffffff, which marks 'not yet written') ----")
    a("s_mov_b32 s52, s3")
    a("v_lshrrev_b32 v9, 5, v0")
    a("v_lshlrev_b32 v9, 10, v9")
    a("v_bfe_u32 v8, v0, 4, 1")
    a("v_lshl_add_u32 v9, v8, 7, v9")
    a("v_and_b32 v8, 7, v0")
    a("v_lshl_add_u32 v9, v8, 4, v9")
    a("s_lshl_b32 s58, s52, 11")
    a("v_add_u32 v9, s58, v9")
    a("v_lshlrev_b32 v3, 4, v0")
    a("v_add_u32 v3, s58, v3")
    a("v_mov_b32 v%d, %d" % (H0, L_FLAG))
    a("ds_read_b32 v%d, v%d offset:%d" % (H1, H0, F_MODE))
    for e in range(4):
        for t in range(4):
            a("v_permlane32_swap_b32 v%d, v%d" % (ACC + 4 * e + t, ACC + 16 + 4 * e + t))
    for e in range(4):
        for t in range(4):
            x = ACC + 4 * e + t; y = ACC + 16 + 4 * e + t
            a("v_add_f32_dpp v%d, v%d, v%d row_ror:8 row_mask:0xf bank_mask:0xf" % (x, y, x))
    for e in range(4):
        for t in range(4):
            x = ACC + 4 * e + t
            a("v_min_u32 v%d, -2, v%d" % (x, x))
    a("s_waitcnt lgkmcnt(0)")
    a("v_readfirstlane_b32 s63, v%d" % H1)
    a("s_cmp_lg_u32 s63, 0")
    a("s_cbranch_scc1 L_modeok")
    lds_poll(F_MODE, 1, "M")
    a.label("L_modeok")
    a("s_mov_b32 s61, s63")
    a("s_mov_b32 exec_lo, 0x00ff00ff")
    a("s_mov_b32 exec_hi, 0x00ff00ff")
    a("s_cmp_eq_u32 s61, 2")
    a("s_cbranch_scc1 L_pubfast")
    for e in range(4):
        a("buffer_store_dwordx4 v[%d:%d], v9, s[40:43], s53 offen offset:%d sc1" % (ACC + 4 * e, ACC + 3 + 4 * e, e * 256))
    a("s_branch L_pubdone")
    a.label("L_pubfast")
    for e in range(4):
        a("buffer_store_dwordx4 v[%d:%d], v9, s[40:43], s53 offen offset:%d" % (ACC + 4 * e, ACC + 3 + 4 * e, e * 256))
    a.label("L_pubdone")
    a("s_mov_b64 exec, -1")
    stamp(2)
    cm("---- collect the 8 partials of this column third; a producer is taken once none of its words is 0xffffffff ----")
    C = RING
    a("s_mov_b32 s57, 0xff")
    a("s_mov_b32 s62, %d" % SPIN_GLB)
    if o["cdelay"]:
        a("s_sleep %d" % o["cdelay"])
    def issue_pending(fl):
        for p in range(8):
            lab = a.newlabel("Lc")
            a("s_bitcmp1_b32 s57, %d" % p)
            a("s_cbranch_scc0 %s" % lab)
            a("s_mov_b32 s58, %d" % (p * 6144))
            for i in range(2):
                r = C + 4 * (p * 2 + i)
                a("buffer_load_dwordx4 v[%d:%d], v3, s[40:43], s58 offen offset:%d %s" % (r, r + 3, i * 1024, fl))
            a.label(lab)
    a.label("L_collect")
    a("s_cmp_eq_u32 s61, 2")
    a("s_cbranch_scc0 L_colslow")
    issue_pending(o["cld"])
    a("s_branch L_colwait")
    a.label("L_colslow")
    issue_pending("sc1")
    a.label("L_colwait")
    if o["unpace"]:
        lab = a.newlabel("Lun")
        a("s_cmp_eq_u32 s62, %d" % (SPIN_GLB - 1))
        a("s_cbranch_scc0 %s" % lab)
        lds_signal(F_UNP)
        a.label(lab)
    a("v_bfe_u32 v6, v0, 3, 1")
    a("v_and_b32 v7, 7, v0")
    a("v_lshrrev_b32 v2, 4, v0")
    a("v_mul_u32_u24 v140, %d, v6" % (4 * KP_STRIDE))
    a("v_lshl_add_u32 v140, v7, 4, v140")
    a("v_lshl_add_u32 v140, v2, 1, v140")
    a("s_lshl_b32 s58, s52, 7")
    a("s_add_u32 s58, s58, %d" % L_KP)
    a("v_add_u32 v140, s58, v140")
    a("v_lshl_add_u32 v141, v7, 3, v2")
    a("v_lshlrev_b32 v141, 4, v141")
    a("v_lshl_add_u32 v141, v6, 3, v141")
    a("s_lshl_b32 s58, s52, 10")
    a("s_add_u32 s58, s58, %d" % L_VP)
    a("v_add_u32 v141, s58, v141")
    if o["pipe"]:
        a("s_cmp_eq_u32 s62, %d" % SPIN_GLB)
        a("s_cbranch_scc1 L_colw0")
        a("s_cmp_eq_u32 s61, 2")
        a("s_cbranch_scc0 L_colw0")
        a("s_sleep %d" % o["pipe"])
        a("s_branch L_colchk")
        a.label("L_colw0")
    a("s_waitcnt vmcnt(0)")
    a.label("L_colchk")
    if stamps:
        lab = a.newlabel("Lfa")
        a("s_cmp_eq_u32 s62, %d" % SPIN_GLB)
        a("s_cbranch_scc0 %s" % lab)
        stamp(7)
        a.label(lab)
    for p in range(8):
        lab = a.newlabel("Lk")
        r = C + 8 * p
        a("s_bitcmp1_b32 s57, %d" % p)
        a("s_cbranch_scc0 %s" % lab)
        a("v_max3_u32 v8, v%d, v%d, v%d" % (r, r + 1, r + 2))
        a("v_max3_u32 v8, v8, v%d, v%d" % (r + 3, r + 4))
        a("v_max3_u32 v8, v8, v%d, v%d" % (r + 5, r + 6))
        a("v_max_u32 v8, v8, v%d" % (r + 7))
        a("v_cmp_eq_u32 vcc, -1, v8")
        a("s_cbranch_vccnz %s" % lab)
        a("s_bitset0_b32 s57, %d" % p)
        a.label(lab)
    a("s_cmp_eq_u32 s57, 0")
    a("s_cbranch_scc1 L_collected0")
    a("s_sub_u32 s62, s62, 1")
    a("s_cbranch_scc0 L_collect")
    a.label("L_collected0")
    if o["unpace"]:
        a("s_cmp_eq_u32 s62, %d" % SPIN_GLB)
        a("s_cbranch_scc0 L_collected")
        lds_signal(F_UNP)
    a.label("L_collected")
    stamp(3)
    S = BR
    for m in range(2):
        for i in range(2):
            for t in range(0, 4, 2):
                q = [C + 4 * (2 * (4 * m + k) + i) + t for k in range(4)]
                d = S + 8 * m + 4 * i + t
                a("v_pk_add_f32 v[%d:%d], v[%d:%d], v[%d:%d]" % (d, d + 1, q[0], q[0] + 1, q[1], q[1] + 1))
                a("v_pk_add_f32 v[%d:%d], v[%d:%d], v[%d:%d]" % (d + 16, d + 17, q[2], q[2] + 1, q[3], q[3] + 1))
    for m in range(2):
        for i in range(2):
            for t in range(0, 4, 2):
                d = S + 8 * m + 4 * i + t
                a("v_pk_add_f32 v[%d:%d], v[%d:%d], v[%d:%d]" % (d, d + 1, d, d + 1, d + 16, d + 17))
    P = ACC + 16
    for i in range(2):
        b = S + 4 * i
        a("v_cvt_pk_bf16_f32 v%d, v%d, v%d" % (P + 2 * i, b, b + 1))
        a("v_cvt_pk_bf16_f32 v%d, v%d, v%d" % (P + 1 + 2 * i, b + 2, b + 3))
    for i in range(2):
        a("ds_write_b16 v140, v%d offset:%d" % (P + 2 * i, 0 * KP_STRIDE + 8 * i))
        a("ds_write_b16_d16_hi v140, v%d offset:%d" % (P + 2 * i, 1 * KP_STRIDE + 8 * i))
        a("ds_write_b16 v140, v%d offset:%d" % (P + 1 + 2 * i, 2 * KP_STRIDE + 8 * i))
        a("ds_write_b16_d16_hi v140, v%d offset:%d" % (P + 1 + 2 * i, 3 * KP_STRIDE + 8 * i))
    for i in range(2):
        b = S + 8 + 4 * i
        a("v_cvt_pk_bf16_f32 v%d, v%d, v%d" % (P + 4 + 2 * i, b, b + 1))
        a("v_cvt_pk_bf16_f32 v%d, v%d, v%d" % (P + 5 + 2 * i, b + 2, b + 3))
    for i in range(2):
        a("ds_write_b64 v141, v[%d:%d] offset:%d" % (P + 4 + 2 * i, P + 5 + 2 * i, 64 * i))
    a("s_waitcnt lgkmcnt(0)")
    lds_signal(F_READY)
    amppt("ready")
    stamp(4)
    if stamps:
        a("s_waitcnt lgkmcnt(0)")
        a("s_mov_b32 s74, s78")
        a("s_sub_u32 s79, %d, s62" % SPIN_GLB)
    a("s_branch L_fin")

    a.label("L_qwave")
    a("s_barrier")
    cm("LDS-DMA lane offsets: 16-byte chunks are XOR-swizzled inside each 128-byte line (conflict-free fragment reads)")
    for n in range(6):
        a("v_add_u32 v110, %d, v0" % (64 * n))
        a("v_mul_u32_u24 v111, 2731, v110")
        a("v_lshrrev_b32 v111, 17, v111")
        a("v_and_b32 v111, 7, v111")
        a("v_lshlrev_b32 v111, 4, v111")
        a("v_lshlrev_b32 v110, 4, v110")
        a("v_xor_b32 v%d, v110, v111" % (140 + n))
    a("s_sub_u32 s55, s3, %d" % NKV)
    a("s_mul_i32 s56, s55, 12288")
    a("s_cmp_eq_u32 s3, %d" % (NKV + 0))
    a("s_cbranch_scc1 L_aux")
    a("s_cmp_eq_u32 s3, %d" % (NKV + 1))
    a("s_cbranch_scc0 L_qmain")
    cm("stage the projection rows of this workgroup's 512 K/V rows in LDS, in MFMA A-operand order")
    a("v_and_b32 v3, 7, v0")
    a("v_lshrrev_b32 v4, 3, v0")
    a("v_lshlrev_b32 v2, 12, v3")
    a("v_lshl_add_u32 v2, v4, 4, v2")
    a("s_lshl_b32 s58, s23, 10")
    for k in range(8):
        a("s_mov_b32 m0, %d" % (L_E + k * 1024))
        a("s_nop 0")
        a("buffer_load_dwordx4 v2, s[28:31], s58 offen lds")
        if k < 7:
            a("s_add_u32 s58, s58, 128")
    a("s_waitcnt vmcnt(0)")
    lds_signal(F_E)
    a("s_branch L_qmain")

    a.label("L_aux")
    cm("mark the own partial slot 'not yet written', then find out how the slot can be handed to the other 7 workgroups")
    if o["goat"] is not None:
        cm("(starts once the K/V stream is flowing, so that these stores do not sit in front of the first cold loads)")
        lds_poll(F_GO, 1, "G", sleep=4)
    for _ in range(o["auxdelay"] // 127):
        a("s_sleep 127")
    if o["auxdelay"] % 127:
        a("s_sleep %d" % (o["auxdelay"] % 127))
    a("v_lshlrev_b32 v1, 4, v0")
    for r in range(12, 16):
        a("v_mov_b32 v%d, -1" % r)
    def clear(fl):
        a("s_mov_b32 s58, s53")
        for n in range(6):
            if n == 4:
                a("s_add_u32 s58, s58, 4096")
            a("buffer_store_dwordx4 v[12:15], v1, s[40:43], s58 offen offset:%d %s" % ((n % 4) * 1024, fl))
        a("s_waitcnt vmcnt(0)")
    clear("")
    a("s_getreg_b32 s57, hwreg(HW_REG_XCC_ID)")
    a("s_and_b32 s57, s57, 7")
    a("s_or_b32 s57, s57, 0x80")
    a("v_mov_b32 v2, s57")
    a("s_lshl_b32 s59, s20, 3")
    a("s_add_u32 s58, s59, s21")
    a("s_mul_i32 s57, s57, 0x01010101")
    a("s_mov_b64 exec, 1")
    a("buffer_store_byte v2, off, s[44:47], s58")
    a("s_mov_b32 s62, %d" % o["auxpolls"])
    a.label("L_auxpoll")
    a("s_sleep %d" % o["auxsleep"])
    a("buffer_load_dwordx2 v[4:5], off, s[44:47], s59 %s" % o["auxld"])
    a("s_waitcnt vmcnt(0)")
    for k in range(2):
        a("v_and_b32 v%d, 0xbfbfbfbf, v%d" % (4 + k, 4 + k))
        a("v_xor_b32 v%d, s57, v%d" % (4 + k, 4 + k))
    a("v_or_b32 v4, v4, v5")
    a("s_nop 0")
    a("v_readfirstlane_b32 s60, v4")
    a("s_cmp_eq_u32 s60, 0")
    a("s_cbranch_scc1 L_auxfast")
    a("s_sub_u32 s62, s62, 1")
    a("s_cbranch_scc0 L_auxpoll")
    cm("no proof that all 8 workgroups run on this XCD: clear again write-through and wait for the others at device scope")
    a.label("L_auxslow")
    a("s_mov_b64 exec, -1")
    clear("sc1")
    a("s_add_u32 s58, s59, s21")
    a("s_or_b32 s60, s57, 0x40")
    a("v_mov_b32 v2, s60")
    a("s_mov_b64 exec, 1")
    a("buffer_store_byte v2, off, s[44:47], s58 sc1")
    a("s_mov_b32 s62, %d" % SPIN_GLB)
    a.label("L_slowpoll")
    a("buffer_load_dwordx2 v[4:5], off, s[44:47], s59 sc1")
    a("v_mov_b32 v8, 0")
    a("v_mov_b32 v9, 0")
    a("buffer_atomic_or_x2 v[8:9], off, s[44:47], s59 sc0 sc1")
    a("s_waitcnt vmcnt(0)")
    a("v_mov_b32 v12, 0")
    for k in range(2):
        a("v_and_b32 v13, 0xbfbfbfbf, v%d" % (4 + k))
        a("v_xor_b32 v13, s57, v13")
        a("v_and_b32 v14, 0x7f7f7f7f, v13")
        a("v_add_u32 v14, 0x7f7f7f7f, v14")
        a("v_or_b32 v14, v14, v13")
        a("v_not_b32 v14, v14")
        a("v_lshrrev_b32 v14, 1, v14")
        a("v_or_b32 v14, v14, v%d" % (8 + k))
        a("v_and_b32 v14, 0x40404040, v14")
        a("v_xor_b32 v14, 0x40404040, v14")
        a("v_or_b32 v12, v12, v14")
    a("s_nop 0")
    a("v_readfirstlane_b32 s60, v12")
    a("s_cmp_eq_u32 s60, 0")
    a("s_cbranch_scc1 L_slowok")
    a("s_sub_u32 s62, s62, 1")
    a("s_cbranch_scc1 L_slowok")
    a("s_sleep 32")
    a("s_branch L_slowpoll")
    a.label("L_slowok")
    a("s_mov_b64 exec, -1")
    lds_signal(F_MODE, 1)
    a("s_branch L_auxdone")
    a.label("L_auxfast")
    if not fast:
        a("s_branch L_auxslow")
    a("s_mov_b64 exec, -1")
    lds_signal(F_MODE, 2)
    a.label("L_auxdone")
    stamp(3)

    a.label("L_qmain")
    cm("---- Q wave: two 16-row tiles, loaded as the K/V stream drains ----")
    a("s_sub_u32 s57, s3, %d" % NKV)
    a("s_mul_i32 s57, s57, %d" % (3 * D // 2))
    a("s_lshr_b32 s57, s57, 3")
    a("s_add_u32 s57, s57, 1")
    lds_poll(F_TRIG, "s57", "T")
    stamp(1)
    def q_dma(k):
        t, n = divmod(k, 6)
        a("s_add_u32 m0, s56, %d" % (L_Q + t * 6144 + n * 1024))
        if t == 1 and n == 0:
            a("s_add_u32 s57, s56, 6144")
        else:
            a("s_nop 0")
        a("buffer_load_dwordx4 v%d, s[32:35], %s offen %s lds" % (140 + n, "s56" if t == 0 else "s57", ld))
    a("s_add_u32 s57, s56, 6144")
    flag_off, k_first = (F_UNP, qdepth - 1) if o["unpace"] else (F_READY, 5 + qdepth)
    for k in range(12):
        if k >= qdepth:
            a("s_waitcnt vmcnt(%d)" % (qdepth - 1))
        q_dma(k)
        if k >= k_first and k < 11:
            a("ds_read_b32 v%d, v%d offset:%d" % (H1, H0, flag_off - F_TRIG))
            a("s_waitcnt lgkmcnt(0)")
            a("v_readfirstlane_b32 s63, v%d" % H1)
            a("s_cmp_ge_u32 s63, 3")
            a("s_cbranch_scc1 L_rest%d" % (k + 1))
    a("s_branch L_allissued")
    for k in range(k_first + 1, 12):
        a.label("L_rest%d" % k)
        q_dma(k)
    a.label("L_allissued")
    lds_signal(F_QISS)
    amppt("qiss")
    stamp(2)

    a("v_and_b32 v138, 15, v0")
    a("v_lshrrev_b32 v139, 4, v0")
    a("v_lshrrev_b32 v132, 1, v138")
    a("v_xor_b32 v132, v132, v139")
    a("v_lshlrev_b32 v132, 4, v132")
    a("v_mul_u32_u24 v133, 384, v138")
    a("v_add_u32 v132, v132, v133")
    a("v_add_u32 v132, s56, v132")
    a("v_xor_b32 v133, 64, v132")
    a("v_and_b32 v134, 7, v0")
    a("v_mul_u32_u24 v134, %d, v134" % KP_STRIDE)
    a("v_lshl_add_u32 v134, v139, 4, v134")
    a("v_add_u32 v134, %d, v134" % L_KP)
    a("v_lshrrev_b32 v146, 2, v138")
    a("v_and_b32 v147, 3, v138")
    a("v_lshl_add_u32 v135, v146, 3, v147")
    a("v_lshlrev_b32 v135, 4, v135")
    a("v_and_b32 v147, 1, v139")
    a("v_lshl_add_u32 v135, v147, 3, v135")
    a("v_add_u32 v135, %d, v135" % L_VP)
    a("v_lshlrev_b32 v136, 4, v0")
    a("v_cmp_gt_u32 vcc, 32, v0")
    a("v_mov_b32 v137, 0")
    a("s_nop 0")
    a("v_cndmask_b32_e64 v137, v137, 1.0, vcc")
    a("s_waitcnt vmcnt(6)")
    for m in range(6):
        a("ds_read_b128 v[%d:%d], v%d offset:%d" % (52 + 4 * m, 55 + 4 * m, 132 + (m & 1), (m >> 1) * 128))
    lds_poll(F_READY, 3, "R")
    if o["qprio"] is not None:
        lab = a.newlabel("Lqp")
        a("s_cmp_ge_u32 s3, %d" % (NKV + 4))
        a("s_cbranch_scc0 %s" % lab)
        a("s_setprio %d" % o["qprio"])
        a.label(lab)
    stamp(4)
    for m in range(6):
        a("ds_read_b128 v[%d:%d], v134 offset:%d" % (4 + 4 * m, 7 + 4 * m, m * 64))
    for T in range(12):
        U, b = divmod(T, 2)
        a("ds_read_b64 v[%d:%d], v135 offset:%d" % (28 + 2 * T, 29 + 2 * T, (32 * U + 4 * b) * 16))
    a("s_mov_b32 s55, 0")
    a("s_waitcnt lgkmcnt(12)")
    a("s_branch L_tile1")
    a.label("L_tile")
    a("s_waitcnt vmcnt(6)")
    for m in range(6):
        a("ds_read_b128 v[%d:%d], v%d offset:%d" % (52 + 4 * m, 55 + 4 * m, 132 + (m & 1), (m >> 1) * 128))
    a("s_waitcnt lgkmcnt(0)")
    a.label("L_tile1")
    cm("scores^T = kp . Q^T (rows r replicated twice), softmax over the 8 projected keys")
    for m in range(6):
        a("v_mfma_f32_16x16x32_bf16 v[76:79], v[%d:%d], v[%d:%d], %s" % (4 + 4 * m, 7 + 4 * m, 52 + 4 * m, 55 + 4 * m, "0" if m == 0 else "v[76:79]"))
    a("s_add_u32 s58, s56, 4096")
    a("s_nop 6")
    Z = 76
    def rnd():
        a("v_cvt_pk_bf16_f32 v80, v76, v77")
        a("v_cvt_pk_bf16_f32 v81, v78, v79")
        a("v_lshlrev_b32 v76, 16, v80")
        a("v_and_b32 v77, 0xffff0000, v80")
        a("v_lshlrev_b32 v78, 16, v81")
        a("v_and_b32 v79, 0xffff0000, v81")
    if o["round_emul"]:
        rnd()
    for t in range(4):
        a("v_mul_f32 v%d, s50, v%d" % (Z + t, Z + t))
    if o["round_emul"]:
        rnd()
    a("v_max3_f32 v82, v76, v77, v78")
    a("v_max_f32 v82, v82, v79")
    a("v_mov_b32 v83, v82")
    a("s_nop 1")
    a("v_permlane16_swap_b32 v82, v83")
    a("s_nop 1")
    a("v_max_f32 v82, v82, v83")
    a("v_mul_f32 v82, s51, v82")
    for t in range(4):
        a("v_fma_f32 v%d, v%d, s51, -v82" % (Z + t, Z + t))
    for t in range(4):
        a("v_exp_f32 v%d, v%d" % (Z + t, Z + t))
    a("s_nop 0")
    a("v_add_f32 v82, v76, v77")
    a("v_add_f32 v83, v78, v79")
    a("v_add_f32 v82, v82, v83")
    a("v_mov_b32 v83, v82")
    a("s_nop 1")
    a("v_permlane16_swap_b32 v82, v83")
    a("s_nop 1")
    a("v_add_f32 v82, v82, v83")
    a("v_rcp_f32 v82, v82")
    a("s_nop 0")
    a("v_mul_f32 v82, v82, v137")
    for t in range(4):
        a("v_mul_f32 v%d, v%d, v82" % (Z + t, Z + t))
    a("v_cvt_pk_bf16_f32 v80, v76, v77")
    a("v_cvt_pk_bf16_f32 v81, v78, v79")
    a("s_waitcnt lgkmcnt(0)")
    a("s_nop 0")
    cm("out^T = vp^T . p^T, packed to bf16, turned row-major through the tile's LDS space")
    for T in range(12):
        a("v_mfma_f32_16x16x16_bf16 v[%d:%d], v[%d:%d], v[80:81], 0" % (84 + 4 * T, 87 + 4 * T, 28 + 2 * T, 29 + 2 * T))
    for U in range(6):
        da, db = 84 + 8 * U, 88 + 8 * U
        if U == 0:
            a("s_nop 1")
        a("v_cvt_pk_bf16_f32 v%d, v%d, v%d" % (da, da, da + 1))
        a("v_cvt_pk_bf16_f32 v%d, v%d, v%d" % (da + 1, da + 2, da + 3))
        a("v_cvt_pk_bf16_f32 v%d, v%d, v%d" % (da + 2, db, db + 1))
        a("v_cvt_pk_bf16_f32 v%d, v%d, v%d" % (da + 3, db + 2, db + 3))
        a("ds_write_b128 v%d, v[%d:%d] offset:%d" % (132 + (U & 1), da, da + 3, (U >> 1) * 128))
    a("s_waitcnt lgkmcnt(0)")
    lab = a.newlabel("Lqi")
    a("s_cmp_lg_u32 s55, 0")
    a("s_cbranch_scc1 %s" % lab)
    lds_poll(F_QISS, 8, "I")
    a.label(lab)
    for n in range(6):
        a("v_add_u32 v%d, s56, v%d" % (84 + n, 140 + n))
    for n in range(6):
        a("ds_read_b128 v[%d:%d], v%d" % (52 + 4 * n, 55 + 4 * n, 84 + n))
    for n in range(6):
        a("s_waitcnt lgkmcnt(%d)" % (5 - n))
        so, imm = ("s56", n * 1024) if n < 4 else ("s58", (n - 4) * 1024)
        if o["stpace"] is not None and n >= 1:
            a("s_waitcnt vmcnt(%d)" % o["stpace"])
        a("buffer_store_dwordx4 v[%d:%d], v136, s[36:39], %s offen offset:%d %s" % (52 + 4 * n, 55 + 4 * n, so, imm, st))
    a("s_add_u32 s56, s56, 6144")
    a("v_add_u32 v132, 6144, v132")
    a("v_add_u32 v133, 6144, v133")
    a("s_add_u32 s55, s55, 1")
    a("s_cmp_lt_u32 s55, 2")
    a("s_cbranch_scc1 L_tile")
    stamp(5)
    a.label("L_fin")
    if o["amp"]:
        a("s_waitcnt vmcnt(0)")
        a("s_memrealtime s[84:85]")
        a("s_waitcnt lgkmcnt(0)")
        a("s_sub_u32 s86, %s, s94" % ("s84" if o["ampat"] is None else "s96"))
        a("s_mul_i32 s86, s86, %d" % o["amp"])
        a("s_add_u32 s86, s86, s84")
        a.label("L_amp")
        a("s_sleep 8")
        a("s_memrealtime s[84:85]")
        a("s_waitcnt lgkmcnt(0)")
        a("s_sub_u32 s87, s86, s84")
        a("s_cmp_gt_i32 s87, 0")
        a("s_cbranch_scc1 L_amp")
    if stamps:
        a("s_waitcnt vmcnt(0)")
        stamp(6)
        a("s_getreg_b32 s78, hwreg(HW_REG_XCC_ID)")
        a("s_cmp_lt_u32 s3, %d" % NKV)
        a("s_cselect_b32 s79, s79, 0")
        a("s_lshl_b32 s79, s79, 8")
        a("s_or_b32 s78, s78, s79")
        a("s_waitcnt lgkmcnt(0)")
        a("s_lshl_b32 s58, s2, 9")
        a("s_lshl_b32 s59, s3, 5")
        a("s_add_u32 s58, s58, s59")
        a("s_add_u32 s58, s58, %d" % STAMP_OFF)
        a("s_mov_b32 s40, s18"); a("s_mov_b32 s41, s19"); a("s_mov_b32 s42, 0x1000000"); a("s_mov_b32 s43, 0x20000")
        for i in range(7):
            a("v_mov_b32 v%d, s%d" % (4 + i, 64 + 2 * i))
        a("v_mov_b32 v11, s78")
        a("s_mov_b64 exec, 1")
        a("buffer_store_dwordx4 v[4:7], off, s[40:43], s58")
        a("buffer_store_dwordx4 v[8:11], off, s[40:43], s58 offset:16")
    a.label("L_end")
    a("s_endpgm")
    nsg = 102 if (o["amp"] or stamps) else 94
    return wrap(["; @launch grid=(256,1,1) block=(%d,1,1) lds=%d" % (NW * 64, LDS_BYTES)], [(KN, a.text(), NVGPR, nsg)])

def parse_kv(args):
    kw = {}
    for x in args:
        k, v = x.split("=", 1)
        if v in ("True", "False", "None"):
            v = eval(v)
        else:
            try: v = int(v)
            except ValueError: pass
        kw[k] = v
    return kw

if __name__ == "__main__":
    open(sys.argv[1], "w").write(gen(**parse_kv(sys.argv[2:])))
```

```python
import sys
from asmlib import *

L_Q = 0
L_E = 98304
L_KP = L_E + 8192
KP_STRIDE = 400
L_VP = L_KP + 8 * KP_STRIDE
L_FLAG = L_VP + 3072
LDS_BYTES = L_FLAG + 64
F_TRIG, F_READY, F_MODE, F_E, F_QISS, F_GO, F_UNP = 0, 4, 8, 12, 16, 20, 24
STAMP_OFF = 8 << 20
SPIN_LDS = 1 << 22
SPIN_GLB = 1 << 16
NKV, NQ = 3, 8
NW = NKV + NQ
RING, BR, ACC, AOP = 12, 76, 108, 140
H0, H1 = 148, 149
NVGPR = 152
D = 8

DEF = dict(ld="nt", st="nt", cld="nt", stamps=None, qdepth=3, fast=True, xmap="xcd", round_emul=True,
           auxdelay=0, goat=7, auxld="sc1", auxsleep=6, auxpolls=6, pipe=0, pipen=1, stpace=None, qprio=None, unpace=False, cdelay=0, qland=False, qiss=True, early=True, earlyall=False, amp=0, ampat=None, comments=True)

def gen(**kw):
    o = dict(DEF); o.update(kw)
    ld, st, stamps, qdepth, fast = o["ld"], o["st"], o["stamps"], o["qdepth"], o["fast"]
    a = Asm()
    def cm(t):
        if o["comments"]:
            a.raw("    ; " + t)
    def stamp(i):
        if stamps:
            a("s_memrealtime s[%d:%d]" % (64 + 2 * i, 65 + 2 * i))
    def amppt(name):
        if o["amp"] and o["ampat"] == name:
            a("s_memrealtime s[96:97]")
    def lds_poll(off, val, name, sleep=1):
        lab = a.newlabel("Lp" + name); done = a.newlabel("Ld" + name)
        a("s_mov_b32 s62, %d" % SPIN_LDS)
        a("v_mov_b32 v%d, %d" % (H0, L_FLAG + off))
        a.label(lab)
        a("ds_read_b32 v%d, v%d" % (H1, H0))
        a("s_waitcnt lgkmcnt(0)")
        a("v_readfirstlane_b32 s63, v%d" % H1)
        a("s_sub_u32 s62, s62, 1")
        a("s_cbranch_scc1 %s" % done)
        a("s_cmp_ge_u32 s63, %s" % val)
        a("s_cbranch_scc1 %s" % done)
        a("s_sleep %d" % sleep)
        a("s_branch %s" % lab)
        a.label(done)
    def lds_signal(off, val=1):
        a("v_mov_b32 v%d, %d" % (H0, L_FLAG + off))
        a("v_mov_b32 v%d, %d" % (H1, val))
        a("s_mov_b64 exec, 1")
        a("ds_add_u32 v%d, v%d" % (H0, H1))
        a("s_mov_b64 exec, -1")
    def kbase(vdst, sks):
        a("s_add_u32 s93, %s, s92" % sks)
        a("s_and_b32 s93, s93, 7")
        a("s_mul_i32 s93, s93, 24576")
        a("s_cmp_ge_u32 %s, 8" % sks)
        a("s_cselect_b32 s93, 0x1000000, s93")
        a("v_add_u32 v%d, s93, v5" % vdst)

    stamp(0)
    if o["amp"]:
        a("s_memrealtime s[94:95]")
        a("s_memrealtime s[96:97]")
    cm("workgroups past the 256 that carry data leave at once")
    a("s_cmp_ge_u32 s2, 256")
    a("s_cbranch_scc1 L_end")
    a("s_load_dwordx16 s[4:19], s[0:1], 0")
    a("v_lshrrev_b32 v1, 6, v0")
    a("v_and_b32 v0, 63, v0")
    a("v_readfirstlane_b32 s3, v1")
    cm("head = (wg>>6)*8 + (wg&7), j = (wg>>3)&7 : the 8 workgroups of a head normally share an XCD (speed only)")
    if o["xmap"] == "xcd":
        a("s_lshr_b32 s20, s2, 6")
        a("s_lshl_b32 s20, s20, 3")
        a("s_and_b32 s21, s2, 7")
        a("s_add_u32 s20, s20, s21")
        a("s_lshr_b32 s21, s2, 3")
        a("s_and_b32 s21, s21, 7")
    else:
        a("s_lshr_b32 s20, s2, 3")
        a("s_and_b32 s21, s2, 7")
    cm("phase 1 role: mat = j&1 (K or V), quarter = j>>1 (512 rows); phase 2 role: query rows [256j, 256j+256)")
    a("s_and_b32 s22, s21, 1")
    a("s_lshr_b32 s23, s21, 1")
    a("v_and_b32 v3, 7, v0")
    a("v_lshrrev_b32 v4, 3, v0")
    a("v_mul_u32_u24 v1, 3072, v4")
    a("v_lshl_add_u32 v1, v3, 4, v1")
    a("s_lshl_b32 s52, s3, 7")
    a("v_add_u32 v5, s52, v1")
    a("s_lshr_b32 s92, s2, 3")
    a("s_add_u32 s92, s92, s2")
    a("s_and_b32 s92, s92, 7")
    a("s_mul_i32 s93, s92, 24576")
    a("v_add_u32 v6, s93, v5")
    a("s_mul_i32 s58, s20, 786432")
    a("s_mul_i32 s59, s23, 196608")
    a("s_add_u32 s59, s59, s58")
    a("s_mov_b32 s26, 196608")
    a("s_mov_b32 s27, 0x20000")
    a("s_cmp_eq_u32 s22, 0")
    a("s_waitcnt lgkmcnt(0)")
    a("s_cselect_b32 s24, s6, s8")
    a("s_cselect_b32 s25, s7, s9")
    a("s_cselect_b32 s28, s10, s12")
    a("s_cselect_b32 s29, s11, s13")
    a("s_add_u32 s24, s24, s59")
    a("s_addc_u32 s25, s25, 0")
    a("s_cmp_ge_u32 s3, %d" % NKV)
    a("s_cbranch_scc1 L_notkv0")
    def xload(slot, vb, j):
        r = RING + 4 * slot
        a("buffer_load_dwordx4 v[%d:%d], v%d, s[24:27], 0 offen offset:%d %s" % (r, r + 3, vb, j * 384, ld))
    cm("K/V waves: first 8 row loads, then the projection rows of the first two 64-row steps")
    for n in range(D):
        xload(n, 6, n)
    a("s_mov_b32 s30, 32768")
    a("s_mov_b32 s31, 0x20000")
    a("v_lshlrev_b32 v2, 12, v3")
    a("v_lshl_add_u32 v2, v4, 4, v2")
    a("s_lshl_b32 s55, s23, 10")
    for h in range(2):
        a("s_add_u32 s93, s92, %d" % h)
        a("s_and_b32 s93, s93, 7")
        a("s_lshl_b32 s93, s93, 7")
        a("s_add_u32 s93, s93, s55")
        a("buffer_load_dwordx4 v[%d:%d], v2, s[28:31], s93 offen" % (AOP + 4 * h, AOP + 4 * h + 3))
    amppt("issued0")
    a.label("L_notkv0")
    a("s_mov_b32 s30, 32768")
    a("s_mov_b32 s31, 0x20000")
    a("s_mul_i32 s59, s21, 98304")
    a("s_add_u32 s58, s58, s59")
    a("s_add_u32 s32, s4, s58")
    a("s_addc_u32 s33, s5, 0")
    a("s_mov_b32 s34, 98304")
    a("s_mov_b32 s35, 0x20000")
    a("s_add_u32 s36, s14, s58")
    a("s_addc_u32 s37, s15, 0")
    a("s_mov_b32 s38, 98304")
    a("s_mov_b32 s39, 0x20000")
    a("s_mul_i32 s58, s20, 49152")
    a("s_add_u32 s40, s18, s58")
    a("s_addc_u32 s41, s19, 0")
    a("s_mov_b32 s42, 49152")
    a("s_mov_b32 s43, 0x20000")
    a("s_mov_b32 s44, s16")
    a("s_mov_b32 s45, s17")
    a("s_mov_b32 s46, 256")
    a("s_mov_b32 s47, 0x20000")
    a("s_mov_b32 s48, 0x05040100")
    a("s_mov_b32 s49, 0x07060302")
    a("s_mov_b32 s50, 0x3d93cd3a")
    a("s_mov_b32 s51, 0x3fb8aa3b")
    a("s_lshl_b32 s53, s22, 2")
    a("s_add_u32 s53, s53, s23")
    a("s_mul_i32 s53, s53, 6144")
    a("s_cmp_lg_u32 s3, %d" % (NW - 1))
    a("s_cbranch_scc1 L_noinit")
    a("v_lshlrev_b32 v110, 2, v0")
    a("v_add_u32 v110, %d, v110" % L_FLAG)
    a("v_mov_b32 v111, 0")
    a("s_mov_b64 exec, 0xffff")
    a("ds_write_b32 v110, v111")
    a("s_mov_b64 exec, -1")
    a("s_waitcnt lgkmcnt(0)")
    a.label("L_noinit")
    a("s_cmp_ge_u32 s3, %d" % NKV)
    a("s_cbranch_scc1 L_qwave")

    cm("---- K/V wave tau = wave id: 128-byte column third tau of 512 rows, 8 steps of 64 rows ----")
    for r in range(ACC, ACC + 32):
        a("v_mov_b32 v%d, 0" % r)
    a("v_lshlrev_b32 v11, 4, v0")
    a("v_add_u32 v11, %d, v11" % L_E)
    a("s_mov_b32 s54, 0")
    a("s_setprio 2")
    a("s_barrier")
    a.label("L_kvloop")
    qs = [1, 2]
    a("s_lshl_b32 s55, s54, 1")
    for k, q in enumerate(qs):
        a("s_add_u32 s56, s55, %d" % q)
        kbase(6 + k, "s56")
    for i in range(8):
        a("s_waitcnt vmcnt(%d)" % (D - 2))
        for u in range(2):
            n = 2 * i + u + D
            xload(n % 16, 6 + qs.index(n // 8), n % 8)
        if i >= 4:
            lab = a.newlabel("Lnt")
            a("s_cmp_lg_u32 s54, 3")
            a("s_cbranch_scc1 %s" % lab)
            lds_signal(F_TRIG)
            a.label(lab)
        jj = i % 4
        if jj == 2:
            h = i // 4
            labs = a.newlabel("Lsk")
            a("s_cmp_eq_u32 s54, 0")
            a("s_cbranch_scc1 %s" % labs)
            if h == 0:
                lab = a.newlabel("Lne")
                a("s_cmp_lg_u32 s54, 1")
                a("s_cbranch_scc1 %s" % lab)
                lds_poll(F_E, 1, "E")
                a.label(lab)
            a("s_add_u32 s93, s55, s92")
            if h:
                a("s_add_u32 s93, s93, 1")
            a("s_and_b32 s93, s93, 7")
            a("s_lshl_b32 s93, s93, 10")
            a("v_add_u32 v10, s93, v11")
            a("ds_read_b128 v[%d:%d], v10" % (AOP + 4 * h, AOP + 4 * h + 3))
            a.label(labs)
        r0 = RING + 8 * i; r1 = r0 + 4
        for m in range(4):
            a("v_perm_b32 v%d, v%d, v%d, s48" % (BR + 4 * (2 * m) + jj, r1 + m, r0 + m))
            a("v_perm_b32 v%d, v%d, v%d, s49" % (BR + 4 * (2 * m + 1) + jj, r1 + m, r0 + m))
        if jj == 3:
            h = i // 4
            a("s_waitcnt lgkmcnt(0)")
            a("s_nop 0")
            for e in range(8):
                a("v_mfma_f32_16x16x32_bf16 v[%d:%d], v[%d:%d], v[%d:%d], v[%d:%d]" % (ACC + 4 * e, ACC + 3 + 4 * e, AOP + 4 * h, AOP + 4 * h + 3, BR + 4 * e, BR + 3 + 4 * e, ACC + 4 * e, ACC + 3 + 4 * e))
        if o["goat"] is not None and i == o["goat"]:
            lab = a.newlabel("Lgo")
            a("s_cmp_lg_u32 s54, 0")
            a("s_cbranch_scc1 %s" % lab)
            lds_signal(F_GO)
            a.label(lab)
    a("s_add_u32 s54, s54, 1")
    a("s_cmp_lt_u32 s54, 4")
    a("s_cbranch_scc1 L_kvloop")
    stamp(1)
    amppt("kvend")
    cm("---- add the two row-parity halves, publish the partial (never the word 0xffffffff, which marks 'not yet written') ----")
    a("s_mov_b32 s52, s3")
    a("v_lshrrev_b32 v9, 5, v0")
    a("v_lshlrev_b32 v9, 10, v9")
    a("v_bfe_u32 v8, v0, 4, 1")
    a("v_lshl_add_u32 v9, v8, 7, v9")
    a("v_and_b32 v8, 7, v0")
    a("v_lshl_add_u32 v9, v8, 4, v9")
    a("s_lshl_b32 s58, s52, 11")
    a("v_add_u32 v9, s58, v9")
    a("v_lshlrev_b32 v3, 4, v0")
    a("v_add_u32 v3, s58, v3")
    a("v_mov_b32 v%d, %d" % (H0, L_FLAG))
    a("ds_read_b32 v%d, v%d offset:%d" % (H1, H0, F_MODE))
    for e in range(4):
        for t in range(4):
            a("v_permlane32_swap_b32 v%d, v%d" % (ACC + 4 * e + t, ACC + 16 + 4 * e + t))
    for e in range(4):
        for t in range(4):
            x = ACC + 4 * e + t; y = ACC + 16 + 4 * e + t
            a("v_add_f32_dpp v%d, v%d, v%d row_ror:8 row_mask:0xf bank_mask:0xf" % (x, y, x))
    for e in range(4):
        for t in range(4):
            x = ACC + 4 * e + t
            a("v_min_u32 v%d, -2, v%d" % (x, x))
    a("s_waitcnt lgkmcnt(0)")
    a("v_readfirstlane_b32 s63, v%d" % H1)
    a("s_cmp_lg_u32 s63, 0")
    a("s_cbranch_scc1 L_modeok")
    lds_poll(F_MODE, 1, "M")
    a.label("L_modeok")
    a("s_mov_b32 s61, s63")
    a("s_mov_b32 exec_lo, 0x00ff00ff")
    a("s_mov_b32 exec_hi, 0x00ff00ff")
    a("s_cmp_eq_u32 s61, 2")
    a("s_cbranch_scc1 L_pubfast")
    for e in range(4):
        a("buffer_store_dwordx4 v[%d:%d], v9, s[40:43], s53 offen offset:%d sc1" % (ACC + 4 * e, ACC + 3 + 4 * e, e * 256))
    a("s_branch L_pubdone")
    a.label("L_pubfast")
    for e in range(4):
        a("buffer_store_dwordx4 v[%d:%d], v9, s[40:43], s53 offen offset:%d" % (ACC + 4 * e, ACC + 3 + 4 * e, e * 256))
    a.label("L_pubdone")
    a("s_mov_b64 exec, -1")
    stamp(2)
    cm("---- collect the 8 partials of this column third; a producer is taken once none of its words is 0xffffffff ----")
    C = RING
    a("s_mov_b32 s57, 0xff")
    a("s_mov_b32 s62, %d" % SPIN_GLB)
    if o["cdelay"]:
        a("s_sleep %d" % o["cdelay"])
    def issue_pending(fl):
        for p in range(8):
            lab = a.newlabel("Lc")
            a("s_bitcmp1_b32 s57, %d" % p)
            a("s_cbranch_scc0 %s" % lab)
            a("s_mov_b32 s58, %d" % (p * 6144))
            for i in range(2):
                r = C + 4 * (p * 2 + i)
                a("buffer_load_dwordx4 v[%d:%d], v3, s[40:43], s58 offen offset:%d %s" % (r, r + 3, i * 1024, fl))
            a.label(lab)
    if o["pipe"] and o["pipen"] > 1:
        a("s_mov_b32 s56, 0")
    a.label("L_collect")
    a("s_cmp_eq_u32 s61, 2")
    a("s_cbranch_scc0 L_colslow")
    if o["pipe"] and o["pipen"] > 1:
        a("s_cmp_eq_u32 s56, 0")
        a("s_cselect_b32 s56, %d, s56" % o["pipen"])
        a("s_sub_u32 s56, s56, 1")
        a("s_cmp_eq_u32 s56, %d" % (o["pipen"] - 1))
        a("s_cbranch_scc0 L_colnoissue")
    issue_pending(o["cld"])
    a("s_branch L_colwait")
    a.label("L_colslow")
    issue_pending("sc1")
    a.label("L_colwait")
    if o["unpace"]:
        lab = a.newlabel("Lun")
        a("s_cmp_eq_u32 s62, %d" % (SPIN_GLB - 1))
        a("s_cbranch_scc0 %s" % lab)
        lds_signal(F_UNP)
        a.label(lab)
    a("v_bfe_u32 v6, v0, 3, 1")
    a("v_and_b32 v7, 7, v0")
    a("v_lshrrev_b32 v2, 4, v0")
    a("v_mul_u32_u24 v140, %d, v6" % (4 * KP_STRIDE))
    a("v_lshl_add_u32 v140, v7, 4, v140")
    a("v_lshl_add_u32 v140, v2, 1, v140")
    a("s_lshl_b32 s58, s52, 7")
    a("s_add_u32 s58, s58, %d" % L_KP)
    a("v_add_u32 v140, s58, v140")
    a("v_lshl_add_u32 v141, v7, 3, v2")
    a("v_lshlrev_b32 v141, 4, v141")
    a("v_lshl_add_u32 v141, v6, 3, v141")
    a("s_lshl_b32 s58, s52, 10")
    a("s_add_u32 s58, s58, %d" % L_VP)
    a("v_add_u32 v141, s58, v141")
    if o["pipe"]:
        a("s_cmp_eq_u32 s62, %d" % SPIN_GLB)
        a("s_cbranch_scc1 L_colw0")
        a("s_cmp_eq_u32 s61, 2")
        a("s_cbranch_scc0 L_colw0")
        a.label("L_colnoissue")
        a("s_sleep %d" % o["pipe"])
        a("s_branch L_colchk")
        a.label("L_colw0")
    a("s_waitcnt vmcnt(0)")
    if o["pipe"] and o["pipen"] > 1:
        a("s_mov_b32 s56, 0")
    a.label("L_colchk")
    if stamps:
        lab = a.newlabel("Lfa")
        a("s_cmp_eq_u32 s62, %d" % SPIN_GLB)
        a("s_cbranch_scc0 %s" % lab)
        stamp(7)
        a.label(lab)
    for p in range(8):
        lab = a.newlabel("Lk")
        r = C + 8 * p
        a("s_bitcmp1_b32 s57, %d" % p)
        a("s_cbranch_scc0 %s" % lab)
        a("v_max3_u32 v8, v%d, v%d, v%d" % (r, r + 1, r + 2))
        a("v_max3_u32 v8, v8, v%d, v%d" % (r + 3, r + 4))
        a("v_max3_u32 v8, v8, v%d, v%d" % (r + 5, r + 6))
        a("v_max_u32 v8, v8, v%d" % (r + 7))
        a("v_cmp_eq_u32 vcc, -1, v8")
        a("s_cbranch_vccnz %s" % lab)
        a("s_bitset0_b32 s57, %d" % p)
        a.label(lab)
    a("s_cmp_eq_u32 s57, 0")
    a("s_cbranch_scc1 L_collected0")
    a("s_sub_u32 s62, s62, 1")
    a("s_cbranch_scc0 L_collect")
    a.label("L_collected0")
    if o["unpace"]:
        a("s_cmp_eq_u32 s62, %d" % SPIN_GLB)
        a("s_cbranch_scc0 L_collected")
        lds_signal(F_UNP)
    a.label("L_collected")
    stamp(3)
    S = BR
    for m in range(2):
        for i in range(2):
            for t in range(0, 4, 2):
                q = [C + 4 * (2 * (4 * m + k) + i) + t for k in range(4)]
                d = S + 8 * m + 4 * i + t
                a("v_pk_add_f32 v[%d:%d], v[%d:%d], v[%d:%d]" % (d, d + 1, q[0], q[0] + 1, q[1], q[1] + 1))
                a("v_pk_add_f32 v[%d:%d], v[%d:%d], v[%d:%d]" % (d + 16, d + 17, q[2], q[2] + 1, q[3], q[3] + 1))
    for m in range(2):
        for i in range(2):
            for t in range(0, 4, 2):
                d = S + 8 * m + 4 * i + t
                a("v_pk_add_f32 v[%d:%d], v[%d:%d], v[%d:%d]" % (d, d + 1, d, d + 1, d + 16, d + 17))
    P = ACC + 16
    for i in range(2):
        b = S + 4 * i
        a("v_cvt_pk_bf16_f32 v%d, v%d, v%d" % (P + 2 * i, b, b + 1))
        a("v_cvt_pk_bf16_f32 v%d, v%d, v%d" % (P + 1 + 2 * i, b + 2, b + 3))
    for i in range(2):
        a("ds_write_b16 v140, v%d offset:%d" % (P + 2 * i, 0 * KP_STRIDE + 8 * i))
        a("ds_write_b16_d16_hi v140, v%d offset:%d" % (P + 2 * i, 1 * KP_STRIDE + 8 * i))
        a("ds_write_b16 v140, v%d offset:%d" % (P + 1 + 2 * i, 2 * KP_STRIDE + 8 * i))
        a("ds_write_b16_d16_hi v140, v%d offset:%d" % (P + 1 + 2 * i, 3 * KP_STRIDE + 8 * i))
    for i in range(2):
        b = S + 8 + 4 * i
        a("v_cvt_pk_bf16_f32 v%d, v%d, v%d" % (P + 4 + 2 * i, b, b + 1))
        a("v_cvt_pk_bf16_f32 v%d, v%d, v%d" % (P + 5 + 2 * i, b + 2, b + 3))
    for i in range(2):
        a("ds_write_b64 v141, v[%d:%d] offset:%d" % (P + 4 + 2 * i, P + 5 + 2 * i, 64 * i))
    a("s_waitcnt lgkmcnt(0)")
    lds_signal(F_READY)
    amppt("ready")
    stamp(4)
    if stamps:
        a("s_waitcnt lgkmcnt(0)")
        a("s_mov_b32 s74, s78")
        a("s_sub_u32 s79, %d, s62" % SPIN_GLB)
    a("s_branch L_fin")

    a.label("L_qwave")
    a("s_barrier")
    cm("LDS-DMA lane offsets: 16-byte chunks are XOR-swizzled inside each 128-byte line (conflict-free fragment reads)")
    for n in range(6):
        a("v_add_u32 v110, %d, v0" % (64 * n))
        a("v_mul_u32_u24 v111, 2731, v110")
        a("v_lshrrev_b32 v111, 17, v111")
        a("v_and_b32 v111, 7, v111")
        a("v_lshlrev_b32 v111, 4, v111")
        a("v_lshlrev_b32 v110, 4, v110")
        a("v_xor_b32 v%d, v110, v111" % (140 + n))
    a("s_sub_u32 s55, s3, %d" % NKV)
    a("s_mul_i32 s56, s55, 12288")
    a("s_cmp_eq_u32 s3, %d" % (NKV + 0))
    a("s_cbranch_scc1 L_aux")
    a("s_cmp_eq_u32 s3, %d" % (NKV + 1))
    a("s_cbranch_scc0 L_qmain")
    cm("stage the projection rows of this workgroup's 512 K/V rows in LDS, in MFMA A-operand order")
    a("v_and_b32 v3, 7, v0")
    a("v_lshrrev_b32 v4, 3, v0")
    a("v_lshlrev_b32 v2, 12, v3")
    a("v_lshl_add_u32 v2, v4, 4, v2")
    a("s_lshl_b32 s58, s23, 10")
    for k in range(8):
        a("s_mov_b32 m0, %d" % (L_E + k * 1024))
        a("s_nop 0")
        a("buffer_load_dwordx4 v2, s[28:31], s58 offen lds")
        if k < 7:
            a("s_add_u32 s58, s58, 128")
    a("s_waitcnt vmcnt(0)")
    lds_signal(F_E)
    a("s_branch L_qmain")

    a.label("L_aux")
    cm("mark the own partial slot 'not yet written', then find out how the slot can be handed to the other 7 workgroups")
    if o["goat"] is not None:
        cm("(starts once the K/V stream is flowing, so that these stores do not sit in front of the first cold loads)")
        lds_poll(F_GO, 1, "G", sleep=4)
    for _ in range(o["auxdelay"] // 127):
        a("s_sleep 127")
    if o["auxdelay"] % 127:
        a("s_sleep %d" % (o["auxdelay"] % 127))
    a("v_lshlrev_b32 v1, 4, v0")
    for r in range(12, 16):
        a("v_mov_b32 v%d, -1" % r)
    def clear(fl):
        a("s_mov_b32 s58, s53")
        for n in range(6):
            if n == 4:
                a("s_add_u32 s58, s58, 4096")
            a("buffer_store_dwordx4 v[12:15], v1, s[40:43], s58 offen offset:%d %s" % ((n % 4) * 1024, fl))
        a("s_waitcnt vmcnt(0)")
    clear("")
    a("s_getreg_b32 s57, hwreg(HW_REG_XCC_ID)")
    a("s_and_b32 s57, s57, 7")
    a("s_or_b32 s57, s57, 0x80")
    a("v_mov_b32 v2, s57")
    a("s_lshl_b32 s59, s20, 3")
    a("s_add_u32 s58, s59, s21")
    a("s_mul_i32 s57, s57, 0x01010101")
    a("s_mov_b64 exec, 1")
    a("buffer_store_byte v2, off, s[44:47], s58")
    a("s_mov_b32 s62, %d" % o["auxpolls"])
    a.label("L_auxpoll")
    a("s_sleep %d" % o["auxsleep"])
    a("buffer_load_dwordx2 v[4:5], off, s[44:47], s59 %s" % o["auxld"])
    a("s_waitcnt vmcnt(0)")
    for k in range(2):
        a("v_and_b32 v%d, 0xbfbfbfbf, v%d" % (4 + k, 4 + k))
        a("v_xor_b32 v%d, s57, v%d" % (4 + k, 4 + k))
    a("v_or_b32 v4, v4, v5")
    a("s_nop 0")
    a("v_readfirstlane_b32 s60, v4")
    a("s_cmp_eq_u32 s60, 0")
    a("s_cbranch_scc1 L_auxfast")
    a("s_sub_u32 s62, s62, 1")
    a("s_cbranch_scc0 L_auxpoll")
    cm("no proof that all 8 workgroups run on this XCD: clear again write-through and wait for the others at device scope")
    a.label("L_auxslow")
    a("s_mov_b64 exec, -1")
    clear("sc1")
    a("s_add_u32 s58, s59, s21")
    a("s_or_b32 s60, s57, 0x40")
    a("v_mov_b32 v2, s60")
    a("s_mov_b64 exec, 1")
    a("buffer_store_byte v2, off, s[44:47], s58 sc1")
    a("s_mov_b32 s62, %d" % SPIN_GLB)
    a.label("L_slowpoll")
    a("buffer_load_dwordx2 v[4:5], off, s[44:47], s59 sc1")
    a("v_mov_b32 v8, 0")
    a("v_mov_b32 v9, 0")
    a("buffer_atomic_or_x2 v[8:9], off, s[44:47], s59 sc0 sc1")
    a("s_waitcnt vmcnt(0)")
    a("v_mov_b32 v12, 0")
    for k in range(2):
        a("v_and_b32 v13, 0xbfbfbfbf, v%d" % (4 + k))
        a("v_xor_b32 v13, s57, v13")
        a("v_and_b32 v14, 0x7f7f7f7f, v13")
        a("v_add_u32 v14, 0x7f7f7f7f, v14")
        a("v_or_b32 v14, v14, v13")
        a("v_not_b32 v14, v14")
        a("v_lshrrev_b32 v14, 1, v14")
        a("v_or_b32 v14, v14, v%d" % (8 + k))
        a("v_and_b32 v14, 0x40404040, v14")
        a("v_xor_b32 v14, 0x40404040, v14")
        a("v_or_b32 v12, v12, v14")
    a("s_nop 0")
    a("v_readfirstlane_b32 s60, v12")
    a("s_cmp_eq_u32 s60, 0")
    a("s_cbranch_scc1 L_slowok")
    a("s_sub_u32 s62, s62, 1")
    a("s_cbranch_scc1 L_slowok")
    a("s_sleep 32")
    a("s_branch L_slowpoll")
    a.label("L_slowok")
    a("s_mov_b64 exec, -1")
    lds_signal(F_MODE, 1)
    a("s_branch L_auxdone")
    a.label("L_auxfast")
    if not fast:
        a("s_branch L_auxslow")
    a("s_mov_b64 exec, -1")
    lds_signal(F_MODE, 2)
    a.label("L_auxdone")
    stamp(3)

    a.label("L_qmain")
    cm("---- Q wave: two 16-row tiles, loaded as the K/V stream drains ----")
    a("s_sub_u32 s57, s3, %d" % NKV)
    a("s_mul_i32 s57, s57, %d" % (3 * D // 2))
    a("s_lshr_b32 s57, s57, 3")
    a("s_add_u32 s57, s57, 1")
    lds_poll(F_TRIG, "s57", "T")
    stamp(1)
    def q_dma(k):
        t, n = divmod(k, 6)
        a("s_add_u32 m0, s56, %d" % (L_Q + t * 6144 + n * 1024))
        if t == 1 and n == 0:
            a("s_add_u32 s57, s56, 6144")
        else:
            a("s_nop 0")
        a("buffer_load_dwordx4 v%d, s[32:35], %s offen %s lds" % (140 + n, "s56" if t == 0 else "s57", ld))
    a("s_add_u32 s57, s56, 6144")
    flag_off, k_first = (F_UNP, qdepth - 1) if o["unpace"] else (F_READY, (qdepth - 1) if o["earlyall"] else (5 + qdepth))
    for k in range(12):
        if k >= qdepth:
            a("s_waitcnt vmcnt(%d)" % (qdepth - 1))
        q_dma(k)
        if o["early"] and k >= k_first and k < 11:
            a("ds_read_b32 v%d, v%d offset:%d" % (H1, H0, flag_off - F_TRIG))
            a("s_waitcnt lgkmcnt(0)")
            a("v_readfirstlane_b32 s63, v%d" % H1)
            a("s_cmp_ge_u32 s63, 3")
            a("s_cbranch_scc1 L_rest%d" % (k + 1))
    a("s_branch L_allissued")
    for k in range(k_first + 1, 12):
        if not o["early"]:
            break
        a.label("L_rest%d" % k)
        q_dma(k)
    a.label("L_allissued")
    if not o["qland"]:
        lds_signal(F_QISS)
    amppt("qiss")
    stamp(2)

    a("v_and_b32 v138, 15, v0")
    a("v_lshrrev_b32 v139, 4, v0")
    a("v_lshrrev_b32 v132, 1, v138")
    a("v_xor_b32 v132, v132, v139")
    a("v_lshlrev_b32 v132, 4, v132")
    a("v_mul_u32_u24 v133, 384, v138")
    a("v_add_u32 v132, v132, v133")
    a("v_add_u32 v132, s56, v132")
    a("v_xor_b32 v133, 64, v132")
    a("v_and_b32 v134, 7, v0")
    a("v_mul_u32_u24 v134, %d, v134" % KP_STRIDE)
    a("v_lshl_add_u32 v134, v139, 4, v134")
    a("v_add_u32 v134, %d, v134" % L_KP)
    a("v_lshrrev_b32 v146, 2, v138")
    a("v_and_b32 v147, 3, v138")
    a("v_lshl_add_u32 v135, v146, 3, v147")
    a("v_lshlrev_b32 v135, 4, v135")
    a("v_and_b32 v147, 1, v139")
    a("v_lshl_add_u32 v135, v147, 3, v135")
    a("v_add_u32 v135, %d, v135" % L_VP)
    a("v_lshlrev_b32 v136, 4, v0")
    a("v_cmp_gt_u32 vcc, 32, v0")
    a("v_mov_b32 v137, 0")
    a("s_nop 0")
    a("v_cndmask_b32_e64 v137, v137, 1.0, vcc")
    a("s_waitcnt vmcnt(6)")
    for m in range(6):
        a("ds_read_b128 v[%d:%d], v%d offset:%d" % (52 + 4 * m, 55 + 4 * m, 132 + (m & 1), (m >> 1) * 128))
    lds_poll(F_READY, 3, "R")
    if o["qprio"] is not None:
        lab = a.newlabel("Lqp")
        a("s_cmp_ge_u32 s3, %d" % (NKV + 4))
        a("s_cbranch_scc0 %s" % lab)
        a("s_setprio %d" % o["qprio"])
        a.label(lab)
    stamp(4)
    for m in range(6):
        a("ds_read_b128 v[%d:%d], v134 offset:%d" % (4 + 4 * m, 7 + 4 * m, m * 64))
    for T in range(12):
        U, b = divmod(T, 2)
        a("ds_read_b64 v[%d:%d], v135 offset:%d" % (28 + 2 * T, 29 + 2 * T, (32 * U + 4 * b) * 16))
    a("s_mov_b32 s55, 0")
    a("s_waitcnt lgkmcnt(12)")
    a("s_branch L_tile1")
    a.label("L_tile")
    a("s_waitcnt vmcnt(6)")
    for m in range(6):
        a("ds_read_b128 v[%d:%d], v%d offset:%d" % (52 + 4 * m, 55 + 4 * m, 132 + (m & 1), (m >> 1) * 128))
    a("s_waitcnt lgkmcnt(0)")
    a.label("L_tile1")
    cm("scores^T = kp . Q^T (rows r replicated twice), softmax over the 8 projected keys")
    for m in range(6):
        a("v_mfma_f32_16x16x32_bf16 v[76:79], v[%d:%d], v[%d:%d], %s" % (4 + 4 * m, 7 + 4 * m, 52 + 4 * m, 55 + 4 * m, "0" if m == 0 else "v[76:79]"))
    a("s_add_u32 s58, s56, 4096")
    a("s_nop 6")
    Z = 76
    def rnd():
        a("v_cvt_pk_bf16_f32 v80, v76, v77")
        a("v_cvt_pk_bf16_f32 v81, v78, v79")
        a("v_lshlrev_b32 v76, 16, v80")
        a("v_and_b32 v77, 0xffff0000, v80")
        a("v_lshlrev_b32 v78, 16, v81")
        a("v_and_b32 v79, 0xffff0000, v81")
    if o["round_emul"]:
        rnd()
    for t in range(4):
        a("v_mul_f32 v%d, s50, v%d" % (Z + t, Z + t))
    if o["round_emul"]:
        rnd()
    a("v_max3_f32 v82, v76, v77, v78")
    a("v_max_f32 v82, v82, v79")
    a("v_mov_b32 v83, v82")
    a("s_nop 1")
    a("v_permlane16_swap_b32 v82, v83")
    a("s_nop 1")
    a("v_max_f32 v82, v82, v83")
    a("v_mul_f32 v82, s51, v82")
    for t in range(4):
        a("v_fma_f32 v%d, v%d, s51, -v82" % (Z + t, Z + t))
    for t in range(4):
        a("v_exp_f32 v%d, v%d" % (Z + t, Z + t))
    a("s_nop 0")
    a("v_add_f32 v82, v76, v77")
    a("v_add_f32 v83, v78, v79")
    a("v_add_f32 v82, v82, v83")
    a("v_mov_b32 v83, v82")
    a("s_nop 1")
    a("v_permlane16_swap_b32 v82, v83")
    a("s_nop 1")
    a("v_add_f32 v82, v82, v83")
    a("v_rcp_f32 v82, v82")
    a("s_nop 0")
    a("v_mul_f32 v82, v82, v137")
    for t in range(4):
        a("v_mul_f32 v%d, v%d, v82" % (Z + t, Z + t))
    a("v_cvt_pk_bf16_f32 v80, v76, v77")
    a("v_cvt_pk_bf16_f32 v81, v78, v79")
    a("s_waitcnt lgkmcnt(0)")
    a("s_nop 0")
    cm("out^T = vp^T . p^T, packed to bf16, turned row-major through the tile's LDS space")
    for T in range(12):
        a("v_mfma_f32_16x16x16_bf16 v[%d:%d], v[%d:%d], v[80:81], 0" % (84 + 4 * T, 87 + 4 * T, 28 + 2 * T, 29 + 2 * T))
    for U in range(6):
        da, db = 84 + 8 * U, 88 + 8 * U
        if U == 0:
            a("s_nop 1")
        a("v_cvt_pk_bf16_f32 v%d, v%d, v%d" % (da, da, da + 1))
        a("v_cvt_pk_bf16_f32 v%d, v%d, v%d" % (da + 1, da + 2, da + 3))
        a("v_cvt_pk_bf16_f32 v%d, v%d, v%d" % (da + 2, db, db + 1))
        a("v_cvt_pk_bf16_f32 v%d, v%d, v%d" % (da + 3, db + 2, db + 3))
        a("ds_write_b128 v%d, v[%d:%d] offset:%d" % (132 + (U & 1), da, da + 3, (U >> 1) * 128))
    a("s_waitcnt lgkmcnt(0)")
    lab = a.newlabel("Lqi")
    a("s_cmp_lg_u32 s55, 0")
    a("s_cbranch_scc1 %s" % lab)
    if o["qland"]:
        a("s_waitcnt vmcnt(0)")
        lds_signal(F_QISS)
    if o["qiss"]:
        lds_poll(F_QISS, 8, "I")
    a.label(lab)
    for n in range(6):
        a("v_add_u32 v%d, s56, v%d" % (84 + n, 140 + n))
    for n in range(6):
        a("ds_read_b128 v[%d:%d], v%d" % (52 + 4 * n, 55 + 4 * n, 84 + n))
    for n in range(6):
        a("s_waitcnt lgkmcnt(%d)" % (5 - n))
        so, imm = ("s56", n * 1024) if n < 4 else ("s58", (n - 4) * 1024)
        if o["stpace"] is not None and n >= 1:
            a("s_waitcnt vmcnt(%d)" % o["stpace"])
        a("buffer_store_dwordx4 v[%d:%d], v136, s[36:39], %s offen offset:%d %s" % (52 + 4 * n, 55 + 4 * n, so, imm, st))
    a("s_add_u32 s56, s56, 6144")
    a("v_add_u32 v132, 6144, v132")
    a("v_add_u32 v133, 6144, v133")
    a("s_add_u32 s55, s55, 1")
    a("s_cmp_lt_u32 s55, 2")
    a("s_cbranch_scc1 L_tile")
    stamp(5)
    a.label("L_fin")
    if o["amp"]:
        a("s_waitcnt vmcnt(0)")
        a("s_memrealtime s[84:85]")
        a("s_waitcnt lgkmcnt(0)")
        a("s_sub_u32 s86, %s, s94" % ("s84" if o["ampat"] is None else "s96"))
        a("s_mul_i32 s86, s86, %d" % o["amp"])
        a("s_add_u32 s86, s86, s84")
        a.label("L_amp")
        a("s_sleep 8")
        a("s_memrealtime s[84:85]")
        a("s_waitcnt lgkmcnt(0)")
        a("s_sub_u32 s87, s86, s84")
        a("s_cmp_gt_i32 s87, 0")
        a("s_cbranch_scc1 L_amp")
    if stamps:
        a("s_waitcnt vmcnt(0)")
        stamp(6)
        a("s_getreg_b32 s78, hwreg(HW_REG_XCC_ID)")
        a("s_cmp_lt_u32 s3, %d" % NKV)
        a("s_cselect_b32 s79, s79, 0")
        a("s_lshl_b32 s79, s79, 8")
        a("s_or_b32 s78, s78, s79")
        a("s_waitcnt lgkmcnt(0)")
        a("s_lshl_b32 s58, s2, 9")
        a("s_lshl_b32 s59, s3, 5")
        a("s_add_u32 s58, s58, s59")
        a("s_add_u32 s58, s58, %d" % STAMP_OFF)
        a("s_mov_b32 s40, s18"); a("s_mov_b32 s41, s19"); a("s_mov_b32 s42, 0x1000000"); a("s_mov_b32 s43, 0x20000")
        for i in range(7):
            a("v_mov_b32 v%d, s%d" % (4 + i, 64 + 2 * i))
        a("v_mov_b32 v11, s78")
        a("s_mov_b64 exec, 1")
        a("buffer_store_dwordx4 v[4:7], off, s[40:43], s58")
        a("buffer_store_dwordx4 v[8:11], off, s[40:43], s58 offset:16")
    a.label("L_end")
    a("s_endpgm")
    nsg = 102 if (o["amp"] or stamps) else 94
    return wrap(["; @launch grid=(256,1,1) block=(%d,1,1) lds=%d" % (NW * 64, LDS_BYTES)], [(KN, a.text(), NVGPR, nsg)])

def parse_kv(args):
    kw = {}
    for x in args:
        k, v = x.split("=", 1)
        if v in ("True", "False", "None"):
            v = eval(v)
        else:
            try: v = int(v)
            except ValueError: pass
        kw[k] = v
    return kw

if __name__ == "__main__":
    open(sys.argv[1], "w").write(gen(**parse_kv(sys.argv[2:])))
```

```python
import sys
from asmlib import *

L_Q = 0
L_E = 98304
L_KP = L_E + 8192
KP_STRIDE = 400
L_VP = L_KP + 8 * KP_STRIDE
L_FLAG = L_VP + 3072
LDS_BYTES = L_FLAG + 64
F_TRIG, F_READY, F_MODE, F_E, F_QISS, F_GO, F_UNP = 0, 4, 8, 12, 16, 20, 24
STAMP_OFF = 8 << 20
SPIN_LDS = 1 << 22
SPIN_GLB = 1 << 16
NKV, NQ = 3, 8
NW = NKV + NQ
RING, BR, ACC, AOP = 12, 76, 108, 140
H0, H1 = 148, 149
NVGPR = 152
D = 8

DEF = dict(ld="nt", st="nt", cld="nt", stamps=None, qdepth=3, fast=True, xmap="xcd", round_emul=True,
           auxdelay=0, goat=7, auxld="sc1", auxsleep=6, auxpolls=6, pipe=0, pipen=1, stpace=None, qprio=None, unpace=False, cdelay=0, qland=False, qiss=True, early=True, earlyall=False, qdepth2=None, q2from=4, ykv=0, amp=0, ampat=None, comments=True)

def gen(**kw):
    o = dict(DEF); o.update(kw)
    ld, st, stamps, qdepth, fast = o["ld"], o["st"], o["stamps"], o["qdepth"], o["fast"]
    a = Asm()
    def cm(t):
        if o["comments"]:
            a.raw("    ; " + t)
    def stamp(i):
        if stamps:
            a("s_memrealtime s[%d:%d]" % (64 + 2 * i, 65 + 2 * i))
    def amppt(name):
        if o["amp"] and o["ampat"] == name:
            a("s_memrealtime s[96:97]")
    def lds_poll(off, val, name, sleep=1):
        lab = a.newlabel("Lp" + name); done = a.newlabel("Ld" + name)
        a("s_mov_b32 s62, %d" % SPIN_LDS)
        a("v_mov_b32 v%d, %d" % (H0, L_FLAG + off))
        a.label(lab)
        a("ds_read_b32 v%d, v%d" % (H1, H0))
        a("s_waitcnt lgkmcnt(0)")
        a("v_readfirstlane_b32 s63, v%d" % H1)
        a("s_sub_u32 s62, s62, 1")
        a("s_cbranch_scc1 %s" % done)
        a("s_cmp_ge_u32 s63, %s" % val)
        a("s_cbranch_scc1 %s" % done)
        a("s_sleep %d" % sleep)
        a("s_branch %s" % lab)
        a.label(done)
    def lds_signal(off, val=1):
        a("v_mov_b32 v%d, %d" % (H0, L_FLAG + off))
        a("v_mov_b32 v%d, %d" % (H1, val))
        a("s_mov_b64 exec, 1")
        a("ds_add_u32 v%d, v%d" % (H0, H1))
        a("s_mov_b64 exec, -1")
    def kbase(vdst, sks):
        a("s_add_u32 s93, %s, s92" % sks)
        a("s_and_b32 s93, s93, 7")
        a("s_mul_i32 s93, s93, 24576")
        a("s_cmp_ge_u32 %s, 8" % sks)
        a("s_cselect_b32 s93, 0x1000000, s93")
        a("v_add_u32 v%d, s93, v5" % vdst)

    stamp(0)
    if o["amp"]:
        a("s_memrealtime s[94:95]")
        a("s_memrealtime s[96:97]")
    cm("workgroups past the 256 that carry data leave at once")
    a("s_cmp_ge_u32 s2, 256")
    a("s_cbranch_scc1 L_end")
    a("s_load_dwordx16 s[4:19], s[0:1], 0")
    a("v_lshrrev_b32 v1, 6, v0")
    a("v_and_b32 v0, 63, v0")
    a("v_readfirstlane_b32 s3, v1")
    cm("head = (wg>>6)*8 + (wg&7), j = (wg>>3)&7 : the 8 workgroups of a head normally share an XCD (speed only)")
    if o["xmap"] == "xcd":
        a("s_lshr_b32 s20, s2, 6")
        a("s_lshl_b32 s20, s20, 3")
        a("s_and_b32 s21, s2, 7")
        a("s_add_u32 s20, s20, s21")
        a("s_lshr_b32 s21, s2, 3")
        a("s_and_b32 s21, s21, 7")
    else:
        a("s_lshr_b32 s20, s2, 3")
        a("s_and_b32 s21, s2, 7")
    cm("phase 1 role: mat = j&1 (K or V), quarter = j>>1 (512 rows); phase 2 role: query rows [256j, 256j+256)")
    a("s_and_b32 s22, s21, 1")
    a("s_lshr_b32 s23, s21, 1")
    a("v_and_b32 v3, 7, v0")
    a("v_lshrrev_b32 v4, 3, v0")
    a("v_mul_u32_u24 v1, 3072, v4")
    a("v_lshl_add_u32 v1, v3, 4, v1")
    a("s_lshl_b32 s52, s3, 7")
    a("v_add_u32 v5, s52, v1")
    a("s_lshr_b32 s92, s2, 3")
    a("s_add_u32 s92, s92, s2")
    a("s_and_b32 s92, s92, 7")
    a("s_mul_i32 s93, s92, 24576")
    a("v_add_u32 v6, s93, v5")
    a("s_mul_i32 s58, s20, 786432")
    a("s_mul_i32 s59, s23, 196608")
    a("s_add_u32 s59, s59, s58")
    a("s_mov_b32 s26, 196608")
    a("s_mov_b32 s27, 0x20000")
    a("s_cmp_eq_u32 s22, 0")
    a("s_waitcnt lgkmcnt(0)")
    a("s_cselect_b32 s24, s6, s8")
    a("s_cselect_b32 s25, s7, s9")
    a("s_cselect_b32 s28, s10, s12")
    a("s_cselect_b32 s29, s11, s13")
    a("s_add_u32 s24, s24, s59")
    a("s_addc_u32 s25, s25, 0")
    a("s_cmp_ge_u32 s3, %d" % NKV)
    a("s_cbranch_scc1 L_notkv0")
    def xload(slot, vb, j):
        r = RING + 4 * slot
        a("buffer_load_dwordx4 v[%d:%d], v%d, s[24:27], 0 offen offset:%d %s" % (r, r + 3, vb, j * 384, ld))
    cm("K/V waves: first 8 row loads, then the projection rows of the first two 64-row steps")
    for n in range(D):
        xload(n, 6, n)
    a("s_mov_b32 s30, 32768")
    a("s_mov_b32 s31, 0x20000")
    a("v_lshlrev_b32 v2, 12, v3")
    a("v_lshl_add_u32 v2, v4, 4, v2")
    a("s_lshl_b32 s55, s23, 10")
    for h in range(2):
        a("s_add_u32 s93, s92, %d" % h)
        a("s_and_b32 s93, s93, 7")
        a("s_lshl_b32 s93, s93, 7")
        a("s_add_u32 s93, s93, s55")
        a("buffer_load_dwordx4 v[%d:%d], v2, s[28:31], s93 offen" % (AOP + 4 * h, AOP + 4 * h + 3))
    amppt("issued0")
    a.label("L_notkv0")
    a("s_mov_b32 s30, 32768")
    a("s_mov_b32 s31, 0x20000")
    a("s_mul_i32 s59, s21, 98304")
    a("s_add_u32 s58, s58, s59")
    a("s_add_u32 s32, s4, s58")
    a("s_addc_u32 s33, s5, 0")
    a("s_mov_b32 s34, 98304")
    a("s_mov_b32 s35, 0x20000")
    a("s_add_u32 s36, s14, s58")
    a("s_addc_u32 s37, s15, 0")
    a("s_mov_b32 s38, 98304")
    a("s_mov_b32 s39, 0x20000")
    a("s_mul_i32 s58, s20, 49152")
    a("s_add_u32 s40, s18, s58")
    a("s_addc_u32 s41, s19, 0")
    a("s_mov_b32 s42, 49152")
    a("s_mov_b32 s43, 0x20000")
    a("s_mov_b32 s44, s16")
    a("s_mov_b32 s45, s17")
    a("s_mov_b32 s46, 256")
    a("s_mov_b32 s47, 0x20000")
    a("s_mov_b32 s48, 0x05040100")
    a("s_mov_b32 s49, 0x07060302")
    a("s_mov_b32 s50, 0x3d93cd3a")
    a("s_mov_b32 s51, 0x3fb8aa3b")
    a("s_lshl_b32 s53, s22, 2")
    a("s_add_u32 s53, s53, s23")
    a("s_mul_i32 s53, s53, 6144")
    a("s_cmp_lg_u32 s3, %d" % (NW - 1))
    a("s_cbranch_scc1 L_noinit")
    a("v_lshlrev_b32 v110, 2, v0")
    a("v_add_u32 v110, %d, v110" % L_FLAG)
    a("v_mov_b32 v111, 0")
    a("s_mov_b64 exec, 0xffff")
    a("ds_write_b32 v110, v111")
    a("s_mov_b64 exec, -1")
    a("s_waitcnt lgkmcnt(0)")
    a.label("L_noinit")
    a("s_cmp_ge_u32 s3, %d" % NKV)
    a("s_cbranch_scc1 L_qwave")

    cm("---- K/V wave tau = wave id: 128-byte column third tau of 512 rows, 8 steps of 64 rows ----")
    for r in range(ACC, ACC + 32):
        a("v_mov_b32 v%d, 0" % r)
    a("v_lshlrev_b32 v11, 4, v0")
    a("v_add_u32 v11, %d, v11" % L_E)
    a("s_mov_b32 s54, 0")
    a("s_setprio 2")
    a("s_barrier")
    a.label("L_kvloop")
    qs = [1, 2]
    a("s_lshl_b32 s55, s54, 1")
    for k, q in enumerate(qs):
        a("s_add_u32 s56, s55, %d" % q)
        kbase(6 + k, "s56")
    for i in range(8):
        a("s_waitcnt vmcnt(%d)" % (D - 2 - o["ykv"]))
        for u in range(2):
            n = 2 * i + u + D
            xload(n % 16, 6 + qs.index(n // 8), n % 8)
        if i >= 4:
            lab = a.newlabel("Lnt")
            a("s_cmp_lg_u32 s54, 3")
            a("s_cbranch_scc1 %s" % lab)
            lds_signal(F_TRIG)
            a.label(lab)
        jj = i % 4
        if jj == 2:
            h = i // 4
            labs = a.newlabel("Lsk")
            a("s_cmp_eq_u32 s54, 0")
            a("s_cbranch_scc1 %s" % labs)
            if h == 0:
                lab = a.newlabel("Lne")
                a("s_cmp_lg_u32 s54, 1")
                a("s_cbranch_scc1 %s" % lab)
                lds_poll(F_E, 1, "E")
                a.label(lab)
            a("s_add_u32 s93, s55, s92")
            if h:
                a("s_add_u32 s93, s93, 1")
            a("s_and_b32 s93, s93, 7")
            a("s_lshl_b32 s93, s93, 10")
            a("v_add_u32 v10, s93, v11")
            a("ds_read_b128 v[%d:%d], v10" % (AOP + 4 * h, AOP + 4 * h + 3))
            a.label(labs)
        r0 = RING + 8 * i; r1 = r0 + 4
        for m in range(4):
            a("v_perm_b32 v%d, v%d, v%d, s48" % (BR + 4 * (2 * m) + jj, r1 + m, r0 + m))
            a("v_perm_b32 v%d, v%d, v%d, s49" % (BR + 4 * (2 * m + 1) + jj, r1 + m, r0 + m))
        if jj == 3:
            h = i // 4
            a("s_waitcnt lgkmcnt(0)")
            a("s_nop 0")
            for e in range(8):
                a("v_mfma_f32_16x16x32_bf16 v[%d:%d], v[%d:%d], v[%d:%d], v[%d:%d]" % (ACC + 4 * e, ACC + 3 + 4 * e, AOP + 4 * h, AOP + 4 * h + 3, BR + 4 * e, BR + 3 + 4 * e, ACC + 4 * e, ACC + 3 + 4 * e))
        if o["goat"] is not None and i == o["goat"]:
            lab = a.newlabel("Lgo")
            a("s_cmp_lg_u32 s54, 0")
            a("s_cbranch_scc1 %s" % lab)
            lds_signal(F_GO)
            a.label(lab)
    a("s_add_u32 s54, s54, 1")
    a("s_cmp_lt_u32 s54, 4")
    a("s_cbranch_scc1 L_kvloop")
    stamp(1)
    amppt("kvend")
    cm("---- add the two row-parity halves, publish the partial (never the word 0xffffffff, which marks 'not yet written') ----")
    a("s_mov_b32 s52, s3")
    a("v_lshrrev_b32 v9, 5, v0")
    a("v_lshlrev_b32 v9, 10, v9")
    a("v_bfe_u32 v8, v0, 4, 1")
    a("v_lshl_add_u32 v9, v8, 7, v9")
    a("v_and_b32 v8, 7, v0")
    a("v_lshl_add_u32 v9, v8, 4, v9")
    a("s_lshl_b32 s58, s52, 11")
    a("v_add_u32 v9, s58, v9")
    a("v_lshlrev_b32 v3, 4, v0")
    a("v_add_u32 v3, s58, v3")
    a("v_mov_b32 v%d, %d" % (H0, L_FLAG))
    a("ds_read_b32 v%d, v%d offset:%d" % (H1, H0, F_MODE))
    for e in range(4):
        for t in range(4):
            a("v_permlane32_swap_b32 v%d, v%d" % (ACC + 4 * e + t, ACC + 16 + 4 * e + t))
    for e in range(4):
        for t in range(4):
            x = ACC + 4 * e + t; y = ACC + 16 + 4 * e + t
            a("v_add_f32_dpp v%d, v%d, v%d row_ror:8 row_mask:0xf bank_mask:0xf" % (x, y, x))
    for e in range(4):
        for t in range(4):
            x = ACC + 4 * e + t
            a("v_min_u32 v%d, -2, v%d" % (x, x))
    a("s_waitcnt lgkmcnt(0)")
    a("v_readfirstlane_b32 s63, v%d" % H1)
    a("s_cmp_lg_u32 s63, 0")
    a("s_cbranch_scc1 L_modeok")
    lds_poll(F_MODE, 1, "M")
    a.label("L_modeok")
    a("s_mov_b32 s61, s63")
    a("s_mov_b32 exec_lo, 0x00ff00ff")
    a("s_mov_b32 exec_hi, 0x00ff00ff")
    a("s_cmp_eq_u32 s61, 2")
    a("s_cbranch_scc1 L_pubfast")
    for e in range(4):
        a("buffer_store_dwordx4 v[%d:%d], v9, s[40:43], s53 offen offset:%d sc1" % (ACC + 4 * e, ACC + 3 + 4 * e, e * 256))
    a("s_branch L_pubdone")
    a.label("L_pubfast")
    for e in range(4):
        a("buffer_store_dwordx4 v[%d:%d], v9, s[40:43], s53 offen offset:%d" % (ACC + 4 * e, ACC + 3 + 4 * e, e * 256))
    a.label("L_pubdone")
    a("s_mov_b64 exec, -1")
    stamp(2)
    cm("---- collect the 8 partials of this column third; a producer is taken once none of its words is 0xffffffff ----")
    C = RING
    a("s_mov_b32 s57, 0xff")
    a("s_mov_b32 s62, %d" % SPIN_GLB)
    if o["cdelay"]:
        a("s_sleep %d" % o["cdelay"])
    def issue_pending(fl):
        for p in range(8):
            lab = a.newlabel("Lc")
            a("s_bitcmp1_b32 s57, %d" % p)
            a("s_cbranch_scc0 %s" % lab)
            a("s_mov_b32 s58, %d" % (p * 6144))
            for i in range(2):
                r = C + 4 * (p * 2 + i)
                a("buffer_load_dwordx4 v[%d:%d], v3, s[40:43], s58 offen offset:%d %s" % (r, r + 3, i * 1024, fl))
            a.label(lab)
    if o["pipe"] and o["pipen"] > 1:
        a("s_mov_b32 s56, 0")
    a.label("L_collect")
    a("s_cmp_eq_u32 s61, 2")
    a("s_cbranch_scc0 L_colslow")
    if o["pipe"] and o["pipen"] > 1:
        a("s_cmp_eq_u32 s56, 0")
        a("s_cselect_b32 s56, %d, s56" % o["pipen"])
        a("s_sub_u32 s56, s56, 1")
        a("s_cmp_eq_u32 s56, %d" % (o["pipen"] - 1))
        a("s_cbranch_scc0 L_colnoissue")
    issue_pending(o["cld"])
    a("s_branch L_colwait")
    a.label("L_colslow")
    issue_pending("sc1")
    a.label("L_colwait")
    if o["unpace"]:
        lab = a.newlabel("Lun")
        a("s_cmp_eq_u32 s62, %d" % (SPIN_GLB - 1))
        a("s_cbranch_scc0 %s" % lab)
        lds_signal(F_UNP)
        a.label(lab)
    a("v_bfe_u32 v6, v0, 3, 1")
    a("v_and_b32 v7, 7, v0")
    a("v_lshrrev_b32 v2, 4, v0")
    a("v_mul_u32_u24 v140, %d, v6" % (4 * KP_STRIDE))
    a("v_lshl_add_u32 v140, v7, 4, v140")
    a("v_lshl_add_u32 v140, v2, 1, v140")
    a("s_lshl_b32 s58, s52, 7")
    a("s_add_u32 s58, s58, %d" % L_KP)
    a("v_add_u32 v140, s58, v140")
    a("v_lshl_add_u32 v141, v7, 3, v2")
    a("v_lshlrev_b32 v141, 4, v141")
    a("v_lshl_add_u32 v141, v6, 3, v141")
    a("s_lshl_b32 s58, s52, 10")
    a("s_add_u32 s58, s58, %d" % L_VP)
    a("v_add_u32 v141, s58, v141")
    if o["pipe"]:
        a("s_cmp_eq_u32 s62, %d" % SPIN_GLB)
        a("s_cbranch_scc1 L_colw0")
        a("s_cmp_eq_u32 s61, 2")
        a("s_cbranch_scc0 L_colw0")
        a.label("L_colnoissue")
        a("s_sleep %d" % o["pipe"])
        a("s_branch L_colchk")
        a.label("L_colw0")
    a("s_waitcnt vmcnt(0)")
    if o["pipe"] and o["pipen"] > 1:
        a("s_mov_b32 s56, 0")
    a.label("L_colchk")
    if stamps:
        lab = a.newlabel("Lfa")
        a("s_cmp_eq_u32 s62, %d" % SPIN_GLB)
        a("s_cbranch_scc0 %s" % lab)
        stamp(7)
        a.label(lab)
    for p in range(8):
        lab = a.newlabel("Lk")
        r = C + 8 * p
        a("s_bitcmp1_b32 s57, %d" % p)
        a("s_cbranch_scc0 %s" % lab)
        a("v_max3_u32 v8, v%d, v%d, v%d" % (r, r + 1, r + 2))
        a("v_max3_u32 v8, v8, v%d, v%d" % (r + 3, r + 4))
        a("v_max3_u32 v8, v8, v%d, v%d" % (r + 5, r + 6))
        a("v_max_u32 v8, v8, v%d" % (r + 7))
        a("v_cmp_eq_u32 vcc, -1, v8")
        a("s_cbranch_vccnz %s" % lab)
        a("s_bitset0_b32 s57, %d" % p)
        a.label(lab)
    a("s_cmp_eq_u32 s57, 0")
    a("s_cbranch_scc1 L_collected0")
    a("s_sub_u32 s62, s62, 1")
    a("s_cbranch_scc0 L_collect")
    a.label("L_collected0")
    if o["unpace"]:
        a("s_cmp_eq_u32 s62, %d" % SPIN_GLB)
        a("s_cbranch_scc0 L_collected")
        lds_signal(F_UNP)
    a.label("L_collected")
    stamp(3)
    S = BR
    for m in range(2):
        for i in range(2):
            for t in range(0, 4, 2):
                q = [C + 4 * (2 * (4 * m + k) + i) + t for k in range(4)]
                d = S + 8 * m + 4 * i + t
                a("v_pk_add_f32 v[%d:%d], v[%d:%d], v[%d:%d]" % (d, d + 1, q[0], q[0] + 1, q[1], q[1] + 1))
                a("v_pk_add_f32 v[%d:%d], v[%d:%d], v[%d:%d]" % (d + 16, d + 17, q[2], q[2] + 1, q[3], q[3] + 1))
    for m in range(2):
        for i in range(2):
            for t in range(0, 4, 2):
                d = S + 8 * m + 4 * i + t
                a("v_pk_add_f32 v[%d:%d], v[%d:%d], v[%d:%d]" % (d, d + 1, d, d + 1, d + 16, d + 17))
    P = ACC + 16
    for i in range(2):
        b = S + 4 * i
        a("v_cvt_pk_bf16_f32 v%d, v%d, v%d" % (P + 2 * i, b, b + 1))
        a("v_cvt_pk_bf16_f32 v%d, v%d, v%d" % (P + 1 + 2 * i, b + 2, b + 3))
    for i in range(2):
        a("ds_write_b16 v140, v%d offset:%d" % (P + 2 * i, 0 * KP_STRIDE + 8 * i))
        a("ds_write_b16_d16_hi v140, v%d offset:%d" % (P + 2 * i, 1 * KP_STRIDE + 8 * i))
        a("ds_write_b16 v140, v%d offset:%d" % (P + 1 + 2 * i, 2 * KP_STRIDE + 8 * i))
        a("ds_write_b16_d16_hi v140, v%d offset:%d" % (P + 1 + 2 * i, 3 * KP_STRIDE + 8 * i))
    for i in range(2):
        b = S + 8 + 4 * i
        a("v_cvt_pk_bf16_f32 v%d, v%d, v%d" % (P + 4 + 2 * i, b, b + 1))
        a("v_cvt_pk_bf16_f32 v%d, v%d, v%d" % (P + 5 + 2 * i, b + 2, b + 3))
    for i in range(2):
        a("ds_write_b64 v141, v[%d:%d] offset:%d" % (P + 4 + 2 * i, P + 5 + 2 * i, 64 * i))
    a("s_waitcnt lgkmcnt(0)")
    lds_signal(F_READY)
    amppt("ready")
    stamp(4)
    if stamps:
        a("s_waitcnt lgkmcnt(0)")
        a("s_mov_b32 s74, s78")
        a("s_sub_u32 s79, %d, s62" % SPIN_GLB)
    a("s_branch L_fin")

    a.label("L_qwave")
    a("s_barrier")
    cm("LDS-DMA lane offsets: 16-byte chunks are XOR-swizzled inside each 128-byte line (conflict-free fragment reads)")
    for n in range(6):
        a("v_add_u32 v110, %d, v0" % (64 * n))
        a("v_mul_u32_u24 v111, 2731, v110")
        a("v_lshrrev_b32 v111, 17, v111")
        a("v_and_b32 v111, 7, v111")
        a("v_lshlrev_b32 v111, 4, v111")
        a("v_lshlrev_b32 v110, 4, v110")
        a("v_xor_b32 v%d, v110, v111" % (140 + n))
    a("s_sub_u32 s55, s3, %d" % NKV)
    a("s_mul_i32 s56, s55, 12288")
    a("s_cmp_eq_u32 s3, %d" % (NKV + 0))
    a("s_cbranch_scc1 L_aux")
    a("s_cmp_eq_u32 s3, %d" % (NKV + 1))
    a("s_cbranch_scc0 L_qmain")
    cm("stage the projection rows of this workgroup's 512 K/V rows in LDS, in MFMA A-operand order")
    a("v_and_b32 v3, 7, v0")
    a("v_lshrrev_b32 v4, 3, v0")
    a("v_lshlrev_b32 v2, 12, v3")
    a("v_lshl_add_u32 v2, v4, 4, v2")
    a("s_lshl_b32 s58, s23, 10")
    for k in range(8):
        a("s_mov_b32 m0, %d" % (L_E + k * 1024))
        a("s_nop 0")
        a("buffer_load_dwordx4 v2, s[28:31], s58 offen lds")
        if k < 7:
            a("s_add_u32 s58, s58, 128")
    a("s_waitcnt vmcnt(0)")
    lds_signal(F_E)
    a("s_branch L_qmain")

    a.label("L_aux")
    cm("mark the own partial slot 'not yet written', then find out how the slot can be handed to the other 7 workgroups")
    if o["goat"] is not None:
        cm("(starts once the K/V stream is flowing, so that these stores do not sit in front of the first cold loads)")
        lds_poll(F_GO, 1, "G", sleep=4)
    for _ in range(o["auxdelay"] // 127):
        a("s_sleep 127")
    if o["auxdelay"] % 127:
        a("s_sleep %d" % (o["auxdelay"] % 127))
    a("v_lshlrev_b32 v1, 4, v0")
    for r in range(12, 16):
        a("v_mov_b32 v%d, -1" % r)
    def clear(fl):
        a("s_mov_b32 s58, s53")
        for n in range(6):
            if n == 4:
                a("s_add_u32 s58, s58, 4096")
            a("buffer_store_dwordx4 v[12:15], v1, s[40:43], s58 offen offset:%d %s" % ((n % 4) * 1024, fl))
        a("s_waitcnt vmcnt(0)")
    clear("")
    a("s_getreg_b32 s57, hwreg(HW_REG_XCC_ID)")
    a("s_and_b32 s57, s57, 7")
    a("s_or_b32 s57, s57, 0x80")
    a("v_mov_b32 v2, s57")
    a("s_lshl_b32 s59, s20, 3")
    a("s_add_u32 s58, s59, s21")
    a("s_mul_i32 s57, s57, 0x01010101")
    a("s_mov_b64 exec, 1")
    a("buffer_store_byte v2, off, s[44:47], s58")
    a("s_mov_b32 s62, %d" % o["auxpolls"])
    a.label("L_auxpoll")
    a("s_sleep %d" % o["auxsleep"])
    a("buffer_load_dwordx2 v[4:5], off, s[44:47], s59 %s" % o["auxld"])
    a("s_waitcnt vmcnt(0)")
    for k in range(2):
        a("v_and_b32 v%d, 0xbfbfbfbf, v%d" % (4 + k, 4 + k))
        a("v_xor_b32 v%d, s57, v%d" % (4 + k, 4 + k))
    a("v_or_b32 v4, v4, v5")
    a("s_nop 0")
    a("v_readfirstlane_b32 s60, v4")
    a("s_cmp_eq_u32 s60, 0")
    a("s_cbranch_scc1 L_auxfast")
    a("s_sub_u32 s62, s62, 1")
    a("s_cbranch_scc0 L_auxpoll")
    cm("no proof that all 8 workgroups run on this XCD: clear again write-through and wait for the others at device scope")
    a.label("L_auxslow")
    a("s_mov_b64 exec, -1")
    clear("sc1")
    a("s_add_u32 s58, s59, s21")
    a("s_or_b32 s60, s57, 0x40")
    a("v_mov_b32 v2, s60")
    a("s_mov_b64 exec, 1")
    a("buffer_store_byte v2, off, s[44:47], s58 sc1")
    a("s_mov_b32 s62, %d" % SPIN_GLB)
    a.label("L_slowpoll")
    a("buffer_load_dwordx2 v[4:5], off, s[44:47], s59 sc1")
    a("v_mov_b32 v8, 0")
    a("v_mov_b32 v9, 0")
    a("buffer_atomic_or_x2 v[8:9], off, s[44:47], s59 sc0 sc1")
    a("s_waitcnt vmcnt(0)")
    a("v_mov_b32 v12, 0")
    for k in range(2):
        a("v_and_b32 v13, 0xbfbfbfbf, v%d" % (4 + k))
        a("v_xor_b32 v13, s57, v13")
        a("v_and_b32 v14, 0x7f7f7f7f, v13")
        a("v_add_u32 v14, 0x7f7f7f7f, v14")
        a("v_or_b32 v14, v14, v13")
        a("v_not_b32 v14, v14")
        a("v_lshrrev_b32 v14, 1, v14")
        a("v_or_b32 v14, v14, v%d" % (8 + k))
        a("v_and_b32 v14, 0x40404040, v14")
        a("v_xor_b32 v14, 0x40404040, v14")
        a("v_or_b32 v12, v12, v14")
    a("s_nop 0")
    a("v_readfirstlane_b32 s60, v12")
    a("s_cmp_eq_u32 s60, 0")
    a("s_cbranch_scc1 L_slowok")
    a("s_sub_u32 s62, s62, 1")
    a("s_cbranch_scc1 L_slowok")
    a("s_sleep 32")
    a("s_branch L_slowpoll")
    a.label("L_slowok")
    a("s_mov_b64 exec, -1")
    lds_signal(F_MODE, 1)
    a("s_branch L_auxdone")
    a.label("L_auxfast")
    if not fast:
        a("s_branch L_auxslow")
    a("s_mov_b64 exec, -1")
    lds_signal(F_MODE, 2)
    a.label("L_auxdone")
    stamp(3)

    a.label("L_qmain")
    cm("---- Q wave: two 16-row tiles, loaded as the K/V stream drains ----")
    a("s_sub_u32 s57, s3, %d" % NKV)
    a("s_mul_i32 s57, s57, %d" % (3 * D // 2))
    a("s_lshr_b32 s57, s57, 3")
    a("s_add_u32 s57, s57, 1")
    lds_poll(F_TRIG, "s57", "T")
    stamp(1)
    def q_dma(k):
        t, n = divmod(k, 6)
        a("s_add_u32 m0, s56, %d" % (L_Q + t * 6144 + n * 1024))
        if t == 1 and n == 0:
            a("s_add_u32 s57, s56, 6144")
        else:
            a("s_nop 0")
        a("buffer_load_dwordx4 v%d, s[32:35], %s offen %s lds" % (140 + n, "s56" if t == 0 else "s57", ld))
    a("s_add_u32 s57, s56, 6144")
    def q_stream(qd, tag):
        flag_off, k_first = (F_UNP, qd - 1) if o["unpace"] else (F_READY, (qd - 1) if o["earlyall"] else (5 + qd))
        for k in range(12):
            if k >= qd:
                a("s_waitcnt vmcnt(%d)" % (qd - 1))
            q_dma(k)
            if o["early"] and k >= k_first and k < 11:
                a("ds_read_b32 v%d, v%d offset:%d" % (H1, H0, flag_off - F_TRIG))
                a("s_waitcnt lgkmcnt(0)")
                a("v_readfirstlane_b32 s63, v%d" % H1)
                a("s_cmp_ge_u32 s63, 3")
                a("s_cbranch_scc1 L_rest%s%d" % (tag, k + 1))
        a("s_branch L_allissued")
        for k in range(k_first + 1, 12):
            if not o["early"]:
                break
            a.label("L_rest%s%d" % (tag, k))
            q_dma(k)
    if o["qdepth2"]:
        a("s_cmp_ge_u32 s3, %d" % (NKV + o["q2from"]))
        a("s_cbranch_scc1 L_qs2")
        q_stream(qdepth, "a")
        a("s_branch L_allissued")
        a.label("L_qs2")
        q_stream(o["qdepth2"], "b")
    else:
        q_stream(qdepth, "")
    a.label("L_allissued")
    if not o["qland"]:
        lds_signal(F_QISS)
    amppt("qiss")
    stamp(2)

    a("v_and_b32 v138, 15, v0")
    a("v_lshrrev_b32 v139, 4, v0")
    a("v_lshrrev_b32 v132, 1, v138")
    a("v_xor_b32 v132, v132, v139")
    a("v_lshlrev_b32 v132, 4, v132")
    a("v_mul_u32_u24 v133, 384, v138")
    a("v_add_u32 v132, v132, v133")
    a("v_add_u32 v132, s56, v132")
    a("v_xor_b32 v133, 64, v132")
    a("v_and_b32 v134, 7, v0")
    a("v_mul_u32_u24 v134, %d, v134" % KP_STRIDE)
    a("v_lshl_add_u32 v134, v139, 4, v134")
    a("v_add_u32 v134, %d, v134" % L_KP)
    a("v_lshrrev_b32 v146, 2, v138")
    a("v_and_b32 v147, 3, v138")
    a("v_lshl_add_u32 v135, v146, 3, v147")
    a("v_lshlrev_b32 v135, 4, v135")
    a("v_and_b32 v147, 1, v139")
    a("v_lshl_add_u32 v135, v147, 3, v135")
    a("v_add_u32 v135, %d, v135" % L_VP)
    a("v_lshlrev_b32 v136, 4, v0")
    a("v_cmp_gt_u32 vcc, 32, v0")
    a("v_mov_b32 v137, 0")
    a("s_nop 0")
    a("v_cndmask_b32_e64 v137, v137, 1.0, vcc")
    a("s_waitcnt vmcnt(6)")
    for m in range(6):
        a("ds_read_b128 v[%d:%d], v%d offset:%d" % (52 + 4 * m, 55 + 4 * m, 132 + (m & 1), (m >> 1) * 128))
    lds_poll(F_READY, 3, "R")
    if o["qprio"] is not None:
        lab = a.newlabel("Lqp")
        a("s_cmp_ge_u32 s3, %d" % (NKV + 4))
        a("s_cbranch_scc0 %s" % lab)
        a("s_setprio %d" % o["qprio"])
        a.label(lab)
    stamp(4)
    for m in range(6):
        a("ds_read_b128 v[%d:%d], v134 offset:%d" % (4 + 4 * m, 7 + 4 * m, m * 64))
    for T in range(12):
        U, b = divmod(T, 2)
        a("ds_read_b64 v[%d:%d], v135 offset:%d" % (28 + 2 * T, 29 + 2 * T, (32 * U + 4 * b) * 16))
    a("s_mov_b32 s55, 0")
    a("s_waitcnt lgkmcnt(12)")
    a("s_branch L_tile1")
    a.label("L_tile")
    a("s_waitcnt vmcnt(6)")
    for m in range(6):
        a("ds_read_b128 v[%d:%d], v%d offset:%d" % (52 + 4 * m, 55 + 4 * m, 132 + (m & 1), (m >> 1) * 128))
    a("s_waitcnt lgkmcnt(0)")
    a.label("L_tile1")
    cm("scores^T = kp . Q^T (rows r replicated twice), softmax over the 8 projected keys")
    for m in range(6):
        a("v_mfma_f32_16x16x32_bf16 v[76:79], v[%d:%d], v[%d:%d], %s" % (4 + 4 * m, 7 + 4 * m, 52 + 4 * m, 55 + 4 * m, "0" if m == 0 else "v[76:79]"))
    a("s_add_u32 s58, s56, 4096")
    a("s_nop 6")
    Z = 76
    def rnd():
        a("v_cvt_pk_bf16_f32 v80, v76, v77")
        a("v_cvt_pk_bf16_f32 v81, v78, v79")
        a("v_lshlrev_b32 v76, 16, v80")
        a("v_and_b32 v77, 0xffff0000, v80")
        a("v_lshlrev_b32 v78, 16, v81")
        a("v_and_b32 v79, 0xffff0000, v81")
    if o["round_emul"]:
        rnd()
    for t in range(4):
        a("v_mul_f32 v%d, s50, v%d" % (Z + t, Z + t))
    if o["round_emul"]:
        rnd()
    a("v_max3_f32 v82, v76, v77, v78")
    a("v_max_f32 v82, v82, v79")
    a("v_mov_b32 v83, v82")
    a("s_nop 1")
    a("v_permlane16_swap_b32 v82, v83")
    a("s_nop 1")
    a("v_max_f32 v82, v82, v83")
    a("v_mul_f32 v82, s51, v82")
    for t in range(4):
        a("v_fma_f32 v%d, v%d, s51, -v82" % (Z + t, Z + t))
    for t in range(4):
        a("v_exp_f32 v%d, v%d" % (Z + t, Z + t))
    a("s_nop 0")
    a("v_add_f32 v82, v76, v77")
    a("v_add_f32 v83, v78, v79")
    a("v_add_f32 v82, v82, v83")
    a("v_mov_b32 v83, v82")
    a("s_nop 1")
    a("v_permlane16_swap_b32 v82, v83")
    a("s_nop 1")
    a("v_add_f32 v82, v82, v83")
    a("v_rcp_f32 v82, v82")
    a("s_nop 0")
    a("v_mul_f32 v82, v82, v137")
    for t in range(4):
        a("v_mul_f32 v%d, v%d, v82" % (Z + t, Z + t))
    a("v_cvt_pk_bf16_f32 v80, v76, v77")
    a("v_cvt_pk_bf16_f32 v81, v78, v79")
    a("s_waitcnt lgkmcnt(0)")
    a("s_nop 0")
    cm("out^T = vp^T . p^T, packed to bf16, turned row-major through the tile's LDS space")
    for T in range(12):
        a("v_mfma_f32_16x16x16_bf16 v[%d:%d], v[%d:%d], v[80:81], 0" % (84 + 4 * T, 87 + 4 * T, 28 + 2 * T, 29 + 2 * T))
    for U in range(6):
        da, db = 84 + 8 * U, 88 + 8 * U
        if U == 0:
            a("s_nop 1")
        a("v_cvt_pk_bf16_f32 v%d, v%d, v%d" % (da, da, da + 1))
        a("v_cvt_pk_bf16_f32 v%d, v%d, v%d" % (da + 1, da + 2, da + 3))
        a("v_cvt_pk_bf16_f32 v%d, v%d, v%d" % (da + 2, db, db + 1))
        a("v_cvt_pk_bf16_f32 v%d, v%d, v%d" % (da + 3, db + 2, db + 3))
        a("ds_write_b128 v%d, v[%d:%d] offset:%d" % (132 + (U & 1), da, da + 3, (U >> 1) * 128))
    a("s_waitcnt lgkmcnt(0)")
    lab = a.newlabel("Lqi")
    a("s_cmp_lg_u32 s55, 0")
    a("s_cbranch_scc1 %s" % lab)
    if o["qland"]:
        a("s_waitcnt vmcnt(0)")
        lds_signal(F_QISS)
    if o["qiss"]:
        lds_poll(F_QISS, 8, "I")
    a.label(lab)
    for n in range(6):
        a("v_add_u32 v%d, s56, v%d" % (84 + n, 140 + n))
    for n in range(6):
        a("ds_read_b128 v[%d:%d], v%d" % (52 + 4 * n, 55 + 4 * n, 84 + n))
    for n in range(6):
        a("s_waitcnt lgkmcnt(%d)" % (5 - n))
        so, imm = ("s56", n * 1024) if n < 4 else ("s58", (n - 4) * 1024)
        if o["stpace"] is not None and n >= 1:
            a("s_waitcnt vmcnt(%d)" % o["stpace"])
        a("buffer_store_dwordx4 v[%d:%d], v136, s[36:39], %s offen offset:%d %s" % (52 + 4 * n, 55 + 4 * n, so, imm, st))
    a("s_add_u32 s56, s56, 6144")
    a("v_add_u32 v132, 6144, v132")
    a("v_add_u32 v133, 6144, v133")
    a("s_add_u32 s55, s55, 1")
    a("s_cmp_lt_u32 s55, 2")
    a("s_cbranch_scc1 L_tile")
    stamp(5)
    a.label("L_fin")
    if o["amp"]:
        a("s_waitcnt vmcnt(0)")
        a("s_memrealtime s[84:85]")
        a("s_waitcnt lgkmcnt(0)")
        a("s_sub_u32 s86, %s, s94" % ("s84" if o["ampat"] is None else "s96"))
        a("s_mul_i32 s86, s86, %d" % o["amp"])
        a("s_add_u32 s86, s86, s84")
        a.label("L_amp")
        a("s_sleep 8")
        a("s_memrealtime s[84:85]")
        a("s_waitcnt lgkmcnt(0)")
        a("s_sub_u32 s87, s86, s84")
        a("s_cmp_gt_i32 s87, 0")
        a("s_cbranch_scc1 L_amp")
    if stamps:
        a("s_waitcnt vmcnt(0)")
        stamp(6)
        a("s_getreg_b32 s78, hwreg(HW_REG_XCC_ID)")
        a("s_cmp_lt_u32 s3, %d" % NKV)
        a("s_cselect_b32 s79, s79, 0")
        a("s_lshl_b32 s79, s79, 8")
        a("s_or_b32 s78, s78, s79")
        a("s_waitcnt lgkmcnt(0)")
        a("s_lshl_b32 s58, s2, 9")
        a("s_lshl_b32 s59, s3, 5")
        a("s_add_u32 s58, s58, s59")
        a("s_add_u32 s58, s58, %d" % STAMP_OFF)
        a("s_mov_b32 s40, s18"); a("s_mov_b32 s41, s19"); a("s_mov_b32 s42, 0x1000000"); a("s_mov_b32 s43, 0x20000")
        for i in range(7):
            a("v_mov_b32 v%d, s%d" % (4 + i, 64 + 2 * i))
        a("v_mov_b32 v11, s78")
        a("s_mov_b64 exec, 1")
        a("buffer_store_dwordx4 v[4:7], off, s[40:43], s58")
        a("buffer_store_dwordx4 v[8:11], off, s[40:43], s58 offset:16")
    a.label("L_end")
    a("s_endpgm")
    nsg = 102 if (o["amp"] or stamps) else 94
    return wrap(["; @launch grid=(256,1,1) block=(%d,1,1) lds=%d" % (NW * 64, LDS_BYTES)], [(KN, a.text(), NVGPR, nsg)])

def parse_kv(args):
    kw = {}
    for x in args:
        k, v = x.split("=", 1)
        if v in ("True", "False", "None"):
            v = eval(v)
        else:
            try: v = int(v)
            except ValueError: pass
        kw[k] = v
    return kw

if __name__ == "__main__":
    open(sys.argv[1], "w").write(gen(**parse_kv(sys.argv[2:])))
```

```python
import sys
from asmlib import *

L_Q = 0
L_E = 98304
L_KP = L_E + 8192
KP_STRIDE = 400
L_VP = L_KP + 8 * KP_STRIDE
L_FLAG = L_VP + 3072
LDS_BYTES = L_FLAG + 64
F_TRIG, F_READY, F_MODE, F_E, F_QISS, F_GO, F_UNP = 0, 4, 8, 12, 16, 20, 24
STAMP_OFF = 8 << 20
SPIN_LDS = 1 << 22
SPIN_GLB = 1 << 16
NKV, NQ = 3, 8
NW = NKV + NQ
RING, BR, ACC, AOP = 12, 76, 108, 140
H0, H1 = 148, 149
NVGPR = 152
D = 8

DEF = dict(ld="nt", st="nt", cld="nt", stamps=None, qdepth=3, fast=True, xmap="xcd", round_emul=True,
           auxdelay=0, goat=7, auxld="sc1", auxsleep=6, auxpolls=6, pipe=0, pipen=1, stpace=None, qprio=None, unpace=False, cdelay=0, qland=False, qiss=True, early=True, earlyall=False, qdepth2=None, q2from=4, ykv=0, rampoff=0, amp=0, ampat=None, comments=True)

def gen(**kw):
    o = dict(DEF); o.update(kw)
    ld, st, stamps, qdepth, fast = o["ld"], o["st"], o["stamps"], o["qdepth"], o["fast"]
    a = Asm()
    def cm(t):
        if o["comments"]:
            a.raw("    ; " + t)
    def stamp(i):
        if stamps:
            a("s_memrealtime s[%d:%d]" % (64 + 2 * i, 65 + 2 * i))
    def amppt(name):
        if o["amp"] and o["ampat"] == name:
            a("s_memrealtime s[96:97]")
    def lds_poll(off, val, name, sleep=1):
        lab = a.newlabel("Lp" + name); done = a.newlabel("Ld" + name)
        a("s_mov_b32 s62, %d" % SPIN_LDS)
        a("v_mov_b32 v%d, %d" % (H0, L_FLAG + off))
        a.label(lab)
        a("ds_read_b32 v%d, v%d" % (H1, H0))
        a("s_waitcnt lgkmcnt(0)")
        a("v_readfirstlane_b32 s63, v%d" % H1)
        a("s_sub_u32 s62, s62, 1")
        a("s_cbranch_scc1 %s" % done)
        a("s_cmp_ge_u32 s63, %s" % val)
        a("s_cbranch_scc1 %s" % done)
        a("s_sleep %d" % sleep)
        a("s_branch %s" % lab)
        a.label(done)
    def lds_signal(off, val=1):
        a("v_mov_b32 v%d, %d" % (H0, L_FLAG + off))
        a("v_mov_b32 v%d, %d" % (H1, val))
        a("s_mov_b64 exec, 1")
        a("ds_add_u32 v%d, v%d" % (H0, H1))
        a("s_mov_b64 exec, -1")
    def kbase(vdst, sks):
        a("s_add_u32 s93, %s, s92" % sks)
        a("s_and_b32 s93, s93, 7")
        a("s_mul_i32 s93, s93, 24576")
        a("s_cmp_ge_u32 %s, 8" % sks)
        a("s_cselect_b32 s93, 0x1000000, s93")
        a("v_add_u32 v%d, s93, v5" % vdst)

    stamp(0)
    if o["amp"]:
        a("s_memrealtime s[94:95]")
        a("s_memrealtime s[96:97]")
    cm("workgroups past the 256 that carry data leave at once")
    a("s_cmp_ge_u32 s2, 256")
    a("s_cbranch_scc1 L_end")
    a("s_load_dwordx16 s[4:19], s[0:1], 0")
    a("v_lshrrev_b32 v1, 6, v0")
    a("v_and_b32 v0, 63, v0")
    a("v_readfirstlane_b32 s3, v1")
    cm("head = (wg>>6)*8 + (wg&7), j = (wg>>3)&7 : the 8 workgroups of a head normally share an XCD (speed only)")
    if o["xmap"] == "xcd":
        a("s_lshr_b32 s20, s2, 6")
        a("s_lshl_b32 s20, s20, 3")
        a("s_and_b32 s21, s2, 7")
        a("s_add_u32 s20, s20, s21")
        a("s_lshr_b32 s21, s2, 3")
        a("s_and_b32 s21, s21, 7")
    else:
        a("s_lshr_b32 s20, s2, 3")
        a("s_and_b32 s21, s2, 7")
    cm("phase 1 role: mat = j&1 (K or V), quarter = j>>1 (512 rows); phase 2 role: query rows [256j, 256j+256)")
    a("s_and_b32 s22, s21, 1")
    a("s_lshr_b32 s23, s21, 1")
    a("v_and_b32 v3, 7, v0")
    a("v_lshrrev_b32 v4, 3, v0")
    a("v_mul_u32_u24 v1, 3072, v4")
    a("v_lshl_add_u32 v1, v3, 4, v1")
    a("s_lshl_b32 s52, s3, 7")
    a("v_add_u32 v5, s52, v1")
    a("s_lshr_b32 s92, s2, 3")
    a("s_add_u32 s92, s92, s2")
    a("s_and_b32 s92, s92, 7")
    a("s_mul_i32 s93, s92, 24576")
    a("v_add_u32 v6, s93, v5")
    a("s_mul_i32 s58, s20, 786432")
    a("s_mul_i32 s59, s23, 196608")
    a("s_add_u32 s59, s59, s58")
    a("s_mov_b32 s26, 196608")
    a("s_mov_b32 s27, 0x20000")
    a("s_cmp_eq_u32 s22, 0")
    a("s_waitcnt lgkmcnt(0)")
    a("s_cselect_b32 s24, s6, s8")
    a("s_cselect_b32 s25, s7, s9")
    a("s_cselect_b32 s28, s10, s12")
    a("s_cselect_b32 s29, s11, s13")
    a("s_add_u32 s24, s24, s59")
    a("s_addc_u32 s25, s25, 0")
    a("s_cmp_ge_u32 s3, %d" % NKV)
    a("s_cbranch_scc1 L_notkv0")
    def xload(slot, vb, j):
        r = RING + 4 * slot
        a("buffer_load_dwordx4 v[%d:%d], v%d, s[24:27], 0 offen offset:%d %s" % (r, r + 3, vb, j * 384, ld))
    cm("K/V waves: first 8 row loads, then the projection rows of the first two 64-row steps")
    for n in range(D):
        xload(n, 6, n)
    a("s_mov_b32 s30, 32768")
    a("s_mov_b32 s31, 0x20000")
    a("v_lshlrev_b32 v2, 12, v3")
    a("v_lshl_add_u32 v2, v4, 4, v2")
    a("s_lshl_b32 s55, s23, 10")
    for h in range(2):
        a("s_add_u32 s93, s92, %d" % h)
        a("s_and_b32 s93, s93, 7")
        a("s_lshl_b32 s93, s93, 7")
        a("s_add_u32 s93, s93, s55")
        a("buffer_load_dwordx4 v[%d:%d], v2, s[28:31], s93 offen" % (AOP + 4 * h, AOP + 4 * h + 3))
    amppt("issued0")
    a.label("L_notkv0")
    a("s_mov_b32 s30, 32768")
    a("s_mov_b32 s31, 0x20000")
    a("s_mul_i32 s59, s21, 98304")
    a("s_add_u32 s58, s58, s59")
    a("s_add_u32 s32, s4, s58")
    a("s_addc_u32 s33, s5, 0")
    a("s_mov_b32 s34, 98304")
    a("s_mov_b32 s35, 0x20000")
    a("s_add_u32 s36, s14, s58")
    a("s_addc_u32 s37, s15, 0")
    a("s_mov_b32 s38, 98304")
    a("s_mov_b32 s39, 0x20000")
    a("s_mul_i32 s58, s20, 49152")
    a("s_add_u32 s40, s18, s58")
    a("s_addc_u32 s41, s19, 0")
    a("s_mov_b32 s42, 49152")
    a("s_mov_b32 s43, 0x20000")
    a("s_mov_b32 s44, s16")
    a("s_mov_b32 s45, s17")
    a("s_mov_b32 s46, 256")
    a("s_mov_b32 s47, 0x20000")
    a("s_mov_b32 s48, 0x05040100")
    a("s_mov_b32 s49, 0x07060302")
    a("s_mov_b32 s50, 0x3d93cd3a")
    a("s_mov_b32 s51, 0x3fb8aa3b")
    a("s_lshl_b32 s53, s22, 2")
    a("s_add_u32 s53, s53, s23")
    a("s_mul_i32 s53, s53, 6144")
    a("s_cmp_lg_u32 s3, %d" % (NW - 1))
    a("s_cbranch_scc1 L_noinit")
    a("v_lshlrev_b32 v110, 2, v0")
    a("v_add_u32 v110, %d, v110" % L_FLAG)
    a("v_mov_b32 v111, 0")
    a("s_mov_b64 exec, 0xffff")
    a("ds_write_b32 v110, v111")
    a("s_mov_b64 exec, -1")
    a("s_waitcnt lgkmcnt(0)")
    a.label("L_noinit")
    a("s_cmp_ge_u32 s3, %d" % NKV)
    a("s_cbranch_scc1 L_qwave")

    cm("---- K/V wave tau = wave id: 128-byte column third tau of 512 rows, 8 steps of 64 rows ----")
    for r in range(ACC, ACC + 32):
        a("v_mov_b32 v%d, 0" % r)
    a("v_lshlrev_b32 v11, 4, v0")
    a("v_add_u32 v11, %d, v11" % L_E)
    a("s_mov_b32 s54, 0")
    a("s_setprio 2")
    a("s_barrier")
    a.label("L_kvloop")
    qs = [1, 2]
    a("s_lshl_b32 s55, s54, 1")
    for k, q in enumerate(qs):
        a("s_add_u32 s56, s55, %d" % q)
        kbase(6 + k, "s56")
    for i in range(8):
        a("s_waitcnt vmcnt(%d)" % (D - 2 - o["ykv"]))
        for u in range(2):
            n = 2 * i + u + D
            xload(n % 16, 6 + qs.index(n // 8), n % 8)
        if 4 - o["rampoff"] <= i < 8 - o["rampoff"]:
            lab = a.newlabel("Lnt")
            a("s_cmp_lg_u32 s54, 3")
            a("s_cbranch_scc1 %s" % lab)
            lds_signal(F_TRIG)
            a.label(lab)
        jj = i % 4
        if jj == 2:
            h = i // 4
            labs = a.newlabel("Lsk")
            a("s_cmp_eq_u32 s54, 0")
            a("s_cbranch_scc1 %s" % labs)
            if h == 0:
                lab = a.newlabel("Lne")
                a("s_cmp_lg_u32 s54, 1")
                a("s_cbranch_scc1 %s" % lab)
                lds_poll(F_E, 1, "E")
                a.label(lab)
            a("s_add_u32 s93, s55, s92")
            if h:
                a("s_add_u32 s93, s93, 1")
            a("s_and_b32 s93, s93, 7")
            a("s_lshl_b32 s93, s93, 10")
            a("v_add_u32 v10, s93, v11")
            a("ds_read_b128 v[%d:%d], v10" % (AOP + 4 * h, AOP + 4 * h + 3))
            a.label(labs)
        r0 = RING + 8 * i; r1 = r0 + 4
        for m in range(4):
            a("v_perm_b32 v%d, v%d, v%d, s48" % (BR + 4 * (2 * m) + jj, r1 + m, r0 + m))
            a("v_perm_b32 v%d, v%d, v%d, s49" % (BR + 4 * (2 * m + 1) + jj, r1 + m, r0 + m))
        if jj == 3:
            h = i // 4
            a("s_waitcnt lgkmcnt(0)")
            a("s_nop 0")
            for e in range(8):
                a("v_mfma_f32_16x16x32_bf16 v[%d:%d], v[%d:%d], v[%d:%d], v[%d:%d]" % (ACC + 4 * e, ACC + 3 + 4 * e, AOP + 4 * h, AOP + 4 * h + 3, BR + 4 * e, BR + 3 + 4 * e, ACC + 4 * e, ACC + 3 + 4 * e))
        if o["goat"] is not None and i == o["goat"]:
            lab = a.newlabel("Lgo")
            a("s_cmp_lg_u32 s54, 0")
            a("s_cbranch_scc1 %s" % lab)
            lds_signal(F_GO)
            a.label(lab)
    a("s_add_u32 s54, s54, 1")
    a("s_cmp_lt_u32 s54, 4")
    a("s_cbranch_scc1 L_kvloop")
    for _ in range(max(0, -o["rampoff"])):
        lds_signal(F_TRIG)
    stamp(1)
    amppt("kvend")
    cm("---- add the two row-parity halves, publish the partial (never the word 0xffffffff, which marks 'not yet written') ----")
    a("s_mov_b32 s52, s3")
    a("v_lshrrev_b32 v9, 5, v0")
    a("v_lshlrev_b32 v9, 10, v9")
    a("v_bfe_u32 v8, v0, 4, 1")
    a("v_lshl_add_u32 v9, v8, 7, v9")
    a("v_and_b32 v8, 7, v0")
    a("v_lshl_add_u32 v9, v8, 4, v9")
    a("s_lshl_b32 s58, s52, 11")
    a("v_add_u32 v9, s58, v9")
    a("v_lshlrev_b32 v3, 4, v0")
    a("v_add_u32 v3, s58, v3")
    a("v_mov_b32 v%d, %d" % (H0, L_FLAG))
    a("ds_read_b32 v%d, v%d offset:%d" % (H1, H0, F_MODE))
    for e in range(4):
        for t in range(4):
            a("v_permlane32_swap_b32 v%d, v%d" % (ACC + 4 * e + t, ACC + 16 + 4 * e + t))
    for e in range(4):
        for t in range(4):
            x = ACC + 4 * e + t; y = ACC + 16 + 4 * e + t
            a("v_add_f32_dpp v%d, v%d, v%d row_ror:8 row_mask:0xf bank_mask:0xf" % (x, y, x))
    for e in range(4):
        for t in range(4):
            x = ACC + 4 * e + t
            a("v_min_u32 v%d, -2, v%d" % (x, x))
    a("s_waitcnt lgkmcnt(0)")
    a("v_readfirstlane_b32 s63, v%d" % H1)
    a("s_cmp_lg_u32 s63, 0")
    a("s_cbranch_scc1 L_modeok")
    lds_poll(F_MODE, 1, "M")
    a.label("L_modeok")
    a("s_mov_b32 s61, s63")
    a("s_mov_b32 exec_lo, 0x00ff00ff")
    a("s_mov_b32 exec_hi, 0x00ff00ff")
    a("s_cmp_eq_u32 s61, 2")
    a("s_cbranch_scc1 L_pubfast")
    for e in range(4):
        a("buffer_store_dwordx4 v[%d:%d], v9, s[40:43], s53 offen offset:%d sc1" % (ACC + 4 * e, ACC + 3 + 4 * e, e * 256))
    a("s_branch L_pubdone")
    a.label("L_pubfast")
    for e in range(4):
        a("buffer_store_dwordx4 v[%d:%d], v9, s[40:43], s53 offen offset:%d" % (ACC + 4 * e, ACC + 3 + 4 * e, e * 256))
    a.label("L_pubdone")
    a("s_mov_b64 exec, -1")
    stamp(2)
    cm("---- collect the 8 partials of this column third; a producer is taken once none of its words is 0xffffffff ----")
    C = RING
    a("s_mov_b32 s57, 0xff")
    a("s_mov_b32 s62, %d" % SPIN_GLB)
    if o["cdelay"]:
        a("s_sleep %d" % o["cdelay"])
    def issue_pending(fl):
        for p in range(8):
            lab = a.newlabel("Lc")
            a("s_bitcmp1_b32 s57, %d" % p)
            a("s_cbranch_scc0 %s" % lab)
            a("s_mov_b32 s58, %d" % (p * 6144))
            for i in range(2):
                r = C + 4 * (p * 2 + i)
                a("buffer_load_dwordx4 v[%d:%d], v3, s[40:43], s58 offen offset:%d %s" % (r, r + 3, i * 1024, fl))
            a.label(lab)
    if o["pipe"] and o["pipen"] > 1:
        a("s_mov_b32 s56, 0")
    a.label("L_collect")
    a("s_cmp_eq_u32 s61, 2")
    a("s_cbranch_scc0 L_colslow")
    if o["pipe"] and o["pipen"] > 1:
        a("s_cmp_eq_u32 s56, 0")
        a("s_cselect_b32 s56, %d, s56" % o["pipen"])
        a("s_sub_u32 s56, s56, 1")
        a("s_cmp_eq_u32 s56, %d" % (o["pipen"] - 1))
        a("s_cbranch_scc0 L_colnoissue")
    issue_pending(o["cld"])
    a("s_branch L_colwait")
    a.label("L_colslow")
    issue_pending("sc1")
    a.label("L_colwait")
    if o["unpace"]:
        lab = a.newlabel("Lun")
        a("s_cmp_eq_u32 s62, %d" % (SPIN_GLB - 1))
        a("s_cbranch_scc0 %s" % lab)
        lds_signal(F_UNP)
        a.label(lab)
    a("v_bfe_u32 v6, v0, 3, 1")
    a("v_and_b32 v7, 7, v0")
    a("v_lshrrev_b32 v2, 4, v0")
    a("v_mul_u32_u24 v140, %d, v6" % (4 * KP_STRIDE))
    a("v_lshl_add_u32 v140, v7, 4, v140")
    a("v_lshl_add_u32 v140, v2, 1, v140")
    a("s_lshl_b32 s58, s52, 7")
    a("s_add_u32 s58, s58, %d" % L_KP)
    a("v_add_u32 v140, s58, v140")
    a("v_lshl_add_u32 v141, v7, 3, v2")
    a("v_lshlrev_b32 v141, 4, v141")
    a("v_lshl_add_u32 v141, v6, 3, v141")
    a("s_lshl_b32 s58, s52, 10")
    a("s_add_u32 s58, s58, %d" % L_VP)
    a("v_add_u32 v141, s58, v141")
    if o["pipe"]:
        a("s_cmp_eq_u32 s62, %d" % SPIN_GLB)
        a("s_cbranch_scc1 L_colw0")
        a("s_cmp_eq_u32 s61, 2")
        a("s_cbranch_scc0 L_colw0")
        a.label("L_colnoissue")
        a("s_sleep %d" % o["pipe"])
        a("s_branch L_colchk")
        a.label("L_colw0")
    a("s_waitcnt vmcnt(0)")
    if o["pipe"] and o["pipen"] > 1:
        a("s_mov_b32 s56, 0")
    a.label("L_colchk")
    if stamps:
        lab = a.newlabel("Lfa")
        a("s_cmp_eq_u32 s62, %d" % SPIN_GLB)
        a("s_cbranch_scc0 %s" % lab)
        stamp(7)
        a.label(lab)
    for p in range(8):
        lab = a.newlabel("Lk")
        r = C + 8 * p
        a("s_bitcmp1_b32 s57, %d" % p)
        a("s_cbranch_scc0 %s" % lab)
        a("v_max3_u32 v8, v%d, v%d, v%d" % (r, r + 1, r + 2))
        a("v_max3_u32 v8, v8, v%d, v%d" % (r + 3, r + 4))
        a("v_max3_u32 v8, v8, v%d, v%d" % (r + 5, r + 6))
        a("v_max_u32 v8, v8, v%d" % (r + 7))
        a("v_cmp_eq_u32 vcc, -1, v8")
        a("s_cbranch_vccnz %s" % lab)
        a("s_bitset0_b32 s57, %d" % p)
        a.label(lab)
    a("s_cmp_eq_u32 s57, 0")
    a("s_cbranch_scc1 L_collected0")
    a("s_sub_u32 s62, s62, 1")
    a("s_cbranch_scc0 L_collect")
    a.label("L_collected0")
    if o["unpace"]:
        a("s_cmp_eq_u32 s62, %d" % SPIN_GLB)
        a("s_cbranch_scc0 L_collected")
        lds_signal(F_UNP)
    a.label("L_collected")
    stamp(3)
    S = BR
    for m in range(2):
        for i in range(2):
            for t in range(0, 4, 2):
                q = [C + 4 * (2 * (4 * m + k) + i) + t for k in range(4)]
                d = S + 8 * m + 4 * i + t
                a("v_pk_add_f32 v[%d:%d], v[%d:%d], v[%d:%d]" % (d, d + 1, q[0], q[0] + 1, q[1], q[1] + 1))
                a("v_pk_add_f32 v[%d:%d], v[%d:%d], v[%d:%d]" % (d + 16, d + 17, q[2], q[2] + 1, q[3], q[3] + 1))
    for m in range(2):
        for i in range(2):
            for t in range(0, 4, 2):
                d = S + 8 * m + 4 * i + t
                a("v_pk_add_f32 v[%d:%d], v[%d:%d], v[%d:%d]" % (d, d + 1, d, d + 1, d + 16, d + 17))
    P = ACC + 16
    for i in range(2):
        b = S + 4 * i
        a("v_cvt_pk_bf16_f32 v%d, v%d, v%d" % (P + 2 * i, b, b + 1))
        a("v_cvt_pk_bf16_f32 v%d, v%d, v%d" % (P + 1 + 2 * i, b + 2, b + 3))
    for i in range(2):
        a("ds_write_b16 v140, v%d offset:%d" % (P + 2 * i, 0 * KP_STRIDE + 8 * i))
        a("ds_write_b16_d16_hi v140, v%d offset:%d" % (P + 2 * i, 1 * KP_STRIDE + 8 * i))
        a("ds_write_b16 v140, v%d offset:%d" % (P + 1 + 2 * i, 2 * KP_STRIDE + 8 * i))
        a("ds_write_b16_d16_hi v140, v%d offset:%d" % (P + 1 + 2 * i, 3 * KP_STRIDE + 8 * i))
    for i in range(2):
        b = S + 8 + 4 * i
        a("v_cvt_pk_bf16_f32 v%d, v%d, v%d" % (P + 4 + 2 * i, b, b + 1))
        a("v_cvt_pk_bf16_f32 v%d, v%d, v%d" % (P + 5 + 2 * i, b + 2, b + 3))
    for i in range(2):
        a("ds_write_b64 v141, v[%d:%d] offset:%d" % (P + 4 + 2 * i, P + 5 + 2 * i, 64 * i))
    a("s_waitcnt lgkmcnt(0)")
    lds_signal(F_READY)
    amppt("ready")
    stamp(4)
    if stamps:
        a("s_waitcnt lgkmcnt(0)")
        a("s_mov_b32 s74, s78")
        a("s_sub_u32 s79, %d, s62" % SPIN_GLB)
    a("s_branch L_fin")

    a.label("L_qwave")
    a("s_barrier")
    cm("LDS-DMA lane offsets: 16-byte chunks are XOR-swizzled inside each 128-byte line (conflict-free fragment reads)")
    for n in range(6):
        a("v_add_u32 v110, %d, v0" % (64 * n))
        a("v_mul_u32_u24 v111, 2731, v110")
        a("v_lshrrev_b32 v111, 17, v111")
        a("v_and_b32 v111, 7, v111")
        a("v_lshlrev_b32 v111, 4, v111")
        a("v_lshlrev_b32 v110, 4, v110")
        a("v_xor_b32 v%d, v110, v111" % (140 + n))
    a("s_sub_u32 s55, s3, %d" % NKV)
    a("s_mul_i32 s56, s55, 12288")
    a("s_cmp_eq_u32 s3, %d" % (NKV + 0))
    a("s_cbranch_scc1 L_aux")
    a("s_cmp_eq_u32 s3, %d" % (NKV + 1))
    a("s_cbranch_scc0 L_qmain")
    cm("stage the projection rows of this workgroup's 512 K/V rows in LDS, in MFMA A-operand order")
    a("v_and_b32 v3, 7, v0")
    a("v_lshrrev_b32 v4, 3, v0")
    a("v_lshlrev_b32 v2, 12, v3")
    a("v_lshl_add_u32 v2, v4, 4, v2")
    a("s_lshl_b32 s58, s23, 10")
    for k in range(8):
        a("s_mov_b32 m0, %d" % (L_E + k * 1024))
        a("s_nop 0")
        a("buffer_load_dwordx4 v2, s[28:31], s58 offen lds")
        if k < 7:
            a("s_add_u32 s58, s58, 128")
    a("s_waitcnt vmcnt(0)")
    lds_signal(F_E)
    a("s_branch L_qmain")

    a.label("L_aux")
    cm("mark the own partial slot 'not yet written', then find out how the slot can be handed to the other 7 workgroups")
    if o["goat"] is not None:
        cm("(starts once the K/V stream is flowing, so that these stores do not sit in front of the first cold loads)")
        lds_poll(F_GO, 1, "G", sleep=4)
    for _ in range(o["auxdelay"] // 127):
        a("s_sleep 127")
    if o["auxdelay"] % 127:
        a("s_sleep %d" % (o["auxdelay"] % 127))
    a("v_lshlrev_b32 v1, 4, v0")
    for r in range(12, 16):
        a("v_mov_b32 v%d, -1" % r)
    def clear(fl):
        a("s_mov_b32 s58, s53")
        for n in range(6):
            if n == 4:
                a("s_add_u32 s58, s58, 4096")
            a("buffer_store_dwordx4 v[12:15], v1, s[40:43], s58 offen offset:%d %s" % ((n % 4) * 1024, fl))
        a("s_waitcnt vmcnt(0)")
    clear("")
    a("s_getreg_b32 s57, hwreg(HW_REG_XCC_ID)")
    a("s_and_b32 s57, s57, 7")
    a("s_or_b32 s57, s57, 0x80")
    a("v_mov_b32 v2, s57")
    a("s_lshl_b32 s59, s20, 3")
    a("s_add_u32 s58, s59, s21")
    a("s_mul_i32 s57, s57, 0x01010101")
    a("s_mov_b64 exec, 1")
    a("buffer_store_byte v2, off, s[44:47], s58")
    a("s_mov_b32 s62, %d" % o["auxpolls"])
    a.label("L_auxpoll")
    a("s_sleep %d" % o["auxsleep"])
    a("buffer_load_dwordx2 v[4:5], off, s[44:47], s59 %s" % o["auxld"])
    a("s_waitcnt vmcnt(0)")
    for k in range(2):
        a("v_and_b32 v%d, 0xbfbfbfbf, v%d" % (4 + k, 4 + k))
        a("v_xor_b32 v%d, s57, v%d" % (4 + k, 4 + k))
    a("v_or_b32 v4, v4, v5")
    a("s_nop 0")
    a("v_readfirstlane_b32 s60, v4")
    a("s_cmp_eq_u32 s60, 0")
    a("s_cbranch_scc1 L_auxfast")
    a("s_sub_u32 s62, s62, 1")
    a("s_cbranch_scc0 L_auxpoll")
    cm("no proof that all 8 workgroups run on this XCD: clear again write-through and wait for the others at device scope")
    a.label("L_auxslow")
    a("s_mov_b64 exec, -1")
    clear("sc1")
    a("s_add_u32 s58, s59, s21")
    a("s_or_b32 s60, s57, 0x40")
    a("v_mov_b32 v2, s60")
    a("s_mov_b64 exec, 1")
    a("buffer_store_byte v2, off, s[44:47], s58 sc1")
    a("s_mov_b32 s62, %d" % SPIN_GLB)
    a.label("L_slowpoll")
    a("buffer_load_dwordx2 v[4:5], off, s[44:47], s59 sc1")
    a("v_mov_b32 v8, 0")
    a("v_mov_b32 v9, 0")
    a("buffer_atomic_or_x2 v[8:9], off, s[44:47], s59 sc0 sc1")
    a("s_waitcnt vmcnt(0)")
    a("v_mov_b32 v12, 0")
    for k in range(2):
        a("v_and_b32 v13, 0xbfbfbfbf, v%d" % (4 + k))
        a("v_xor_b32 v13, s57, v13")
        a("v_and_b32 v14, 0x7f7f7f7f, v13")
        a("v_add_u32 v14, 0x7f7f7f7f, v14")
        a("v_or_b32 v14, v14, v13")
        a("v_not_b32 v14, v14")
        a("v_lshrrev_b32 v14, 1, v14")
        a("v_or_b32 v14, v14, v%d" % (8 + k))
        a("v_and_b32 v14, 0x40404040, v14")
        a("v_xor_b32 v14, 0x40404040, v14")
        a("v_or_b32 v12, v12, v14")
    a("s_nop 0")
    a("v_readfirstlane_b32 s60, v12")
    a("s_cmp_eq_u32 s60, 0")
    a("s_cbranch_scc1 L_slowok")
    a("s_sub_u32 s62, s62, 1")
    a("s_cbranch_scc1 L_slowok")
    a("s_sleep 32")
    a("s_branch L_slowpoll")
    a.label("L_slowok")
    a("s_mov_b64 exec, -1")
    lds_signal(F_MODE, 1)
    a("s_branch L_auxdone")
    a.label("L_auxfast")
    if not fast:
        a("s_branch L_auxslow")
    a("s_mov_b64 exec, -1")
    lds_signal(F_MODE, 2)
    a.label("L_auxdone")
    stamp(3)

    a.label("L_qmain")
    cm("---- Q wave: two 16-row tiles, loaded as the K/V stream drains ----")
    a("s_sub_u32 s57, s3, %d" % NKV)
    a("s_mul_i32 s57, s57, %d" % (3 * D // 2))
    a("s_lshr_b32 s57, s57, 3")
    a("s_add_u32 s57, s57, 1")
    lds_poll(F_TRIG, "s57", "T")
    stamp(1)
    def q_dma(k):
        t, n = divmod(k, 6)
        a("s_add_u32 m0, s56, %d" % (L_Q + t * 6144 + n * 1024))
        if t == 1 and n == 0:
            a("s_add_u32 s57, s56, 6144")
        else:
            a("s_nop 0")
        a("buffer_load_dwordx4 v%d, s[32:35], %s offen %s lds" % (140 + n, "s56" if t == 0 else "s57", ld))
    a("s_add_u32 s57, s56, 6144")
    def q_stream(qd, tag):
        flag_off, k_first = (F_UNP, qd - 1) if o["unpace"] else (F_READY, (qd - 1) if o["earlyall"] else (5 + qd))
        for k in range(12):
            if k >= qd:
                a("s_waitcnt vmcnt(%d)" % (qd - 1))
            q_dma(k)
            if o["early"] and k >= k_first and k < 11:
                a("ds_read_b32 v%d, v%d offset:%d" % (H1, H0, flag_off - F_TRIG))
                a("s_waitcnt lgkmcnt(0)")
                a("v_readfirstlane_b32 s63, v%d" % H1)
                a("s_cmp_ge_u32 s63, 3")
                a("s_cbranch_scc1 L_rest%s%d" % (tag, k + 1))
        a("s_branch L_allissued")
        for k in range(k_first + 1, 12):
            if not o["early"]:
                break
            a.label("L_rest%s%d" % (tag, k))
            q_dma(k)
    if o["qdepth2"]:
        a("s_cmp_ge_u32 s3, %d" % (NKV + o["q2from"]))
        a("s_cbranch_scc1 L_qs2")
        q_stream(qdepth, "a")
        a("s_branch L_allissued")
        a.label("L_qs2")
        q_stream(o["qdepth2"], "b")
    else:
        q_stream(qdepth, "")
    a.label("L_allissued")
    if not o["qland"]:
        lds_signal(F_QISS)
    amppt("qiss")
    stamp(2)

    a("v_and_b32 v138, 15, v0")
    a("v_lshrrev_b32 v139, 4, v0")
    a("v_lshrrev_b32 v132, 1, v138")
    a("v_xor_b32 v132, v132, v139")
    a("v_lshlrev_b32 v132, 4, v132")
    a("v_mul_u32_u24 v133, 384, v138")
    a("v_add_u32 v132, v132, v133")
    a("v_add_u32 v132, s56, v132")
    a("v_xor_b32 v133, 64, v132")
    a("v_and_b32 v134, 7, v0")
    a("v_mul_u32_u24 v134, %d, v134" % KP_STRIDE)
    a("v_lshl_add_u32 v134, v139, 4, v134")
    a("v_add_u32 v134, %d, v134" % L_KP)
    a("v_lshrrev_b32 v146, 2, v138")
    a("v_and_b32 v147, 3, v138")
    a("v_lshl_add_u32 v135, v146, 3, v147")
    a("v_lshlrev_b32 v135, 4, v135")
    a("v_and_b32 v147, 1, v139")
    a("v_lshl_add_u32 v135, v147, 3, v135")
    a("v_add_u32 v135, %d, v135" % L_VP)
    a("v_lshlrev_b32 v136, 4, v0")
    a("v_cmp_gt_u32 vcc, 32, v0")
    a("v_mov_b32 v137, 0")
    a("s_nop 0")
    a("v_cndmask_b32_e64 v137, v137, 1.0, vcc")
    a("s_waitcnt vmcnt(6)")
    for m in range(6):
        a("ds_read_b128 v[%d:%d], v%d offset:%d" % (52 + 4 * m, 55 + 4 * m, 132 + (m & 1), (m >> 1) * 128))
    lds_poll(F_READY, 3, "R")
    if o["qprio"] is not None:
        lab = a.newlabel("Lqp")
        a("s_cmp_ge_u32 s3, %d" % (NKV + 4))
        a("s_cbranch_scc0 %s" % lab)
        a("s_setprio %d" % o["qprio"])
        a.label(lab)
    stamp(4)
    for m in range(6):
        a("ds_read_b128 v[%d:%d], v134 offset:%d" % (4 + 4 * m, 7 + 4 * m, m * 64))
    for T in range(12):
        U, b = divmod(T, 2)
        a("ds_read_b64 v[%d:%d], v135 offset:%d" % (28 + 2 * T, 29 + 2 * T, (32 * U + 4 * b) * 16))
    a("s_mov_b32 s55, 0")
    a("s_waitcnt lgkmcnt(12)")
    a("s_branch L_tile1")
    a.label("L_tile")
    a("s_waitcnt vmcnt(6)")
    for m in range(6):
        a("ds_read_b128 v[%d:%d], v%d offset:%d" % (52 + 4 * m, 55 + 4 * m, 132 + (m & 1), (m >> 1) * 128))
    a("s_waitcnt lgkmcnt(0)")
    a.label("L_tile1")
    cm("scores^T = kp . Q^T (rows r replicated twice), softmax over the 8 projected keys")
    for m in range(6):
        a("v_mfma_f32_16x16x32_bf16 v[76:79], v[%d:%d], v[%d:%d], %s" % (4 + 4 * m, 7 + 4 * m, 52 + 4 * m, 55 + 4 * m, "0" if m == 0 else "v[76:79]"))
    a("s_add_u32 s58, s56, 4096")
    a("s_nop 6")
    Z = 76
    def rnd():
        a("v_cvt_pk_bf16_f32 v80, v76, v77")
        a("v_cvt_pk_bf16_f32 v81, v78, v79")
        a("v_lshlrev_b32 v76, 16, v80")
        a("v_and_b32 v77, 0xffff0000, v80")
        a("v_lshlrev_b32 v78, 16, v81")
        a("v_and_b32 v79, 0xffff0000, v81")
    if o["round_emul"]:
        rnd()
    for t in range(4):
        a("v_mul_f32 v%d, s50, v%d" % (Z + t, Z + t))
    if o["round_emul"]:
        rnd()
    a("v_max3_f32 v82, v76, v77, v78")
    a("v_max_f32 v82, v82, v79")
    a("v_mov_b32 v83, v82")
    a("s_nop 1")
    a("v_permlane16_swap_b32 v82, v83")
    a("s_nop 1")
    a("v_max_f32 v82, v82, v83")
    a("v_mul_f32 v82, s51, v82")
    for t in range(4):
        a("v_fma_f32 v%d, v%d, s51, -v82" % (Z + t, Z + t))
    for t in range(4):
        a("v_exp_f32 v%d, v%d" % (Z + t, Z + t))
    a("s_nop 0")
    a("v_add_f32 v82, v76, v77")
    a("v_add_f32 v83, v78, v79")
    a("v_add_f32 v82, v82, v83")
    a("v_mov_b32 v83, v82")
    a("s_nop 1")
    a("v_permlane16_swap_b32 v82, v83")
    a("s_nop 1")
    a("v_add_f32 v82, v82, v83")
    a("v_rcp_f32 v82, v82")
    a("s_nop 0")
    a("v_mul_f32 v82, v82, v137")
    for t in range(4):
        a("v_mul_f32 v%d, v%d, v82" % (Z + t, Z + t))
    a("v_cvt_pk_bf16_f32 v80, v76, v77")
    a("v_cvt_pk_bf16_f32 v81, v78, v79")
    a("s_waitcnt lgkmcnt(0)")
    a("s_nop 0")
    cm("out^T = vp^T . p^T, packed to bf16, turned row-major through the tile's LDS space")
    for T in range(12):
        a("v_mfma_f32_16x16x16_bf16 v[%d:%d], v[%d:%d], v[80:81], 0" % (84 + 4 * T, 87 + 4 * T, 28 + 2 * T, 29 + 2 * T))
    for U in range(6):
        da, db = 84 + 8 * U, 88 + 8 * U
        if U == 0:
            a("s_nop 1")
        a("v_cvt_pk_bf16_f32 v%d, v%d, v%d" % (da, da, da + 1))
        a("v_cvt_pk_bf16_f32 v%d, v%d, v%d" % (da + 1, da + 2, da + 3))
        a("v_cvt_pk_bf16_f32 v%d, v%d, v%d" % (da + 2, db, db + 1))
        a("v_cvt_pk_bf16_f32 v%d, v%d, v%d" % (da + 3, db + 2, db + 3))
        a("ds_write_b128 v%d, v[%d:%d] offset:%d" % (132 + (U & 1), da, da + 3, (U >> 1) * 128))
    a("s_waitcnt lgkmcnt(0)")
    lab = a.newlabel("Lqi")
    a("s_cmp_lg_u32 s55, 0")
    a("s_cbranch_scc1 %s" % lab)
    if o["qland"]:
        a("s_waitcnt vmcnt(0)")
        lds_signal(F_QISS)
    if o["qiss"]:
        lds_poll(F_QISS, 8, "I")
    a.label(lab)
    for n in range(6):
        a("v_add_u32 v%d, s56, v%d" % (84 + n, 140 + n))
    for n in range(6):
        a("ds_read_b128 v[%d:%d], v%d" % (52 + 4 * n, 55 + 4 * n, 84 + n))
    for n in range(6):
        a("s_waitcnt lgkmcnt(%d)" % (5 - n))
        so, imm = ("s56", n * 1024) if n < 4 else ("s58", (n - 4) * 1024)
        if o["stpace"] is not None and n >= 1:
            a("s_waitcnt vmcnt(%d)" % o["stpace"])
        a("buffer_store_dwordx4 v[%d:%d], v136, s[36:39], %s offen offset:%d %s" % (52 + 4 * n, 55 + 4 * n, so, imm, st))
    a("s_add_u32 s56, s56, 6144")
    a("v_add_u32 v132, 6144, v132")
    a("v_add_u32 v133, 6144, v133")
    a("s_add_u32 s55, s55, 1")
    a("s_cmp_lt_u32 s55, 2")
    a("s_cbranch_scc1 L_tile")
    stamp(5)
    a.label("L_fin")
    if o["amp"]:
        a("s_waitcnt vmcnt(0)")
        a("s_memrealtime s[84:85]")
        a("s_waitcnt lgkmcnt(0)")
        a("s_sub_u32 s86, %s, s94" % ("s84" if o["ampat"] is None else "s96"))
        a("s_mul_i32 s86, s86, %d" % o["amp"])
        a("s_add_u32 s86, s86, s84")
        a.label("L_amp")
        a("s_sleep 8")
        a("s_memrealtime s[84:85]")
        a("s_waitcnt lgkmcnt(0)")
        a("s_sub_u32 s87, s86, s84")
        a("s_cmp_gt_i32 s87, 0")
        a("s_cbranch_scc1 L_amp")
    if stamps:
        a("s_waitcnt vmcnt(0)")
        stamp(6)
        a("s_getreg_b32 s78, hwreg(HW_REG_XCC_ID)")
        a("s_cmp_lt_u32 s3, %d" % NKV)
        a("s_cselect_b32 s79, s79, 0")
        a("s_lshl_b32 s79, s79, 8")
        a("s_or_b32 s78, s78, s79")
        a("s_waitcnt lgkmcnt(0)")
        a("s_lshl_b32 s58, s2, 9")
        a("s_lshl_b32 s59, s3, 5")
        a("s_add_u32 s58, s58, s59")
        a("s_add_u32 s58, s58, %d" % STAMP_OFF)
        a("s_mov_b32 s40, s18"); a("s_mov_b32 s41, s19"); a("s_mov_b32 s42, 0x1000000"); a("s_mov_b32 s43, 0x20000")
        for i in range(7):
            a("v_mov_b32 v%d, s%d" % (4 + i, 64 + 2 * i))
        a("v_mov_b32 v11, s78")
        a("s_mov_b64 exec, 1")
        a("buffer_store_dwordx4 v[4:7], off, s[40:43], s58")
        a("buffer_store_dwordx4 v[8:11], off, s[40:43], s58 offset:16")
    a.label("L_end")
    a("s_endpgm")
    nsg = 102 if (o["amp"] or stamps) else 94
    return wrap(["; @launch grid=(256,1,1) block=(%d,1,1) lds=%d" % (NW * 64, LDS_BYTES)], [(KN, a.text(), NVGPR, nsg)])

def parse_kv(args):
    kw = {}
    for x in args:
        k, v = x.split("=", 1)
        if v in ("True", "False", "None"):
            v = eval(v)
        else:
            try: v = int(v)
            except ValueError: pass
        kw[k] = v
    return kw

if __name__ == "__main__":
    open(sys.argv[1], "w").write(gen(**parse_kv(sys.argv[2:])))
```

```python
import sys
from asmlib import *

L_Q = 0
L_E = 98304
L_KP = L_E + 8192
KP_STRIDE = 400
L_VP = L_KP + 8 * KP_STRIDE
L_FLAG = L_VP + 3072
LDS_BYTES = L_FLAG + 64
F_TRIG, F_READY, F_MODE, F_E, F_QISS, F_GO, F_UNP = 0, 4, 8, 12, 16, 20, 24
STAMP_OFF = 8 << 20
SPIN_LDS = 1 << 22
SPIN_GLB = 1 << 16
NKV, NQ = 3, 8
NW = NKV + NQ
RING, BR, ACC, AOP = 12, 76, 108, 140
H0, H1 = 148, 149
NVGPR = 152
D = 8

DEF = dict(ld="nt", st="nt", cld="nt", stamps=None, qdepth=3, fast=True, xmap="xcd", round_emul=True,
           auxdelay=0, goat=7, auxld="sc1", auxsleep=6, auxpolls=6, pipe=0, pipen=1, stpace=None, qprio=None, unpace=False, cdelay=0, qland=False, qiss=True, early=True, earlyall=False, qdepth2=None, q2from=4, ykv=0, rampoff=0, nbwait=True, nbsleep=1, amp=0, ampat=None, comments=True)

def gen(**kw):
    o = dict(DEF); o.update(kw)
    ld, st, stamps, qdepth, fast = o["ld"], o["st"], o["stamps"], o["qdepth"], o["fast"]
    a = Asm()
    def cm(t):
        if o["comments"]:
            a.raw("    ; " + t)
    def stamp(i):
        if stamps:
            a("s_memrealtime s[%d:%d]" % (64 + 2 * i, 65 + 2 * i))
    def amppt(name):
        if o["amp"] and o["ampat"] == name:
            a("s_memrealtime s[96:97]")
    def lds_poll(off, val, name, sleep=1):
        lab = a.newlabel("Lp" + name); done = a.newlabel("Ld" + name)
        a("s_mov_b32 s62, %d" % SPIN_LDS)
        a("v_mov_b32 v%d, %d" % (H0, L_FLAG + off))
        a.label(lab)
        a("ds_read_b32 v%d, v%d" % (H1, H0))
        a("s_waitcnt lgkmcnt(0)")
        a("v_readfirstlane_b32 s63, v%d" % H1)
        a("s_sub_u32 s62, s62, 1")
        a("s_cbranch_scc1 %s" % done)
        a("s_cmp_ge_u32 s63, %s" % val)
        a("s_cbranch_scc1 %s" % done)
        a("s_sleep %d" % sleep)
        a("s_branch %s" % lab)
        a.label(done)
    def lds_signal(off, val=1):
        a("v_mov_b32 v%d, %d" % (H0, L_FLAG + off))
        a("v_mov_b32 v%d, %d" % (H1, val))
        a("s_mov_b64 exec, 1")
        a("ds_add_u32 v%d, v%d" % (H0, H1))
        a("s_mov_b64 exec, -1")
    def kbase(vdst, sks):
        a("s_add_u32 s93, %s, s92" % sks)
        a("s_and_b32 s93, s93, 7")
        a("s_mul_i32 s93, s93, 24576")
        a("s_cmp_ge_u32 %s, 8" % sks)
        a("s_cselect_b32 s93, 0x1000000, s93")
        a("v_add_u32 v%d, s93, v5" % vdst)

    stamp(0)
    if o["amp"]:
        a("s_memrealtime s[94:95]")
        a("s_memrealtime s[96:97]")
    cm("workgroups past the 256 that carry data leave at once")
    a("s_cmp_ge_u32 s2, 256")
    a("s_cbranch_scc1 L_end")
    a("s_load_dwordx16 s[4:19], s[0:1], 0")
    a("v_lshrrev_b32 v1, 6, v0")
    a("v_and_b32 v0, 63, v0")
    a("v_readfirstlane_b32 s3, v1")
    cm("head = (wg>>6)*8 + (wg&7), j = (wg>>3)&7 : the 8 workgroups of a head normally share an XCD (speed only)")
    if o["xmap"] == "xcd":
        a("s_lshr_b32 s20, s2, 6")
        a("s_lshl_b32 s20, s20, 3")
        a("s_and_b32 s21, s2, 7")
        a("s_add_u32 s20, s20, s21")
        a("s_lshr_b32 s21, s2, 3")
        a("s_and_b32 s21, s21, 7")
    else:
        a("s_lshr_b32 s20, s2, 3")
        a("s_and_b32 s21, s2, 7")
    cm("phase 1 role: mat = j&1 (K or V), quarter = j>>1 (512 rows); phase 2 role: query rows [256j, 256j+256)")
    a("s_and_b32 s22, s21, 1")
    a("s_lshr_b32 s23, s21, 1")
    a("v_and_b32 v3, 7, v0")
    a("v_lshrrev_b32 v4, 3, v0")
    a("v_mul_u32_u24 v1, 3072, v4")
    a("v_lshl_add_u32 v1, v3, 4, v1")
    a("s_lshl_b32 s52, s3, 7")
    a("v_add_u32 v5, s52, v1")
    a("s_lshr_b32 s92, s2, 3")
    a("s_add_u32 s92, s92, s2")
    a("s_and_b32 s92, s92, 7")
    a("s_mul_i32 s93, s92, 24576")
    a("v_add_u32 v6, s93, v5")
    a("s_mul_i32 s58, s20, 786432")
    a("s_mul_i32 s59, s23, 196608")
    a("s_add_u32 s59, s59, s58")
    a("s_mov_b32 s26, 196608")
    a("s_mov_b32 s27, 0x20000")
    a("s_cmp_eq_u32 s22, 0")
    a("s_waitcnt lgkmcnt(0)")
    a("s_cselect_b32 s24, s6, s8")
    a("s_cselect_b32 s25, s7, s9")
    a("s_cselect_b32 s28, s10, s12")
    a("s_cselect_b32 s29, s11, s13")
    a("s_add_u32 s24, s24, s59")
    a("s_addc_u32 s25, s25, 0")
    a("s_cmp_ge_u32 s3, %d" % NKV)
    a("s_cbranch_scc1 L_notkv0")
    def xload(slot, vb, j):
        r = RING + 4 * slot
        a("buffer_load_dwordx4 v[%d:%d], v%d, s[24:27], 0 offen offset:%d %s" % (r, r + 3, vb, j * 384, ld))
    cm("K/V waves: first 8 row loads, then the projection rows of the first two 64-row steps")
    for n in range(D):
        xload(n, 6, n)
    a("s_mov_b32 s30, 32768")
    a("s_mov_b32 s31, 0x20000")
    a("v_lshlrev_b32 v2, 12, v3")
    a("v_lshl_add_u32 v2, v4, 4, v2")
    a("s_lshl_b32 s55, s23, 10")
    for h in range(2):
        a("s_add_u32 s93, s92, %d" % h)
        a("s_and_b32 s93, s93, 7")
        a("s_lshl_b32 s93, s93, 7")
        a("s_add_u32 s93, s93, s55")
        a("buffer_load_dwordx4 v[%d:%d], v2, s[28:31], s93 offen" % (AOP + 4 * h, AOP + 4 * h + 3))
    amppt("issued0")
    a.label("L_notkv0")
    a("s_mov_b32 s30, 32768")
    a("s_mov_b32 s31, 0x20000")
    a("s_mul_i32 s59, s21, 98304")
    a("s_add_u32 s58, s58, s59")
    a("s_add_u32 s32, s4, s58")
    a("s_addc_u32 s33, s5, 0")
    a("s_mov_b32 s34, 98304")
    a("s_mov_b32 s35, 0x20000")
    a("s_add_u32 s36, s14, s58")
    a("s_addc_u32 s37, s15, 0")
    a("s_mov_b32 s38, 98304")
    a("s_mov_b32 s39, 0x20000")
    a("s_mul_i32 s58, s20, 49152")
    a("s_add_u32 s40, s18, s58")
    a("s_addc_u32 s41, s19, 0")
    a("s_mov_b32 s42, 49152")
    a("s_mov_b32 s43, 0x20000")
    a("s_mov_b32 s44, s16")
    a("s_mov_b32 s45, s17")
    a("s_mov_b32 s46, 256")
    a("s_mov_b32 s47, 0x20000")
    a("s_mov_b32 s48, 0x05040100")
    a("s_mov_b32 s49, 0x07060302")
    a("s_mov_b32 s50, 0x3d93cd3a")
    a("s_mov_b32 s51, 0x3fb8aa3b")
    a("s_lshl_b32 s53, s22, 2")
    a("s_add_u32 s53, s53, s23")
    a("s_mul_i32 s53, s53, 6144")
    a("s_cmp_lg_u32 s3, %d" % (NW - 1))
    a("s_cbranch_scc1 L_noinit")
    a("v_lshlrev_b32 v110, 2, v0")
    a("v_add_u32 v110, %d, v110" % L_FLAG)
    a("v_mov_b32 v111, 0")
    a("s_mov_b64 exec, 0xffff")
    a("ds_write_b32 v110, v111")
    a("s_mov_b64 exec, -1")
    a("s_waitcnt lgkmcnt(0)")
    a.label("L_noinit")
    a("s_cmp_ge_u32 s3, %d" % NKV)
    a("s_cbranch_scc1 L_qwave")

    cm("---- K/V wave tau = wave id: 128-byte column third tau of 512 rows, 8 steps of 64 rows ----")
    for r in range(ACC, ACC + 32):
        a("v_mov_b32 v%d, 0" % r)
    a("v_lshlrev_b32 v11, 4, v0")
    a("v_add_u32 v11, %d, v11" % L_E)
    a("s_mov_b32 s54, 0")
    a("s_setprio 2")
    a("s_barrier")
    a.label("L_kvloop")
    qs = [1, 2]
    a("s_lshl_b32 s55, s54, 1")
    for k, q in enumerate(qs):
        a("s_add_u32 s56, s55, %d" % q)
        kbase(6 + k, "s56")
    for i in range(8):
        a("s_waitcnt vmcnt(%d)" % (D - 2 - o["ykv"]))
        for u in range(2):
            n = 2 * i + u + D
            xload(n % 16, 6 + qs.index(n // 8), n % 8)
        if 4 - o["rampoff"] <= i < 8 - o["rampoff"]:
            lab = a.newlabel("Lnt")
            a("s_cmp_lg_u32 s54, 3")
            a("s_cbranch_scc1 %s" % lab)
            lds_signal(F_TRIG)
            a.label(lab)
        jj = i % 4
        if jj == 2:
            h = i // 4
            labs = a.newlabel("Lsk")
            a("s_cmp_eq_u32 s54, 0")
            a("s_cbranch_scc1 %s" % labs)
            if h == 0:
                lab = a.newlabel("Lne")
                a("s_cmp_lg_u32 s54, 1")
                a("s_cbranch_scc1 %s" % lab)
                lds_poll(F_E, 1, "E")
                a.label(lab)
            a("s_add_u32 s93, s55, s92")
            if h:
                a("s_add_u32 s93, s93, 1")
            a("s_and_b32 s93, s93, 7")
            a("s_lshl_b32 s93, s93, 10")
            a("v_add_u32 v10, s93, v11")
            a("ds_read_b128 v[%d:%d], v10" % (AOP + 4 * h, AOP + 4 * h + 3))
            a.label(labs)
        r0 = RING + 8 * i; r1 = r0 + 4
        for m in range(4):
            a("v_perm_b32 v%d, v%d, v%d, s48" % (BR + 4 * (2 * m) + jj, r1 + m, r0 + m))
            a("v_perm_b32 v%d, v%d, v%d, s49" % (BR + 4 * (2 * m + 1) + jj, r1 + m, r0 + m))
        if jj == 3:
            h = i // 4
            a("s_waitcnt lgkmcnt(0)")
            a("s_nop 0")
            for e in range(8):
                a("v_mfma_f32_16x16x32_bf16 v[%d:%d], v[%d:%d], v[%d:%d], v[%d:%d]" % (ACC + 4 * e, ACC + 3 + 4 * e, AOP + 4 * h, AOP + 4 * h + 3, BR + 4 * e, BR + 3 + 4 * e, ACC + 4 * e, ACC + 3 + 4 * e))
        if o["goat"] is not None and i == o["goat"]:
            lab = a.newlabel("Lgo")
            a("s_cmp_lg_u32 s54, 0")
            a("s_cbranch_scc1 %s" % lab)
            lds_signal(F_GO)
            a.label(lab)
    a("s_add_u32 s54, s54, 1")
    a("s_cmp_lt_u32 s54, 4")
    a("s_cbranch_scc1 L_kvloop")
    for _ in range(max(0, -o["rampoff"])):
        lds_signal(F_TRIG)
    stamp(1)
    amppt("kvend")
    cm("---- add the two row-parity halves, publish the partial (never the word 0xffffffff, which marks 'not yet written') ----")
    a("s_mov_b32 s52, s3")
    a("v_lshrrev_b32 v9, 5, v0")
    a("v_lshlrev_b32 v9, 10, v9")
    a("v_bfe_u32 v8, v0, 4, 1")
    a("v_lshl_add_u32 v9, v8, 7, v9")
    a("v_and_b32 v8, 7, v0")
    a("v_lshl_add_u32 v9, v8, 4, v9")
    a("s_lshl_b32 s58, s52, 11")
    a("v_add_u32 v9, s58, v9")
    a("v_lshlrev_b32 v3, 4, v0")
    a("v_add_u32 v3, s58, v3")
    a("v_mov_b32 v%d, %d" % (H0, L_FLAG))
    a("ds_read_b32 v%d, v%d offset:%d" % (H1, H0, F_MODE))
    for e in range(4):
        for t in range(4):
            a("v_permlane32_swap_b32 v%d, v%d" % (ACC + 4 * e + t, ACC + 16 + 4 * e + t))
    for e in range(4):
        for t in range(4):
            x = ACC + 4 * e + t; y = ACC + 16 + 4 * e + t
            a("v_add_f32_dpp v%d, v%d, v%d row_ror:8 row_mask:0xf bank_mask:0xf" % (x, y, x))
    for e in range(4):
        for t in range(4):
            x = ACC + 4 * e + t
            a("v_min_u32 v%d, -2, v%d" % (x, x))
    a("s_waitcnt lgkmcnt(0)")
    a("v_readfirstlane_b32 s63, v%d" % H1)
    a("s_cmp_lg_u32 s63, 0")
    a("s_cbranch_scc1 L_modeok")
    lds_poll(F_MODE, 1, "M")
    a.label("L_modeok")
    a("s_mov_b32 s61, s63")
    a("s_mov_b32 exec_lo, 0x00ff00ff")
    a("s_mov_b32 exec_hi, 0x00ff00ff")
    a("s_cmp_eq_u32 s61, 2")
    a("s_cbranch_scc1 L_pubfast")
    for e in range(4):
        a("buffer_store_dwordx4 v[%d:%d], v9, s[40:43], s53 offen offset:%d sc1" % (ACC + 4 * e, ACC + 3 + 4 * e, e * 256))
    a("s_branch L_pubdone")
    a.label("L_pubfast")
    for e in range(4):
        a("buffer_store_dwordx4 v[%d:%d], v9, s[40:43], s53 offen offset:%d" % (ACC + 4 * e, ACC + 3 + 4 * e, e * 256))
    a.label("L_pubdone")
    a("s_mov_b64 exec, -1")
    stamp(2)
    cm("---- collect the 8 partials of this column third; a producer is taken once none of its words is 0xffffffff ----")
    C = RING
    a("s_mov_b32 s57, 0xff")
    a("s_mov_b32 s62, %d" % SPIN_GLB)
    if o["cdelay"]:
        a("s_sleep %d" % o["cdelay"])
    def issue_pending(fl):
        for p in range(8):
            lab = a.newlabel("Lc")
            a("s_bitcmp1_b32 s57, %d" % p)
            a("s_cbranch_scc0 %s" % lab)
            a("s_mov_b32 s58, %d" % (p * 6144))
            for i in range(2):
                r = C + 4 * (p * 2 + i)
                a("buffer_load_dwordx4 v[%d:%d], v3, s[40:43], s58 offen offset:%d %s" % (r, r + 3, i * 1024, fl))
            a.label(lab)
    if o["pipe"] and o["pipen"] > 1:
        a("s_mov_b32 s56, 0")
    a.label("L_collect")
    a("s_cmp_eq_u32 s61, 2")
    a("s_cbranch_scc0 L_colslow")
    if o["pipe"] and o["pipen"] > 1:
        a("s_cmp_eq_u32 s56, 0")
        a("s_cselect_b32 s56, %d, s56" % o["pipen"])
        a("s_sub_u32 s56, s56, 1")
        a("s_cmp_eq_u32 s56, %d" % (o["pipen"] - 1))
        a("s_cbranch_scc0 L_colnoissue")
    issue_pending(o["cld"])
    a("s_branch L_colwait")
    a.label("L_colslow")
    issue_pending("sc1")
    a.label("L_colwait")
    if o["unpace"]:
        lab = a.newlabel("Lun")
        a("s_cmp_eq_u32 s62, %d" % (SPIN_GLB - 1))
        a("s_cbranch_scc0 %s" % lab)
        lds_signal(F_UNP)
        a.label(lab)
    a("v_bfe_u32 v6, v0, 3, 1")
    a("v_and_b32 v7, 7, v0")
    a("v_lshrrev_b32 v2, 4, v0")
    a("v_mul_u32_u24 v140, %d, v6" % (4 * KP_STRIDE))
    a("v_lshl_add_u32 v140, v7, 4, v140")
    a("v_lshl_add_u32 v140, v2, 1, v140")
    a("s_lshl_b32 s58, s52, 7")
    a("s_add_u32 s58, s58, %d" % L_KP)
    a("v_add_u32 v140, s58, v140")
    a("v_lshl_add_u32 v141, v7, 3, v2")
    a("v_lshlrev_b32 v141, 4, v141")
    a("v_lshl_add_u32 v141, v6, 3, v141")
    a("s_lshl_b32 s58, s52, 10")
    a("s_add_u32 s58, s58, %d" % L_VP)
    a("v_add_u32 v141, s58, v141")
    if o["pipe"]:
        a("s_cmp_eq_u32 s62, %d" % SPIN_GLB)
        a("s_cbranch_scc1 L_colw0")
        a("s_cmp_eq_u32 s61, 2")
        a("s_cbranch_scc0 L_colw0")
        a.label("L_colnoissue")
        a("s_sleep %d" % o["pipe"])
        a("s_branch L_colchk")
        a.label("L_colw0")
    a("s_waitcnt vmcnt(0)")
    if o["pipe"] and o["pipen"] > 1:
        a("s_mov_b32 s56, 0")
    a.label("L_colchk")
    if stamps:
        lab = a.newlabel("Lfa")
        a("s_cmp_eq_u32 s62, %d" % SPIN_GLB)
        a("s_cbranch_scc0 %s" % lab)
        stamp(7)
        a.label(lab)
    for p in range(8):
        lab = a.newlabel("Lk")
        r = C + 8 * p
        a("s_bitcmp1_b32 s57, %d" % p)
        a("s_cbranch_scc0 %s" % lab)
        a("v_max3_u32 v8, v%d, v%d, v%d" % (r, r + 1, r + 2))
        a("v_max3_u32 v8, v8, v%d, v%d" % (r + 3, r + 4))
        a("v_max3_u32 v8, v8, v%d, v%d" % (r + 5, r + 6))
        a("v_max_u32 v8, v8, v%d" % (r + 7))
        a("v_cmp_eq_u32 vcc, -1, v8")
        a("s_cbranch_vccnz %s" % lab)
        a("s_bitset0_b32 s57, %d" % p)
        a.label(lab)
    a("s_cmp_eq_u32 s57, 0")
    a("s_cbranch_scc1 L_collected0")
    a("s_sub_u32 s62, s62, 1")
    a("s_cbranch_scc0 L_collect")
    a.label("L_collected0")
    if o["unpace"]:
        a("s_cmp_eq_u32 s62, %d" % SPIN_GLB)
        a("s_cbranch_scc0 L_collected")
        lds_signal(F_UNP)
    a.label("L_collected")
    stamp(3)
    S = BR
    for m in range(2):
        for i in range(2):
            for t in range(0, 4, 2):
                q = [C + 4 * (2 * (4 * m + k) + i) + t for k in range(4)]
                d = S + 8 * m + 4 * i + t
                a("v_pk_add_f32 v[%d:%d], v[%d:%d], v[%d:%d]" % (d, d + 1, q[0], q[0] + 1, q[1], q[1] + 1))
                a("v_pk_add_f32 v[%d:%d], v[%d:%d], v[%d:%d]" % (d + 16, d + 17, q[2], q[2] + 1, q[3], q[3] + 1))
    for m in range(2):
        for i in range(2):
            for t in range(0, 4, 2):
                d = S + 8 * m + 4 * i + t
                a("v_pk_add_f32 v[%d:%d], v[%d:%d], v[%d:%d]" % (d, d + 1, d, d + 1, d + 16, d + 17))
    P = ACC + 16
    for i in range(2):
        b = S + 4 * i
        a("v_cvt_pk_bf16_f32 v%d, v%d, v%d" % (P + 2 * i, b, b + 1))
        a("v_cvt_pk_bf16_f32 v%d, v%d, v%d" % (P + 1 + 2 * i, b + 2, b + 3))
    for i in range(2):
        a("ds_write_b16 v140, v%d offset:%d" % (P + 2 * i, 0 * KP_STRIDE + 8 * i))
        a("ds_write_b16_d16_hi v140, v%d offset:%d" % (P + 2 * i, 1 * KP_STRIDE + 8 * i))
        a("ds_write_b16 v140, v%d offset:%d" % (P + 1 + 2 * i, 2 * KP_STRIDE + 8 * i))
        a("ds_write_b16_d16_hi v140, v%d offset:%d" % (P + 1 + 2 * i, 3 * KP_STRIDE + 8 * i))
    for i in range(2):
        b = S + 8 + 4 * i
        a("v_cvt_pk_bf16_f32 v%d, v%d, v%d" % (P + 4 + 2 * i, b, b + 1))
        a("v_cvt_pk_bf16_f32 v%d, v%d, v%d" % (P + 5 + 2 * i, b + 2, b + 3))
    for i in range(2):
        a("ds_write_b64 v141, v[%d:%d] offset:%d" % (P + 4 + 2 * i, P + 5 + 2 * i, 64 * i))
    a("s_waitcnt lgkmcnt(0)")
    lds_signal(F_READY)
    amppt("ready")
    stamp(4)
    if stamps:
        a("s_waitcnt lgkmcnt(0)")
        a("s_mov_b32 s74, s78")
        a("s_sub_u32 s79, %d, s62" % SPIN_GLB)
    a("s_branch L_fin")

    a.label("L_qwave")
    a("s_barrier")
    cm("LDS-DMA lane offsets: 16-byte chunks are XOR-swizzled inside each 128-byte line (conflict-free fragment reads)")
    for n in range(6):
        a("v_add_u32 v110, %d, v0" % (64 * n))
        a("v_mul_u32_u24 v111, 2731, v110")
        a("v_lshrrev_b32 v111, 17, v111")
        a("v_and_b32 v111, 7, v111")
        a("v_lshlrev_b32 v111, 4, v111")
        a("v_lshlrev_b32 v110, 4, v110")
        a("v_xor_b32 v%d, v110, v111" % (140 + n))
    a("s_sub_u32 s55, s3, %d" % NKV)
    a("s_mul_i32 s56, s55, 12288")
    a("s_cmp_eq_u32 s3, %d" % (NKV + 0))
    a("s_cbranch_scc1 L_aux")
    a("s_cmp_eq_u32 s3, %d" % (NKV + 1))
    a("s_cbranch_scc0 L_qmain")
    cm("stage the projection rows of this workgroup's 512 K/V rows in LDS, in MFMA A-operand order")
    a("v_and_b32 v3, 7, v0")
    a("v_lshrrev_b32 v4, 3, v0")
    a("v_lshlrev_b32 v2, 12, v3")
    a("v_lshl_add_u32 v2, v4, 4, v2")
    a("s_lshl_b32 s58, s23, 10")
    for k in range(8):
        a("s_mov_b32 m0, %d" % (L_E + k * 1024))
        a("s_nop 0")
        a("buffer_load_dwordx4 v2, s[28:31], s58 offen lds")
        if k < 7:
            a("s_add_u32 s58, s58, 128")
    a("s_waitcnt vmcnt(0)")
    lds_signal(F_E)
    a("s_branch L_qmain")

    a.label("L_aux")
    cm("mark the own partial slot 'not yet written', then find out how the slot can be handed to the other 7 workgroups")
    if o["goat"] is not None:
        cm("(starts once the K/V stream is flowing, so that these stores do not sit in front of the first cold loads)")
        lds_poll(F_GO, 1, "G", sleep=4)
    for _ in range(o["auxdelay"] // 127):
        a("s_sleep 127")
    if o["auxdelay"] % 127:
        a("s_sleep %d" % (o["auxdelay"] % 127))
    a("v_lshlrev_b32 v1, 4, v0")
    for r in range(12, 16):
        a("v_mov_b32 v%d, -1" % r)
    def clear(fl):
        a("s_mov_b32 s58, s53")
        for n in range(6):
            if n == 4:
                a("s_add_u32 s58, s58, 4096")
            a("buffer_store_dwordx4 v[12:15], v1, s[40:43], s58 offen offset:%d %s" % ((n % 4) * 1024, fl))
        a("s_waitcnt vmcnt(0)")
    clear("")
    a("s_getreg_b32 s57, hwreg(HW_REG_XCC_ID)")
    a("s_and_b32 s57, s57, 7")
    a("s_or_b32 s57, s57, 0x80")
    a("v_mov_b32 v2, s57")
    a("s_lshl_b32 s59, s20, 3")
    a("s_add_u32 s58, s59, s21")
    a("s_mul_i32 s57, s57, 0x01010101")
    a("s_mov_b64 exec, 1")
    a("buffer_store_byte v2, off, s[44:47], s58")
    a("s_mov_b32 s62, %d" % o["auxpolls"])
    a.label("L_auxpoll")
    a("s_sleep %d" % o["auxsleep"])
    a("buffer_load_dwordx2 v[4:5], off, s[44:47], s59 %s" % o["auxld"])
    a("s_waitcnt vmcnt(0)")
    for k in range(2):
        a("v_and_b32 v%d, 0xbfbfbfbf, v%d" % (4 + k, 4 + k))
        a("v_xor_b32 v%d, s57, v%d" % (4 + k, 4 + k))
    a("v_or_b32 v4, v4, v5")
    a("s_nop 0")
    a("v_readfirstlane_b32 s60, v4")
    a("s_cmp_eq_u32 s60, 0")
    a("s_cbranch_scc1 L_auxfast")
    a("s_sub_u32 s62, s62, 1")
    a("s_cbranch_scc0 L_auxpoll")
    cm("no proof that all 8 workgroups run on this XCD: clear again write-through and wait for the others at device scope")
    a.label("L_auxslow")
    a("s_mov_b64 exec, -1")
    clear("sc1")
    a("s_add_u32 s58, s59, s21")
    a("s_or_b32 s60, s57, 0x40")
    a("v_mov_b32 v2, s60")
    a("s_mov_b64 exec, 1")
    a("buffer_store_byte v2, off, s[44:47], s58 sc1")
    a("s_mov_b32 s62, %d" % SPIN_GLB)
    a.label("L_slowpoll")
    a("buffer_load_dwordx2 v[4:5], off, s[44:47], s59 sc1")
    a("v_mov_b32 v8, 0")
    a("v_mov_b32 v9, 0")
    a("buffer_atomic_or_x2 v[8:9], off, s[44:47], s59 sc0 sc1")
    a("s_waitcnt vmcnt(0)")
    a("v_mov_b32 v12, 0")
    for k in range(2):
        a("v_and_b32 v13, 0xbfbfbfbf, v%d" % (4 + k))
        a("v_xor_b32 v13, s57, v13")
        a("v_and_b32 v14, 0x7f7f7f7f, v13")
        a("v_add_u32 v14, 0x7f7f7f7f, v14")
        a("v_or_b32 v14, v14, v13")
        a("v_not_b32 v14, v14")
        a("v_lshrrev_b32 v14, 1, v14")
        a("v_or_b32 v14, v14, v%d" % (8 + k))
        a("v_and_b32 v14, 0x40404040, v14")
        a("v_xor_b32 v14, 0x40404040, v14")
        a("v_or_b32 v12, v12, v14")
    a("s_nop 0")
    a("v_readfirstlane_b32 s60, v12")
    a("s_cmp_eq_u32 s60, 0")
    a("s_cbranch_scc1 L_slowok")
    a("s_sub_u32 s62, s62, 1")
    a("s_cbranch_scc1 L_slowok")
    a("s_sleep 32")
    a("s_branch L_slowpoll")
    a.label("L_slowok")
    a("s_mov_b64 exec, -1")
    lds_signal(F_MODE, 1)
    a("s_branch L_auxdone")
    a.label("L_auxfast")
    if not fast:
        a("s_branch L_auxslow")
    a("s_mov_b64 exec, -1")
    lds_signal(F_MODE, 2)
    a.label("L_auxdone")
    stamp(3)

    a.label("L_qmain")
    cm("---- Q wave: two 16-row tiles, loaded as the K/V stream drains ----")
    a("s_sub_u32 s57, s3, %d" % NKV)
    a("s_mul_i32 s57, s57, %d" % (3 * D // 2))
    a("s_lshr_b32 s57, s57, 3")
    a("s_add_u32 s57, s57, 1")
    lds_poll(F_TRIG, "s57", "T")
    stamp(1)
    def q_dma(k):
        t, n = divmod(k, 6)
        a("s_add_u32 m0, s56, %d" % (L_Q + t * 6144 + n * 1024))
        if t == 1 and n == 0:
            a("s_add_u32 s57, s56, 6144")
        else:
            a("s_nop 0")
        a("buffer_load_dwordx4 v%d, s[32:35], %s offen %s lds" % (140 + n, "s56" if t == 0 else "s57", ld))
    a("s_add_u32 s57, s56, 6144")
    def q_stream(qd, tag):
        flag_off, k_first = (F_UNP, qd - 1) if o["unpace"] else (F_READY, (qd - 1) if o["earlyall"] else (5 + qd))
        if o["nbwait"]:
            for k in range(12):
                if k >= qd:
                    lab = a.newlabel("Lnb"); go = a.newlabel("Lnbg")
                    a.label(lab)
                    a("s_getreg_b32 s63, hwreg(HW_REG_IB_STS, 0, 4)")
                    a("s_cmp_le_u32 s63, %d" % (qd - 1))
                    a("s_cbranch_scc1 %s" % go)
                    a("ds_read_b32 v%d, v%d offset:%d" % (H1, H0, (F_UNP if o["unpace"] else F_READY) - F_TRIG))
                    a("s_waitcnt lgkmcnt(0)")
                    a("v_readfirstlane_b32 s63, v%d" % H1)
                    a("s_cmp_ge_u32 s63, 3")
                    a("s_cbranch_scc1 L_rest%s%d" % (tag, k))
                    if o["nbsleep"]:
                        a("s_sleep %d" % o["nbsleep"])
                    a("s_branch %s" % lab)
                    a.label(go)
                q_dma(k)
            a("s_branch L_allissued")
            for k in range(qd, 12):
                a.label("L_rest%s%d" % (tag, k))
                q_dma(k)
            return
        for k in range(12):
            if k >= qd:
                a("s_waitcnt vmcnt(%d)" % (qd - 1))
            q_dma(k)
            if o["early"] and k >= k_first and k < 11:
                a("ds_read_b32 v%d, v%d offset:%d" % (H1, H0, flag_off - F_TRIG))
                a("s_waitcnt lgkmcnt(0)")
                a("v_readfirstlane_b32 s63, v%d" % H1)
                a("s_cmp_ge_u32 s63, 3")
                a("s_cbranch_scc1 L_rest%s%d" % (tag, k + 1))
        a("s_branch L_allissued")
        for k in range(k_first + 1, 12):
            if not o["early"]:
                break
            a.label("L_rest%s%d" % (tag, k))
            q_dma(k)
    if o["qdepth2"]:
        a("s_cmp_ge_u32 s3, %d" % (NKV + o["q2from"]))
        a("s_cbranch_scc1 L_qs2")
        q_stream(qdepth, "a")
        a("s_branch L_allissued")
        a.label("L_qs2")
        q_stream(o["qdepth2"], "b")
    else:
        q_stream(qdepth, "")
    a.label("L_allissued")
    if not o["qland"]:
        lds_signal(F_QISS)
    amppt("qiss")
    stamp(2)

    a("v_and_b32 v138, 15, v0")
    a("v_lshrrev_b32 v139, 4, v0")
    a("v_lshrrev_b32 v132, 1, v138")
    a("v_xor_b32 v132, v132, v139")
    a("v_lshlrev_b32 v132, 4, v132")
    a("v_mul_u32_u24 v133, 384, v138")
    a("v_add_u32 v132, v132, v133")
    a("v_add_u32 v132, s56, v132")
    a("v_xor_b32 v133, 64, v132")
    a("v_and_b32 v134, 7, v0")
    a("v_mul_u32_u24 v134, %d, v134" % KP_STRIDE)
    a("v_lshl_add_u32 v134, v139, 4, v134")
    a("v_add_u32 v134, %d, v134" % L_KP)
    a("v_lshrrev_b32 v146, 2, v138")
    a("v_and_b32 v147, 3, v138")
    a("v_lshl_add_u32 v135, v146, 3, v147")
    a("v_lshlrev_b32 v135, 4, v135")
    a("v_and_b32 v147, 1, v139")
    a("v_lshl_add_u32 v135, v147, 3, v135")
    a("v_add_u32 v135, %d, v135" % L_VP)
    a("v_lshlrev_b32 v136, 4, v0")
    a("v_cmp_gt_u32 vcc, 32, v0")
    a("v_mov_b32 v137, 0")
    a("s_nop 0")
    a("v_cndmask_b32_e64 v137, v137, 1.0, vcc")
    a("s_waitcnt vmcnt(6)")
    for m in range(6):
        a("ds_read_b128 v[%d:%d], v%d offset:%d" % (52 + 4 * m, 55 + 4 * m, 132 + (m & 1), (m >> 1) * 128))
    lds_poll(F_READY, 3, "R")
    if o["qprio"] is not None:
        lab = a.newlabel("Lqp")
        a("s_cmp_ge_u32 s3, %d" % (NKV + 4))
        a("s_cbranch_scc0 %s" % lab)
        a("s_setprio %d" % o["qprio"])
        a.label(lab)
    stamp(4)
    for m in range(6):
        a("ds_read_b128 v[%d:%d], v134 offset:%d" % (4 + 4 * m, 7 + 4 * m, m * 64))
    for T in range(12):
        U, b = divmod(T, 2)
        a("ds_read_b64 v[%d:%d], v135 offset:%d" % (28 + 2 * T, 29 + 2 * T, (32 * U + 4 * b) * 16))
    a("s_mov_b32 s55, 0")
    a("s_waitcnt lgkmcnt(12)")
    a("s_branch L_tile1")
    a.label("L_tile")
    a("s_waitcnt vmcnt(6)")
    for m in range(6):
        a("ds_read_b128 v[%d:%d], v%d offset:%d" % (52 + 4 * m, 55 + 4 * m, 132 + (m & 1), (m >> 1) * 128))
    a("s_waitcnt lgkmcnt(0)")
    a.label("L_tile1")
    cm("scores^T = kp . Q^T (rows r replicated twice), softmax over the 8 projected keys")
    for m in range(6):
        a("v_mfma_f32_16x16x32_bf16 v[76:79], v[%d:%d], v[%d:%d], %s" % (4 + 4 * m, 7 + 4 * m, 52 + 4 * m, 55 + 4 * m, "0" if m == 0 else "v[76:79]"))
    a("s_add_u32 s58, s56, 4096")
    a("s_nop 6")
    Z = 76
    def rnd():
        a("v_cvt_pk_bf16_f32 v80, v76, v77")
        a("v_cvt_pk_bf16_f32 v81, v78, v79")
        a("v_lshlrev_b32 v76, 16, v80")
        a("v_and_b32 v77, 0xffff0000, v80")
        a("v_lshlrev_b32 v78, 16, v81")
        a("v_and_b32 v79, 0xffff0000, v81")
    if o["round_emul"]:
        rnd()
    for t in range(4):
        a("v_mul_f32 v%d, s50, v%d" % (Z + t, Z + t))
    if o["round_emul"]:
        rnd()
    a("v_max3_f32 v82, v76, v77, v78")
    a("v_max_f32 v82, v82, v79")
    a("v_mov_b32 v83, v82")
    a("s_nop 1")
    a("v_permlane16_swap_b32 v82, v83")
    a("s_nop 1")
    a("v_max_f32 v82, v82, v83")
    a("v_mul_f32 v82, s51, v82")
    for t in range(4):
        a("v_fma_f32 v%d, v%d, s51, -v82" % (Z + t, Z + t))
    for t in range(4):
        a("v_exp_f32 v%d, v%d" % (Z + t, Z + t))
    a("s_nop 0")
    a("v_add_f32 v82, v76, v77")
    a("v_add_f32 v83, v78, v79")
    a("v_add_f32 v82, v82, v83")
    a("v_mov_b32 v83, v82")
    a("s_nop 1")
    a("v_permlane16_swap_b32 v82, v83")
    a("s_nop 1")
    a("v_add_f32 v82, v82, v83")
    a("v_rcp_f32 v82, v82")
    a("s_nop 0")
    a("v_mul_f32 v82, v82, v137")
    for t in range(4):
        a("v_mul_f32 v%d, v%d, v82" % (Z + t, Z + t))
    a("v_cvt_pk_bf16_f32 v80, v76, v77")
    a("v_cvt_pk_bf16_f32 v81, v78, v79")
    a("s_waitcnt lgkmcnt(0)")
    a("s_nop 0")
    cm("out^T = vp^T . p^T, packed to bf16, turned row-major through the tile's LDS space")
    for T in range(12):
        a("v_mfma_f32_16x16x16_bf16 v[%d:%d], v[%d:%d], v[80:81], 0" % (84 + 4 * T, 87 + 4 * T, 28 + 2 * T, 29 + 2 * T))
    for U in range(6):
        da, db = 84 + 8 * U, 88 + 8 * U
        if U == 0:
            a("s_nop 1")
        a("v_cvt_pk_bf16_f32 v%d, v%d, v%d" % (da, da, da + 1))
        a("v_cvt_pk_bf16_f32 v%d, v%d, v%d" % (da + 1, da + 2, da + 3))
        a("v_cvt_pk_bf16_f32 v%d, v%d, v%d" % (da + 2, db, db + 1))
        a("v_cvt_pk_bf16_f32 v%d, v%d, v%d" % (da + 3, db + 2, db + 3))
        a("ds_write_b128 v%d, v[%d:%d] offset:%d" % (132 + (U & 1), da, da + 3, (U >> 1) * 128))
    a("s_waitcnt lgkmcnt(0)")
    lab = a.newlabel("Lqi")
    a("s_cmp_lg_u32 s55, 0")
    a("s_cbranch_scc1 %s" % lab)
    if o["qland"]:
        a("s_waitcnt vmcnt(0)")
        lds_signal(F_QISS)
    if o["qiss"]:
        lds_poll(F_QISS, 8, "I")
    a.label(lab)
    for n in range(6):
        a("v_add_u32 v%d, s56, v%d" % (84 + n, 140 + n))
    for n in range(6):
        a("ds_read_b128 v[%d:%d], v%d" % (52 + 4 * n, 55 + 4 * n, 84 + n))
    for n in range(6):
        a("s_waitcnt lgkmcnt(%d)" % (5 - n))
        so, imm = ("s56", n * 1024) if n < 4 else ("s58", (n - 4) * 1024)
        if o["stpace"] is not None and n >= 1:
            a("s_waitcnt vmcnt(%d)" % o["stpace"])
        a("buffer_store_dwordx4 v[%d:%d], v136, s[36:39], %s offen offset:%d %s" % (52 + 4 * n, 55 + 4 * n, so, imm, st))
    a("s_add_u32 s56, s56, 6144")
    a("v_add_u32 v132, 6144, v132")
    a("v_add_u32 v133, 6144, v133")
    a("s_add_u32 s55, s55, 1")
    a("s_cmp_lt_u32 s55, 2")
    a("s_cbranch_scc1 L_tile")
    stamp(5)
    a.label("L_fin")
    if o["amp"]:
        a("s_waitcnt vmcnt(0)")
        a("s_memrealtime s[84:85]")
        a("s_waitcnt lgkmcnt(0)")
        a("s_sub_u32 s86, %s, s94" % ("s84" if o["ampat"] is None else "s96"))
        a("s_mul_i32 s86, s86, %d" % o["amp"])
        a("s_add_u32 s86, s86, s84")
        a.label("L_amp")
        a("s_sleep 8")
        a("s_memrealtime s[84:85]")
        a("s_waitcnt lgkmcnt(0)")
        a("s_sub_u32 s87, s86, s84")
        a("s_cmp_gt_i32 s87, 0")
        a("s_cbranch_scc1 L_amp")
    if stamps:
        a("s_waitcnt vmcnt(0)")
        stamp(6)
        a("s_getreg_b32 s78, hwreg(HW_REG_XCC_ID)")
        a("s_cmp_lt_u32 s3, %d" % NKV)
        a("s_cselect_b32 s79, s79, 0")
        a("s_lshl_b32 s79, s79, 8")
        a("s_or_b32 s78, s78, s79")
        a("s_waitcnt lgkmcnt(0)")
        a("s_lshl_b32 s58, s2, 9")
        a("s_lshl_b32 s59, s3, 5")
        a("s_add_u32 s58, s58, s59")
        a("s_add_u32 s58, s58, %d" % STAMP_OFF)
        a("s_mov_b32 s40, s18"); a("s_mov_b32 s41, s19"); a("s_mov_b32 s42, 0x1000000"); a("s_mov_b32 s43, 0x20000")
        for i in range(7):
            a("v_mov_b32 v%d, s%d" % (4 + i, 64 + 2 * i))
        a("v_mov_b32 v11, s78")
        a("s_mov_b64 exec, 1")
        a("buffer_store_dwordx4 v[4:7], off, s[40:43], s58")
        a("buffer_store_dwordx4 v[8:11], off, s[40:43], s58 offset:16")
    a.label("L_end")
    a("s_endpgm")
    nsg = 102 if (o["amp"] or stamps) else 94
    return wrap(["; @launch grid=(256,1,1) block=(%d,1,1) lds=%d" % (NW * 64, LDS_BYTES)], [(KN, a.text(), NVGPR, nsg)])

def parse_kv(args):
    kw = {}
    for x in args:
        k, v = x.split("=", 1)
        if v in ("True", "False", "None"):
            v = eval(v)
        else:
            try: v = int(v)
            except ValueError: pass
        kw[k] = v
    return kw

if __name__ == "__main__":
    open(sys.argv[1], "w").write(gen(**parse_kv(sys.argv[2:])))
```
